```python
import torch

def _softmax(x, axis=-1):
    return torch.softmax(x, dim=axis)
def _gelu(x):
    return torch.nn.functional.gelu(x, approximate="tanh")
def _silu(x):
    return torch.nn.functional.silu(x)
def _sigmoid(x):
    return torch.sigmoid(x)
def _layernorm(x, axis=-1, eps=1e-5):
    m = x.mean(dim=axis, keepdim=True)
    v = x.var(dim=axis, keepdim=True, unbiased=False)
    return (x - m) / torch.sqrt(v + eps)
def _scatter_add(tgt, idx, src, axis=0):
    return tgt.clone().index_add_(axis, idx, src)
def _segment_sum(src, seg, n):
    out = torch.zeros((n,) + src.shape[1:], dtype=src.dtype)
    return out.index_add_(0, seg, src)
def _pad(x, pw):
    flat = tuple(v for pair in reversed(pw) for v in pair)
    return torch.nn.functional.pad(x, flat)

kernel_name = 'gated_mix__grouped_kv_mqa__moe_arch_mod__prompt'

def setup_inputs():

    _w = (lambda a: (lambda t: t.to(torch.bfloat16) if t.is_floating_point() else t)(torch.as_tensor(a)))
    def _A_setup():
        B, S, D, H = 1, 2048, 512, 32
        Dh = D // H
        return {
            "x": _w((lambda *s: torch.randn(*s, dtype=torch.bfloat16) * 0.05)(B, S, D)),
            "wq": _w((lambda *s: torch.randn(*s, dtype=torch.bfloat16) * 1.6)(D, H * Dh)),
            "wk": _w((lambda *s: torch.randn(*s, dtype=torch.bfloat16) * 1.6)(D, Dh)),
            "wv": _w((lambda *s: torch.randn(*s, dtype=torch.bfloat16) * 0.1)(D, Dh)),
            "wo": _w((lambda *s: torch.randn(*s, dtype=torch.bfloat16) * 0.1)(H * Dh, D)),
        }
    _A_in = _A_setup()

    def _B_setup():
        B, S, D, F, C = 1, 2048, 512, 1792, 1
        return {
            "x": _w((lambda *s: torch.randn(*s, dtype=torch.bfloat16) * 0.05)(B, S, D)),
            "w_r": _w((lambda *s: torch.randn(*s, dtype=torch.bfloat16) * 3.2)(D)),
            "w_gate": _w((lambda *s: torch.randn(*s, dtype=torch.bfloat16) * 0.2)(D, F)),
            "w_up": _w((lambda *s: torch.randn(*s, dtype=torch.bfloat16) * 0.2)(D, F)),
            "w_down": _w((lambda *s: torch.randn(*s, dtype=torch.bfloat16) * 0.2)(F, D)),
        }
    _B_in = _B_setup()

    return {
        "A_x": _A_in["x"],
        "A_wq": _A_in["wq"],
        "A_wk": _A_in["wk"],
        "A_wv": _A_in["wv"],
        "A_wo": _A_in["wo"],
        "B_x": _B_in["x"],
        "B_w_r": _B_in["w_r"],
        "B_w_gate": _B_in["w_gate"],
        "B_w_up": _B_in["w_up"],
        "B_w_down": _B_in["w_down"],
        "gate_w": _w((lambda *s: torch.randn(*s, dtype=torch.bfloat16) * 0.05)(512) * 16.0),
    }

def reference(A_x, A_wq, A_wk, A_wv, A_wo, B_x, B_w_r, B_w_gate, B_w_up, B_w_down, gate_w):
    def _A_ref(x, wq, wk, wv, wo):
        B, S, D = x.shape
        H = 32
        Dh = D // H
        q = (lambda x, *d: x.permute(*d))((x @ wq).reshape(B, S, H, Dh), 0, 2, 1, 3)
        k = x @ wk
        v = x @ wv
        scores = torch.einsum("bhqd,bkd->bhqk", q, k) * (Dh ** -0.5)
        p = _softmax(scores, axis=-1)
        o = torch.einsum("bhqk,bkd->bhqd", p, v)
        return (lambda x, *d: x.permute(*d))(o, 0, 2, 1, 3).reshape(B, S, H * Dh) @ wo

    def _B_ref(x, w_r, w_gate, w_up, w_down):
        B, S, D = x.shape
        C = 1
        r = x @ w_r
        idx = torch.argsort(-r, axis=-1)[:, :C]
        idx_e = (lambda x, n, axis: torch.repeat_interleave(x, n, dim=axis))(idx.reshape(B, C, 1), D, axis=2)
        x_sel = (lambda x, i, axis: torch.take_along_dim(x, i, dim=axis))(x, idx_e, axis=1)
        g = _silu(x_sel @ w_gate)
        u = x_sel @ w_up
        y = (g * u) @ w_down
        r_sel = _sigmoid((lambda x, i, axis: torch.take_along_dim(x, i, dim=axis))(r, idx, axis=1))
        y = y * r_sel.reshape(B, C, 1)
        b_off = (torch.arange(B) * S).reshape(B, 1)
        flat_idx = (idx + b_off).reshape(B * C)
        zero = (x * 0.0).reshape(B * S, D)
        upd = _scatter_add(zero, flat_idx, y.reshape(B * C, D), axis=0)
        return x + upd.reshape(B, S, D)

    x = A_x
    g = _sigmoid((x * gate_w).sum(-1, keepdims=True))
    a = _A_ref(x, A_wq, A_wk, A_wv, A_wo)
    b = _B_ref(x, B_w_r, B_w_gate, B_w_up, B_w_down)
    return g * a + (1 - g) * b
```

```python
import re

TRANS = ("v_exp_f32", "v_log_f32", "v_rcp_f32", "v_rsq_f32", "v_sqrt_f32", "v_sin_f32", "v_cos_f32",
         "v_exp_f16", "v_rcp_f16", "v_rcp_iflag_f32")

def regs_of(tok):
    tok = tok.strip()
    tok = tok.lstrip("-")
    if tok.startswith("abs(") or tok.startswith("|"):
        tok = tok.replace("abs(", "").replace(")", "").replace("|", "")
    m = re.fullmatch(r"([vsa])(\d+)", tok)
    if m: return {(m.group(1), int(m.group(2)))}
    m = re.fullmatch(r"([vsa])\[(\d+):(\d+)\]", tok)
    if m: return {(m.group(1), i) for i in range(int(m.group(2)), int(m.group(3)) + 1)}
    if tok == "vcc": return {("s", 106), ("s", 107)}
    if tok == "vcc_lo": return {("s", 106)}
    if tok == "vcc_hi": return {("s", 107)}
    if tok == "m0": return {("s", 124)}
    if tok == "exec": return {("s", 126), ("s", 127)}
    if tok == "exec_lo": return {("s", 126)}
    if tok == "exec_hi": return {("s", 127)}
    return set()

class Ins:
    def __init__(self, text):
        self.text = text
        t = text.split(";")[0].strip()
        parts = t.split(None, 1)
        self.op = parts[0]
        rest = parts[1] if len(parts) > 1 else ""
        ops = [o.strip() for o in rest.split(",")] if rest else []
        mods = ""
        if ops:
            lp = ops[-1].split(None, 1)
            ops[-1] = lp[0]
            mods = lp[1] if len(lp) > 1 else ""
        self.ops, self.mods = ops, rest
        op = self.op
        self.states = 1
        if op == "s_nop": self.states = int(ops[0], 0) + 1
        self.mfma = op.startswith("v_mfma") or op.startswith("v_smfmac")
        self.valu = op.startswith("v_") and not self.mfma
        self.trans = any(op.startswith(x) for x in TRANS)
        self.ds = op.startswith("ds_")
        self.vmem = op.startswith("buffer_") or op.startswith("global_") or op.startswith("flat_")
        self.salu = op.startswith("s_")
        self.dpp = ("_dpp" in op) or ("row_" in rest) or ("quad_perm" in rest)
        self.perml = op.startswith("v_permlane")
        self.rdlane = op.startswith("v_readlane") or op.startswith("v_readfirstlane")
        self.ldsdma = self.vmem and (re.search(r"\blds\b", rest) is not None or "_lds_" in op)
        R = [regs_of(o) for o in ops]
        dst, src = set(), set()
        self.srcC = set(); self.srcAB = set(); self.passes = 0
        def U(l):
            s = set()
            for x in l: s |= x
            return s
        if self.mfma:
            dst = R[0]; self.srcAB = R[1] | R[2]; self.srcC = R[3] if len(R) > 3 else set()
            src = self.srcAB | self.srcC
            self.passes = 8 if "32x32" in op else 4
        elif self.valu:
            if self.perml and "swap" in op:
                dst = R[0] | R[1]; src = R[0] | R[1]
            elif re.match(r"v_(add|sub|subrev|addc|subb)_co_", op) or op.startswith("v_mad_u64"):
                dst = R[0] | R[1]; src = U(R[2:])
            else:
                dst = R[0]; src = U(R[1:])
                if op.startswith("v_fmac") or op.startswith("v_dot2c") or self.dpp or "sdwa" in op or op.startswith("v_writelane"):
                    src |= R[0]
        elif self.ds:
            if op.startswith("ds_read") or "_rtn_" in op or "permute" in op or "swizzle" in op:
                dst = R[0]; src = U(R[1:])
            else:
                src = U(R)
        elif self.vmem:
            if self.ldsdma:
                src = U(R) | {("s", 124)}
            elif "_load_" in op:
                dst = R[0]; src = U(R[1:])
            else:
                src = U(R)
                if "atomic" in op and "sc0" in rest: dst = R[0]
        elif self.salu:
            if re.match(r"s_(cmp|waitcnt|nop|barrier|branch|cbranch|endpgm|sleep|setprio|bitcmp)", op):
                src = U(R)
            else:
                dst = R[0] if R else set(); src = U(R[1:])
                if "saveexec" in op: dst = dst | {("s", 126), ("s", 127)}
        self.dst, self.src = dst, src
        self.widestore = self.vmem and ("store_dwordx4" in op or "store_dwordx3" in op)
        self.storedata = set()
        if self.widestore:
            self.storedata = R[0] if op.startswith("buffer_") else R[1]

def need(p, c):
    n = 0
    vd = {r for r in p.dst if r[0] in "va"}
    sd = {r for r in p.dst if r[0] == "s"}
    if p.trans and c.valu and not c.trans and (vd & c.src): n = max(n, 1)
    if p.trans and c.mfma and (vd & c.src): n = max(n, 2)
    if p.valu and c.mfma and (vd & c.src): n = max(n, 2)
    if p.mfma:
        big = 12 if p.passes == 8 else 8
        if c.mfma:
            if vd & c.srcAB: n = max(n, big)
            if vd & c.srcC:
                if not (vd == c.srcC and p.passes == c.passes): n = max(n, big - 2)
            elif vd & c.dst: n = max(n, big)
        elif c.valu or c.ds or c.vmem:
            if vd & (c.src | c.dst): n = max(n, big)
        if c.valu and (p.srcC & c.dst): n = max(n, 7 if p.passes == 8 else 3)
    if p.valu:
        if (c.dpp or c.perml) and (vd & c.src): n = max(n, 2)
        if c.rdlane and (vd & c.src): n = max(n, 1)
        if sd:
            if c.valu and (sd & c.src): n = max(n, 4 if c.rdlane else 2)
            if c.vmem and (sd & c.src): n = max(n, 5)
            if c.salu and (sd & c.src): n = max(n, 1)
    if p.salu and (("s", 124) in p.dst) and c.ldsdma: n = max(n, 1)
    if p.widestore and (c.valu or c.mfma) and (p.storedata & c.dst): n = max(n, 2)
    return n

class Asm:
    def __init__(self):
        self.lines = []
        self.hist = []
        self.nops_added = 0
        self.strict = False
    def raw(self, s):
        self.lines.append(s)
    def c(self, s):
        self.lines.append("    ; " + s)
    def label(self, l):
        self.lines.append(l + ":")
    def e(self, text):
        for t in text.strip().split("\n"):
            t = t.strip()
            if not t: continue
            if t.startswith(";"):
                self.lines.append("    " + t); continue
            if t.endswith(":"):
                self.lines.append(t); continue
            ins = Ins(t)
            dist = 0; pad = 0
            for p in reversed(self.hist):
                n = need(p, ins)
                if n > dist: pad = max(pad, n - dist)
                dist += p.states
                if dist > 20: break
            if pad:
                if self.strict:
                    raise RuntimeError("hazard pad %d needed before: %s" % (pad, t))
                self.nops_added += 1
                nop = Ins("s_nop %d" % (pad - 1))
                self.lines.append("    s_nop %d" % (pad - 1))
                self.hist.append(nop)
            self.lines.append("    " + t)
            self.hist.append(ins)
            if len(self.hist) > 64: self.hist = self.hist[-40:]
    def text(self):
        return "\n".join(self.lines) + "\n"

def v(a, n=1):
    return f"v{a}" if n == 1 else f"v[{a}:{a+n-1}]"
def s(a, n=1):
    return f"s{a}" if n == 1 else f"s[{a}:{a+n-1}]"
```

```python
import sys, struct
from asmlib import Asm, v, s

NAME = "gated_mix__grouped_kv_mqa__moe_arch_mod__prompt"
def f2u(x): return struct.unpack("<I", struct.pack("<f", x))[0]

class Cfg:
    stamps = False
    force_fallback = False
    spin = 0x40000
    nup = 4
cfg = Cfg()
for a in sys.argv[2:]:
    k, val = a.split("=")
    setattr(cfg, k, int(val))

WS_K = 0; WS_V = 65536; WS_Y = 131072; WS_CNT = WS_Y + 32768; WS_O = 1 << 20; WS_STAMP = 4 << 20
WS_BYTES = 8 << 20
NREP = 8
XB_ = 88 * 1024; WKB = 120 * 1024; QB = 128 * 1024; OB = 136 * 1024; RGB = 152 * 1024
NEGB = 154 * 1024; SCR = 158 * 1024
FB = 96 * 1024
F_G = FB; F_U = FB + 8192 + 64; F_D = FB + 16384 + 128; F_X = FB + 16384 + 128 + 8 * 1088
OSTR = 9 * 256
CSCALE = 0.25 * 1.4426950408889634

sW = 3; sTG = 4; sHG = 5; sA = 6; sB = 7; sC = 8; sD = 9; sE = 10; sF = 11; sIT = 12; sFB = 13; sSEL = 14; sR16 = 15
pX, pWQ, pWK, pWV, pWO, pBX, pWR, pWG = 16, 18, 20, 22, 24, 26, 28, 30
pWU, pWD, pGW, pOUT, pDBG, pWS = 32, 34, 36, 38, 40, 42
rX, rWQ, rWO, rT1, rWS, rOUT, rDBG, rT2 = 44, 48, 52, 56, 60, 64, 68, 72
sF0 = 76; sFV = 77; sOWN = 78; sSPIN = 79; sVM = 80
sXD = 82
sST = 84
vL = 1; vTK = 2; vG = 3
XA = 64; XBr = 128
KF = 64; VF = 96; S0 = 160; S1 = 176; O0 = 192; O1 = 208; CM = 224; PP = 240; QF = 248
vQa = 252; vCa = 253; vOa = 254
vQN = 60

a = Asm()
e = a.e
nstamp = [0]
def stamp(name):
    if not cfg.stamps: return
    i = nstamp[0]; nstamp[0] += 1
    assert i < 16
    a.c(f"stamp {i}: {name}")
    e(f"s_memrealtime s[100:101]")
    e("s_waitcnt lgkmcnt(0)")
    e(f"s_mov_b32 s{sST+i}, s100")
    STAMPS.append(name)
STAMPS = []

def srd(r, p, nbytes):
    e(f"s_mov_b32 s{r}, s{p}")
    e(f"s_mov_b32 s{r+1}, s{p+1}")
    e(f"s_mov_b32 s{r+2}, {nbytes}")
    e(f"s_mov_b32 s{r+3}, 0x20000")
def srd_sel(r, p1, p0, nbytes):
    e(f"s_cselect_b32 s{r}, s{p1}, s{p0}")
    e(f"s_cselect_b32 s{r+1}, s{p1+1}, s{p0+1}")
    e(f"s_mov_b32 s{r+2}, {nbytes}")
    e(f"s_mov_b32 s{r+3}, 0x20000")
def dma(voff, r, soff, off=0):
    o = f" offset:{off}" if off else ""
    e(f"buffer_load_dwordx4 v{voff}, {s(r,4)}, {soff} offen{o} lds")
def mf16(d, A, B, C):
    e(f"v_mfma_f32_16x16x32_bf16 {v(d,4)}, {v(A,4)}, {v(B,4)}, {C}")
def mf32(d, A, B, C):
    e(f"v_mfma_f32_32x32x16_bf16 {v(d,16)}, {v(A,4)}, {v(B,4)}, {C}")
def sum_over_g(x, t):
    e(f"v_mov_b32 v{t}, v{x}")
    e(f"v_permlane32_swap_b32 v{x}, v{t}")
    e(f"v_add_f32 v{x}, v{x}, v{t}")
    e(f"v_mov_b32 v{t}, v{x}")
    e(f"v_permlane16_swap_b32 v{x}, v{t}")
    e(f"v_add_f32 v{x}, v{x}, v{t}")
def round_bf16(x):
    e(f"v_cvt_pk_bf16_f32 v{x}, v{x}, v{x}")
    e(f"v_and_b32 v{x}, 0xffff0000, v{x}")
def sigmoid(x):
    e(f"v_mul_f32 v{x}, 0x{f2u(-1.4426950408889634):08x}, v{x}")
    e(f"v_exp_f32 v{x}, v{x}")
    e(f"v_add_f32 v{x}, 1.0, v{x}")
    e(f"v_rcp_f32 v{x}, v{x}")
uid = [0]
def L(p):
    uid[0] += 1
    return f"L_{p}_{uid[0]}"

def wq_steps(lo, hi):
    for S in range(lo, hi):
        e(f"s_add_u32 m0, s{sE}, {S*8192}")
        e(f"s_mov_b32 s{sA}, {S*32768}")
        dma(10, rWQ, f"s{sA}")
        dma(11, rWQ, f"s{sA}", 1024)

def arrive():
    Ld = L("arr")
    e("s_mov_b64 exec, 1")
    e(f"v_mov_b32 v20, {SCR}")
    e("v_mov_b32 v21, 1")
    e("ds_add_rtn_u32 v22, v20, v21")
    e("s_waitcnt lgkmcnt(0)")
    e(f"v_readfirstlane_b32 s{sA}, v22")
    e(f"s_cmp_eq_u32 s{sA}, 5")
    e(f"s_cbranch_scc0 {Ld}")
    e("ds_read_b64 v[22:23], v20 offset:8")
    e(f"s_lshl_b32 s{sA}, s{sTG}, 2")
    e(f"v_mov_b32 v24, s{sA}")
    e("s_waitcnt lgkmcnt(0)")
    e("v_lshrrev_b32 v22, 20, v22")
    e("v_add_u32 v22, 1, v22")
    e("v_min_u32 v22, 0x7ff, v22")
    e("v_and_b32 v23, 0xfffff800, v23")
    e("v_or_b32 v22, v22, v23")
    e(f"buffer_store_dword v22, v24, {s(rDBG,4)}, 0 offen sc1")
    a.label(Ld)
    e("s_mov_b64 exec, -1")

a.raw(f"""; fused gated-mix kernel: MQA attention (32 heads, d=16) + top-1 routed SwiGLU + sigmoid gate, one launch
; @launch grid=(256,1,1) block=(512,1,1) lds=163840
.amdgcn_target "amdgcn-amd-amdhsa--gfx950"
.text
.globl {NAME}_kernel
.p2align 8
.type {NAME}_kernel,@function
{NAME}_kernel:""")
e("s_cmp_ge_u32 s2, 256")
e("s_cbranch_scc1 L_end")
e("s_load_dwordx16 s[16:31], s[0:1], 0")
e("s_load_dwordx8 s[32:39], s[0:1], 64")
e("s_load_dwordx4 s[40:43], s[0:1], 96")
e(f"v_and_b32 v{vL}, 63, v0")
e("v_lshrrev_b32 v4, 6, v0")
e(f"v_and_b32 v{vTK}, 15, v0")
e(f"v_readfirstlane_b32 s{sW}, v4")
e(f"v_lshrrev_b32 v{vG}, 4, v{vL}")
e(f"s_and_b32 s{sA}, s2, 7")
e(f"s_lshr_b32 s{sHG}, s2, 6")
e(f"s_bfe_u32 s{sB}, s2, 0x30003")
e(f"s_lshl_b32 s{sTG}, s{sA}, 3")
e(f"s_add_u32 s{sTG}, s{sTG}, s{sB}")
e(f"s_sub_u32 s{sC}, 3, s{sHG}")
e(f"s_lshl_b32 s{sC}, s{sC}, 3")
e(f"s_add_u32 s{sC}, s{sC}, s{sA}")
e(f"s_cmp_lt_u32 s{sC}, 28")
e(f"s_cselect_b32 s{sFV}, 1, 0")
e(f"s_lshl_b32 s{sC}, s{sC}, 6")
e(f"s_lshl_b32 s{sB}, s{sB}, 3")
e(f"s_add_u32 s{sF0}, s{sC}, s{sB}")
e(f"s_mov_b32 s{sVM}, 0xffff")
e(f"s_mov_b32 s{sVM+1}, 0xffff")
e(f"s_mov_b32 s{sFB}, 0")
e(f"v_lshlrev_b32 v5, 4, v{vL}")
e("v_mov_b32 v10, 0")
e("v_mov_b32 v11, 0")
e("s_waitcnt lgkmcnt(0)")
stamp("entry")
srd(rX, pX, 2097152)
srd(rWQ, pWQ, 524288)
srd(rWO, pWO, 524288)
srd(rWS, pWS, WS_BYTES)
srd(rOUT, pOUT, 2097152)
srd(rDBG, pDBG, 256)
e(f"s_cmp_ge_u32 s{sW}, 4")
e("s_cbranch_scc1 L_ld_hi")
e(f"s_and_b32 s{sA}, s{sW}, 1")
e(f"s_lshl_b32 s{sA}, s{sA}, 7")
e(f"v_xor_b32 v6, s{sA}, v5")
e(f"s_lshl_b32 s{sB}, s{sTG}, 15")
e(f"s_lshl_b32 s{sC}, s{sW}, 13")
e(f"s_add_u32 s{sB}, s{sB}, s{sC}")
e(f"s_add_u32 m0, s{sC}, {XB_}")
for i in range(8):
    if i == 4:
        e(f"s_add_u32 s{sB}, s{sB}, 4096")
        e(f"s_add_u32 m0, s{sC}, {XB_+4096}")
    e(f"v_xor_b32 v7, {i<<4}, v6")
    dma(7, rX, f"s{sB}", (i & 3) * 1024)
e(f"v_lshlrev_b32 v8, 2, v{vTK}")
e("v_mov_b32 v12, 0")
e(f"v_add_u32 v8, {SCR}, v8")
e("ds_write_b32 v8, v12")
e(f"s_cmp_eq_u32 s{sHG}, 0")
e("s_cbranch_scc1 L_lo_prod")
e("s_waitcnt vmcnt(0)")
e("s_branch L_B1")
a.label("L_lo_prod")
for i in range(4): e(f"v_mov_b32 v{16+i}, -1")
e(f"s_lshl_b32 s{sB}, s{sTG}, 15")
e(f"s_add_u32 s{sB}, s{sB}, s{sC}")
e(f"s_add_u32 s{sB}, s{sB}, {WS_O}")
for i in range(8):
    if i == 4: e(f"s_add_u32 s{sB}, s{sB}, 4096")
    e(f"buffer_store_dwordx4 v[16:19], v5, {s(rWS,4)}, s{sB} offen offset:{(i&3)*1024} sc1")
e(f"s_lshl_b32 s{sB}, s{sTG}, 2")
e(f"s_add_u32 s{sB}, s{sB}, s{sW}")
e(f"s_lshl_b32 s{sB}, s{sB}, 8")
e(f"s_add_u32 s{sB}, s{sB}, {WS_Y}")
e(f"v_lshlrev_b32 v8, 2, v{vL}")
e(f"buffer_store_dword v12, v8, {s(rWS,4)}, s{sB} offen sc1")
e("s_waitcnt vmcnt(9)")
e("s_branch L_B1")
a.label("L_ld_hi")
e(f"s_sub_u32 s{sD}, s{sW}, 4")
e(f"s_and_b32 s{sA}, s{sD}, 1")
e(f"s_lshl_b32 s{sB}, s{sA}, 10")
e(f"s_add_u32 m0, s{sB}, {RGB}")
e(f"s_cmp_eq_u32 s{sA}, 1")
srd_sel(rT1, pGW, pWR, 1024)
dma(5, rT1, "0")
e(f"s_cmp_eq_u32 s{sHG}, 0")
e("s_cbranch_scc0 L_hi_nokv")
e(f"s_cmp_ge_u32 s{sD}, 2")
srd_sel(rT2, pWV, pWK, 16384)
e(f"v_and_b32 v6, 16, v{vL}")
e("v_lshlrev_b32 v6, 3, v6")
e("v_xor_b32 v6, v6, v5")
e(f"s_lshl_b32 s{sB}, s{sA}, 13")
e(f"s_lshl_b32 s{sC}, s{sD}, 13")
e(f"s_add_u32 m0, s{sC}, {WKB}")
for i in range(8):
    if i == 4:
        e(f"s_add_u32 s{sB}, s{sB}, 4096")
        e(f"s_add_u32 m0, s{sC}, {WKB+4096}")
        e("s_nop 0")
    dma(6, rT2, f"s{sB}", (i & 3) * 1024)
a.label("L_hi_nokv")
e(f"s_lshl_b32 s{sA}, s{sA}, 3")
e(f"v_lshlrev_b32 v6, 1, v{vG}")
e(f"v_or_b32 v6, s{sA}, v6")
e(f"v_xor_b32 v6, v6, v{vTK}")
e("v_lshlrev_b32 v6, 4, v6")
e(f"v_lshl_add_u32 v6, v{vG}, 10, v6")
e(f"s_lshl_b32 s{sA}, s{sHG}, 8")
e(f"s_lshl_b32 s{sB}, s{sD}, 13")
e(f"s_add_u32 s{sA}, s{sA}, s{sB}")
e(f"v_add_u32 v10, s{sA}, v6")
e("v_add_u32 v11, 3072, v10")
e(f"s_lshl_b32 s{sE}, s{sD}, 11")
wq_steps(0, cfg.nup)
e(f"s_waitcnt vmcnt({2*cfg.nup})")
a.label("L_B1")
e(f"s_and_b32 s{sA}, s{sW}, 1")
e(f"s_lshl_b32 s{sB}, s{sA}, 14")
e(f"s_add_u32 s{sB}, s{sB}, {XB_}")
e(f"s_cmp_eq_u32 s{sA}, 1")
e(f"s_cselect_b32 s{sXD}, -1, 1")
e(f"s_lshl_b32 s{sXD}, s{sXD}, 14")
for q in range(4):
    e(f"v_add_u32 v6, {4*q}, v{vG}")
    e(f"v_xor_b32 v6, v6, v{vTK}")
    e("v_lshlrev_b32 v6, 4, v6")
    e(f"v_lshl_add_u32 v6, v{vTK}, 10, v6")
    e(f"v_add_u32 v{12+q}, s{sB}, v6")
e(f"v_lshrrev_b32 v8, 2, v{vTK}")
e(f"v_and_b32 v9, 3, v{vTK}")
e("s_waitcnt lgkmcnt(0)")
e("s_barrier")
stamp("B1")
def xa_read(S): e(f"ds_read_b128 {v(XA+4*S,4)}, v{12+(S&3)} offset:{(S>>2)*256}")
e(f"s_cmp_ge_u32 s{sW}, 6")
e("s_cbranch_scc1 L_role_none")
e(f"s_cmp_ge_u32 s{sW}, 4")
e("s_cbranch_scc1 L_role_rg")
e(f"s_cmp_eq_u32 s{sHG}, 0")
e("s_cbranch_scc0 L_role_none")
e(f"s_lshr_b32 s{sA}, s{sW}, 1")
e(f"s_lshl_b32 s{sA}, s{sA}, 14")
e(f"s_add_u32 s{sA}, s{sA}, {WKB}")
e(f"v_and_b32 v6, 1, v{vG}")
e("v_lshlrev_b32 v6, 7, v6")
e(f"v_lshl_add_u32 v6, v{vG}, 8, v6")
e("v_lshl_add_u32 v6, v8, 5, v6")
e("v_lshl_add_u32 v6, v9, 3, v6")
e(f"v_add_u32 v16, s{sA}, v6")
e("v_xor_b32 v17, 128, v16")
def kv_reads(S):
    xa_read(S)
    w = 32 + 4 * (S % 6)
    e(f"ds_read_b64_tr_b16 {v(w,2)}, v16 offset:{S*1024}")
    e(f"ds_read_b64_tr_b16 {v(w+2,2)}, v17 offset:{S*1024}")
def kv_chain(swap):
    for S in range(5): kv_reads(S)
    for S in range(16):
        left = min(S + 5, 16) - (S + 1)
        e(f"s_waitcnt lgkmcnt({3*left})")
        w = 32 + 4 * (S % 6)
        C = "0" if S == 0 else v(56, 4)
        if swap: mf16(56, XA + 4 * S, w, C)
        else: mf16(56, w, XA + 4 * S, C)
        if S + 5 < 16: kv_reads(S + 5)
e(f"s_cmp_ge_u32 s{sW}, 2")
e("s_cbranch_scc1 L_role_v")
kv_chain(False)
e(f"s_lshl_b32 s{sA}, s{sTG}, 10")
e(f"s_lshl_b32 s{sB}, s{sW}, 9")
e(f"s_add_u32 s{sA}, s{sA}, s{sB}")
e(f"v_lshlrev_b32 v6, 5, v{vTK}")
e(f"v_lshl_add_u32 v6, v{vG}, 3, v6")
e("v_cvt_pk_bf16_f32 v18, v56, v57")
e("v_cvt_pk_bf16_f32 v19, v58, v59")
e(f"buffer_store_dwordx2 v[18:19], v6, {s(rWS,4)}, s{sA} offen sc1")
e("v_mul_f32 v20, v56, v56")
e("v_fmac_f32 v20, v57, v57")
e("v_fmac_f32 v20, v58, v58")
e("v_fmac_f32 v20, v59, v59")
sum_over_g(20, 21)
e(f"v_mov_b32 v21, {SCR}")
e("ds_max_u32 v21, v20 offset:8")
e("s_branch L_role_done")
a.label("L_role_v")
kv_chain(True)
e(f"s_lshl_b32 s{sA}, s{sTG}, 10")
e(f"s_and_b32 s{sB}, s{sW}, 1")
e(f"s_lshl_b32 s{sB}, s{sB}, 9")
e(f"s_add_u32 s{sA}, s{sA}, s{sB}")
e(f"s_add_u32 s{sA}, s{sA}, {WS_V}")
e(f"v_and_b32 v6, 1, v{vG}")
e("v_lshlrev_b32 v6, 8, v6")
e(f"v_lshl_add_u32 v6, v{vTK}, 4, v6")
e(f"v_lshrrev_b32 v7, 1, v{vG}")
e("v_lshl_add_u32 v6, v7, 3, v6")
e("v_cvt_pk_bf16_f32 v18, v56, v57")
e("v_cvt_pk_bf16_f32 v19, v58, v59")
e(f"buffer_store_dwordx2 v[18:19], v6, {s(rWS,4)}, s{sA} offen sc1")
e("s_branch L_role_done")
a.label("L_role_rg")
e(f"v_and_b32 v6, 1, v{vTK}")
e("v_lshlrev_b32 v6, 10, v6")
e(f"v_lshl_add_u32 v6, v{vG}, 4, v6")
e(f"v_add_u32 v16, {RGB}, v6")
def rg_reads(S):
    xa_read(S)
    e(f"ds_read_b128 {v(32+4*(S%6),4)}, v16 offset:{S*64}")
for S in range(5): rg_reads(S)
for S in range(16):
    left = min(S + 5, 16) - (S + 1)
    e(f"s_waitcnt lgkmcnt({2*left})")
    mf16(56, 32 + 4 * (S % 6), XA + 4 * S, "0" if S == 0 else v(56, 4))
    if S + 5 < 16: rg_reads(S + 5)
e(f"s_and_b32 s{sA}, s{sW}, 1")
e(f"s_lshl_b32 s{sA}, s{sA}, 4")
e(f"v_add_u32 v6, s{sA}, v{vTK}")
round_bf16(56)
round_bf16(57)
e("v_ashrrev_i32 v18, 31, v56")
e("v_or_b32 v18, 0x80000000, v18")
e("v_xor_b32 v18, v18, v56")
e("v_and_b32 v18, 0xffff0000, v18")
e("v_lshl_or_b32 v18, v6, 11, v18")
e(f"v_mov_b32 v21, {SCR}")
e("ds_max_u32 v21, v18 offset:12")
sigmoid(57)
round_bf16(57)
e("v_lshlrev_b32 v6, 2, v6")
e(f"v_add_u32 v6, {SCR+512}, v6")
e("ds_write_b32 v6, v57")
e(f"s_cmp_eq_u32 s{sHG}, 0")
e("s_cbranch_scc0 L_role_done")
e("s_waitcnt lgkmcnt(0)")
arrive()
e("s_branch L_role_done")
a.label("L_role_none")
for S in range(16): xa_read(S)
a.label("L_role_done")
for q in range(4): e(f"v_add_u32 v{12+q}, s{sXD}, v{12+q}")
for S in range(16): e(f"ds_read_b128 {v(XBr+4*S,4)}, v{12+(S&3)} offset:{(S>>2)*256}")
e(f"s_cmp_ge_u32 s{sW}, 4")
e("s_cbranch_scc0 L_nomore1")
wq_steps(cfg.nup, 11)
a.label("L_nomore1")
e("s_waitcnt lgkmcnt(0)")
e("s_barrier")
stamp("B2")
e(f"s_cmp_ge_u32 s{sW}, 4")
e("s_cbranch_scc0 L_nomore2")
wq_steps(11, 16)
a.label("L_nomore2")
def zero_oacc():
    e(f"v_lshl_or_b32 v6, s{sW}, 6, v{vL}")
    for i in range(4): e(f"v_mov_b32 v{16+i}, 0")
    e("v_lshlrev_b32 v7, 4, v6")
    e(f"v_add_u32 v7, {OB}, v7")
    e("ds_write_b128 v7, v[16:19]")
    e("ds_write_b128 v7, v[16:19] offset:8192")
    e("v_lshlrev_b32 v7, 2, v6")
    e(f"v_add_u32 v7, {OB+16384}, v7")
    e("ds_write_b32 v7, v16")
zero_oacc()
e(f"v_and_b32 v6, 1, v{vG}")
e("v_lshl_or_b32 v6, v6, 2, v8")
e(f"v_xor_b32 v6, s{sW}, v6")
e("v_lshlrev_b32 v6, 5, v6")
e("v_lshl_add_u32 v6, v9, 3, v6")
e(f"v_lshl_add_u32 v7, v{vG}, 3, v8")
e("v_lshl_add_u32 v26, v7, 8, v6")
e("v_add_u32 v27, 0x10000, v26")
e(f"s_cmp_ge_u32 s{sW}, 4")
e("s_cbranch_scc1 L_noarr")
e(f"s_cmp_eq_u32 s{sHG}, 0")
e("s_cbranch_scc0 L_noarr")
e("s_waitcnt vmcnt(0) lgkmcnt(0)")
arrive()
a.label("L_noarr")
stamp("arrived")
def q_chunk(lo, hi, vm):
    e(f"s_waitcnt vmcnt({vm})")
    e("s_barrier")
    def rd(S):
        w = 32 + 4 * ((S - lo) % 6); b = 26 if S < 8 else 27; o = (S & 7) * 8192
        e(f"ds_read_b64_tr_b16 {v(w,2)}, v{b} offset:{o}")
        e(f"ds_read_b64_tr_b16 {v(w+2,2)}, v{b} offset:{o+1024}")
    for S in range(lo, hi): rd(S)
    for S in range(lo, hi):
        e(f"s_waitcnt lgkmcnt({2*(hi-1-S)})")
        w = 32 + 4 * ((S - lo) % 6)
        mf16(56, w, XA + 4 * S, "0" if S == 0 else v(56, 4))
        mf16(20, w, XBr + 4 * S, "0" if S == 0 else v(20, 4))
q_chunk(0, 6, 20)
q_chunk(6, 11, 10)
q_chunk(11, 16, 0)
stamp("qdone")
e(f"s_and_b32 s{sA}, s{sW}, 1")
e(f"s_lshl_b32 s{sA}, s{sA}, 4")
e(f"v_add_u32 v28, s{sA}, v{vTK}")
e("v_xor_b32 v29, 16, v28")
e(f"v_lshrrev_b32 v6, 1, v{vG}")
e("v_lshlrev_b32 v6, 9, v6")
e(f"v_and_b32 v7, 1, v{vG}")
e("v_lshl_add_u32 v6, v7, 3, v6")
e(f"s_lshl_b32 s{sA}, s{sW}, 10")
e(f"s_add_u32 s{sA}, s{sA}, {QB}")
e(f"v_add_u32 v6, s{sA}, v6")
e(f"s_mov_b32 s{sB}, 0x{f2u(CSCALE):08x}")
for hf, acc in ((0, 56), (1, 20)):
    for i in range(4): e(f"v_mul_f32 v{acc+i}, s{sB}, v{acc+i}")
    e(f"v_cvt_pk_bf16_f32 v18, v{acc}, v{acc+1}")
    e(f"v_cvt_pk_bf16_f32 v19, v{acc+2}, v{acc+3}")
    e(f"v_lshl_add_u32 v7, v{28+hf}, 4, v6")
    e("ds_write_b64 v7, v[18:19]")
    n = vQN + hf
    e(f"v_mul_f32 v{n}, v{acc}, v{acc}")
    for i in range(1, 4): e(f"v_fmac_f32 v{n}, v{acc+i}, v{acc+i}")
    sum_over_g(n, 24)
    e(f"v_sqrt_f32 v{n}, v{n}")
for i in range(64): e(f"v_mov_b32 v{VF+i}, 0x3f803f80")
e(f"v_lshlrev_b32 v4, 2, v{vL}")
e(f"s_cmp_eq_u32 s{sW}, 0")
e("s_cbranch_scc0 L_nopoll")
e(f"s_mov_b32 s{sSPIN}, 0")
a.label("L_poll")
e(f"buffer_load_dword v6, v4, {s(rDBG,4)}, 0 offen sc1")
e(f"s_add_u32 s{sSPIN}, s{sSPIN}, 1")
e("s_waitcnt vmcnt(0)")
e("v_cmp_eq_u32 vcc, 0, v6")
e(f"s_cmp_gt_u32 s{sSPIN}, {cfg.spin}")
e("s_cbranch_scc1 L_pollout")
e("s_cmp_eq_u64 vcc, 0")
e("s_cbranch_scc0 L_poll")
a.label("L_pollout")
e(f"v_add_u32 v7, {SCR+256}, v4")
e("ds_write_b32 v7, v6")
a.label("L_nopoll")
e(f"v_and_b32 v6, 31, v{vL}")
e(f"v_lshrrev_b32 v7, 5, v{vL}")
e("v_lshlrev_b32 v16, 5, v6")
e("v_lshl_add_u32 v16, v7, 4, v16")
e(f"v_lshlrev_b32 v17, 4, v{vTK}")
e("v_lshl_add_u32 v17, v7, 8, v17")
e("v_lshlrev_b32 v255, 4, v6")
e(f"s_lshl_b32 s{sA}, s{sW}, 13")
e(f"s_add_u32 s{sB}, s{sA}, {WS_V}")
e(f"s_add_u32 s{sC}, s{sA}, 4096")
e(f"s_add_u32 s{sD}, s{sB}, 4096")
e("s_waitcnt lgkmcnt(0)")
e("s_barrier")
stamp("B6")
for j in range(8):
    e(f"buffer_load_dwordx4 {v(KF+4*j,4)}, v16, {s(rWS,4)}, s{sA if j<4 else sC} offen offset:{(j&3)*1024} sc1")
    e(f"s_mov_b64 exec, {s(sVM,2)}")
    for i in range(2):
        e(f"buffer_load_dwordx4 {v(VF+8*j+4*i,4)}, v17, {s(rWS,4)}, s{sB if j<4 else sD} offen offset:{(j&3)*1024+i*512} sc1")
    e("s_mov_b64 exec, -1")
e(f"v_add_u32 v7, {SCR+256}, v4")
e("ds_read_b32 v6, v7")
NWO = 12
e(f"s_and_b32 s{sA}, s{sW}, 1")
e(f"s_lshl_b32 s{sA}, s{sA}, 3")
e(f"v_lshlrev_b32 v10, 1, v{vG}")
e(f"v_or_b32 v10, s{sA}, v10")
e(f"v_xor_b32 v10, v10, v{vTK}")
e("v_lshlrev_b32 v10, 4, v10")
e(f"v_lshl_add_u32 v10, v{vG}, 10, v10")
e(f"s_lshl_b32 s{sA}, s{sHG}, 8")
e(f"v_add_u32 v10, s{sA}, v10")
e(f"s_lshl_b32 s{sA}, s{sW}, 12")
e(f"s_lshl_b32 s{sE}, s{sW}, 10")
for S in range(NWO):
    e(f"s_add_u32 m0, s{sE}, {S*8192}")
    e(f"s_add_u32 s{sB}, s{sA}, {S*32768}")
    dma(10, rWO, f"s{sB}")
e("s_waitcnt lgkmcnt(0)")
e("v_and_b32 v7, 0x7ff, v6")
e("v_and_b32 v6, 0xfffff800, v6")
e(f"v_or_b32 v6, v6, v{vL}")
for m in ("row_shr:1 row_mask:0xf", "row_shr:2 row_mask:0xf", "row_shr:4 row_mask:0xf", "row_shr:8 row_mask:0xf",
          "row_bcast:15 row_mask:0xa", "row_bcast:31 row_mask:0xc"):
    e(f"v_max_u32_dpp v6, v6, v6 {m} bank_mask:0xf")
    e(f"v_max_u32_dpp v7, v7, v7 {m} bank_mask:0xf")
e(f"v_readlane_b32 s{sA}, v6, 63")
e(f"v_readlane_b32 s{sB}, v7, 63")
e(f"s_and_b32 s{sC}, s{sA}, 63")
e(f"s_cmp_eq_u32 s{sC}, s{sTG}")
e(f"s_cselect_b32 s{sOWN}, 1, 0")
e(f"s_lshl_b32 s{sC}, s{sC}, 5")
e(f"s_bfe_u32 s{sD}, s{sA}, 0x5000b")
e(f"s_add_u32 s{sSEL}, s{sC}, s{sD}")
e(f"s_and_b32 s{sR16}, s{sA}, 0xffff0000")
e(f"s_lshl_b32 s{sB}, s{sB}, 20")
e(f"v_sqrt_f32 v7, s{sB}")
e(f"v_mul_f32 v7, 0x{f2u(-1.02):08x}, v7")
if cfg.force_fallback:
    e(f"v_mul_f32 v7, 0x{f2u(8.0):08x}, v7")
e(f"s_lshl_b32 s{sA}, s{sW}, 9")
e(f"s_add_u32 s{sA}, s{sA}, {NEGB}")
e(f"v_lshlrev_b32 v8, 2, v{vG}")
e(f"v_add_u32 v8, s{sA}, v8")
for hf in range(2):
    e(f"v_mul_f32 v18, v7, v{vQN+hf}")
    e(f"v_lshl_add_u32 v9, v{28+hf}, 4, v8")
    e("ds_write_b32 v9, v18")
e(f"s_cmp_eq_u32 s{sW}, 7")
e("s_cbranch_scc0 L_noffn0")
e(f"s_cmp_eq_u32 s{sFV}, 1")
e("s_cbranch_scc0 L_noffn0")
srd(rT1, pWG, 512 * 3584)
srd(rT2, pWU, 512 * 3584)
e(f"s_movk_i32 s{sA}, 3584")
e(f"v_mul_lo_u32 v12, v{vL}, s{sA}")
e(f"s_lshl_b32 s{sA}, s{sF0}, 1")
e(f"v_add_u32 v12, s{sA}, v12")
for i in range(8):
    e(f"s_mov_b32 s{sB}, {i*64*3584}")
    e(f"s_mov_b32 m0, {F_G+i*1024}")
    dma(12, rT1, f"s{sB}")
    e(f"s_mov_b32 m0, {F_U+i*1024}")
    dma(12, rT2, f"s{sB}")
srd(rT1, pWD, 1792 * 1024)
e(f"s_lshl_b32 s{sA}, s{sF0}, 10")
for i in range(8):
    e(f"s_add_u32 s{sB}, s{sA}, {i*1024}")
    e(f"s_mov_b32 m0, {F_D+i*1088}")
    dma(5, rT1, f"s{sB}")
e(f"s_lshl_b32 s{sB}, s{sSEL}, 10")
e(f"s_mov_b32 m0, {F_X}")
dma(5, rX, f"s{sB}")
a.label("L_noffn0")
NYOUNG = NWO

a.label("L_attn")
e(f"v_add_u32 v{vQa}, {QB}, v5")
e(f"v_add_u32 v{vCa}, {NEGB}, v255")
e(f"v_add_u32 v{vOa}, {OB}, v4")
e(f"s_mov_b32 s{sIT}, 0")
e("s_waitcnt lgkmcnt(0)")
e("s_barrier")
stamp("B7")
def qc_reads(u):
    e(f"ds_read_b128 {v(QF,4)}, v{vQa} offset:{u*1024}")
    for i in range(4):
        e(f"ds_read_b128 {v(CM+4*i,4)}, v{vCa} offset:{u*512}")
def flush(O, u):
    for r in range(9):
        e(f"ds_add_f32 v{vOa}, v{O+r} offset:{u*OSTR + r*256}")
def vmw(n): e(f"s_waitcnt vmcnt({n})")
qc_reads(0)
vmw(23 + NYOUNG)
e("s_waitcnt lgkmcnt(0)")
mf32(S0, KF, QF, v(CM, 16))
stamp("K0")
a.raw(".p2align 6")
a.label("L_loop")
a.hist = []
a.strict = True
for u in range(2):
    O = (O0, O1)[u]; Oprev = (O1, O0)[u]
    for j in range(8):
        t = u * 8 + j
        Sc = (S0, S1)[t & 1]; Sn = (S1, S0)[t & 1]
        jn = (j + 1) & 7
        def ex(p):
            e(f"v_exp_f32 v{Sc+2*p}, v{Sc+2*p}")
            e(f"v_exp_f32 v{Sc+2*p+1}, v{Sc+2*p+1}")
        def cv(p): e(f"v_cvt_pk_bf16_f32 v{PP+p}, v{Sc+2*p}, v{Sc+2*p+1}")
        if u == 0 and j < 7: vmw(23 - 3 * jn + NYOUNG)
        if u == 0 and j == 7: vmw(NYOUNG)
        if j == 7: e("s_waitcnt lgkmcnt(0)")
        mf32(Sn, KF + 4 * jn, QF, v(CM, 16))
        ex(0)
        jp = (j - 1) & 7
        if j == 0: mf32(Oprev, VF + 8 * 7 + 4, PP + 4, v(Oprev, 16))
        else: mf32(O, VF + 8 * jp + 4, PP + 4, v(O, 16))
        ex(1); cv(0); ex(2); cv(1); ex(3); cv(2)
        if j == 6: qc_reads(u + 1)
        ex(4); cv(3); ex(5)
        mf32(O, VF + 8 * j, PP, "0" if j == 0 else v(O, 16))
        cv(4); ex(6); cv(5); ex(7); cv(6); cv(7)
        if j == 0:
            if u == 0:
                Ls = L("nofl")
                e(f"s_cmp_eq_u32 s{sIT}, 0")
                e(f"s_cbranch_scc1 {Ls}")
                e(f"v_subrev_u32 v{vOa}, {OSTR}, v{vOa}")
                flush(O1, 0)
                e(f"v_add_u32 v{vOa}, {OSTR}, v{vOa}")
                a.label(Ls)
            else:
                flush(O0, 0)
a.strict = False
e(f"v_add_u32 v{vQa}, 2048, v{vQa}")
e(f"v_add_u32 v{vCa}, 1024, v{vCa}")
e(f"v_add_u32 v{vOa}, {2*OSTR}, v{vOa}")
e(f"s_add_u32 s{sIT}, s{sIT}, 1")
e(f"s_cmp_eq_u32 s{sFB}, 0")
e("s_cbranch_scc0 L_nohook")
e(f"s_cmp_eq_u32 s{sIT}, 3")
e("s_cbranch_scc1 L_hook3")
e(f"s_cmp_eq_u32 s{sW}, 7")
e("s_cbranch_scc0 L_nohook")
e(f"s_cmp_eq_u32 s{sIT}, 1")
e("s_cbranch_scc1 L_hook1")
e(f"s_cmp_eq_u32 s{sIT}, 2")
e("s_cbranch_scc1 L_hook2")
a.label("L_nohook")
e(f"s_cmp_lt_u32 s{sIT}, 4")
e("s_cbranch_scc1 L_loop")
mf32(O1, VF + 8 * 7 + 4, PP + 4, v(O1, 16))
e(f"v_subrev_u32 v{vOa}, {OSTR}, v{vOa}")
e(f"s_lshl_b32 s{sA}, s{sTG}, 15")
e(f"s_lshl_b32 s{sB}, s{sHG}, 8")
e(f"s_add_u32 s{sA}, s{sA}, s{sB}")
e(f"s_lshl_b32 s{sB}, s{sW}, 5")
e(f"s_add_u32 s{sF}, s{sA}, s{sB}")
e(f"s_add_u32 s{sE}, s{sF}, 16384")
e(f"v_lshlrev_b32 v40, 10, v{vTK}")
e(f"v_lshl_add_u32 v40, v{vG}, 3, v40")
e(f"buffer_load_dwordx2 v[42:43], v40, {s(rX,4)}, s{sF} offen")
e(f"buffer_load_dwordx2 v[44:45], v40, {s(rX,4)}, s{sE} offen")
flush(O1, 0)
e(f"s_mul_i32 s{sA}, s{sW}, {OSTR}")
e(f"s_add_u32 s{sA}, s{sA}, {OB}")
e(f"v_add_u32 v46, s{sA}, v4")
e(f"v_add_u32 v47, {OB+8*256}, v4")
e("s_waitcnt vmcnt(2) lgkmcnt(0)")
e("s_barrier")
stamp("B8")
for r in range(0, 8, 2):
    e(f"ds_read2st64_b32 {v(S0+r,2)}, v46 offset0:{r} offset1:{r+1}")
e(f"ds_read_b32 v{S0+8}, v46 offset:2048")
for u in range(0, 8, 2):
    e(f"ds_read2st64_b32 {v(S1+u,2)}, v47 offset0:{u*9} offset1:{(u+1)*9}")
e(f"v_lshlrev_b32 v48, 2, v{vTK}")
e(f"v_add_u32 v48, {SCR+512}, v48")
e("ds_read2_b32 v[48:49], v48 offset0:0 offset1:16")
e("s_waitcnt lgkmcnt(0)")
e(f"v_min3_f32 v50, v{S1}, v{S1+1}, v{S1+2}")
e(f"v_min3_f32 v50, v50, v{S1+3}, v{S1+4}")
e(f"v_min3_f32 v50, v50, v{S1+5}, v{S1+6}")
e(f"v_min_f32 v50, v50, v{S1+7}")
e(f"v_rcp_f32 v51, v{S0+8}")
e(f"v_cmp_gt_f32 vcc, 0x{f2u(2.0**-80):08x}, v50")
e(f"s_cmp_eq_u32 s{sFB}, 0")
e("s_cbranch_scc0 L_nofb")
e("s_cmp_eq_u64 vcc, 0")
e("s_cbranch_scc0 L_fallback")
a.label("L_nofb")
for r in range(8): e(f"v_mul_f32 v{S0+r}, v{S0+r}, v51")
for r in range(4):
    e(f"v_cvt_pk_bf16_f32 v{52+r}, v{S0+2*r}, v{S0+2*r+1}")
for r in range(4): e(f"v_min_u32 v{52+r}, -2, v{52+r}")
e(f"s_lshl_b32 s{sA}, s{sTG}, 15")
e(f"s_lshl_b32 s{sB}, s{sW}, 10")
e(f"s_add_u32 s{sA}, s{sA}, s{sB}")
e(f"s_add_u32 s{sA}, s{sA}, {WS_O}")
e(f"s_lshl_b32 s{sB}, s{sHG}, 13")
e(f"s_add_u32 s{sB}, s{sB}, s{sA}")
e(f"buffer_store_dwordx4 v[52:55], v5, {s(rWS,4)}, s{sB} offen sc1")
stamp("opub")
for k in range(3):
    e(f"s_add_u32 s{sC}, s{sHG}, {k+1}")
    e(f"s_and_b32 s{sC}, s{sC}, 3")
    e(f"s_lshl_b32 s{96+k}, s{sC}, 13") if not cfg.stamps else e(f"s_lshl_b32 s{26+k}, s{sC}, 13")
OTH = 96 if not cfg.stamps else 26
e(f"v_lshrrev_b32 v62, 2, v{vTK}")
e(f"v_and_b32 v63, 3, v{vTK}")
e(f"v_and_b32 v56, 1, v{vG}")
e("v_lshl_or_b32 v56, v56, 2, v62")
e(f"v_lshrrev_b32 v57, 1, v{vG}")
e("v_lshl_add_u32 v57, v57, 4, v56")
e(f"v_xor_b32 v56, s{sW}, v56")
e("v_lshlrev_b32 v56, 5, v56")
e("v_lshl_add_u32 v56, v63, 3, v56")
e("v_lshl_add_u32 v56, v57, 8, v56")
e("v_add_u32 v57, 0x10000, v56")
WF = 64
for S in range(16):
    b = 56 if S < 8 else 57; o = (S & 7) * 8192
    e(f"ds_read_b64_tr_b16 {v(WF+4*S,2)}, v{b} offset:{o}")
    e(f"ds_read_b64_tr_b16 {v(WF+4*S+2,2)}, v{b} offset:{o+2048}")
e(f"s_lshl_b32 s{sB}, s{sW}, 10")
e(f"v_add_u32 v58, s{sB}, v5")
e(f"s_lshl_b32 s{sB}, s{sHG}, 13")
e(f"v_add_u32 v59, s{sB}, v58")
e("s_waitcnt lgkmcnt(0)")
e("s_barrier")
e("ds_write_b128 v59, v[52:55]")
e(f"s_mov_b32 s{sSPIN}, 0")
a.label("L_opoll")
for k in range(3):
    e(f"s_add_u32 s{sB}, s{sA}, s{OTH+k}")
    e(f"buffer_load_dwordx4 {v(S1+4*k,4)}, v5, {s(rWS,4)}, s{sB} offen sc1")
e(f"s_add_u32 s{sSPIN}, s{sSPIN}, 1")
e("s_waitcnt vmcnt(0)")
e(f"v_max3_u32 v60, v{S1}, v{S1+1}, v{S1+2}")
for r in range(3, 11, 2):
    e(f"v_max3_u32 v60, v60, v{S1+r}, v{S1+r+1}")
e(f"v_max_u32 v60, v60, v{S1+11}")
e("v_cmp_eq_u32 vcc, -1, v60")
e(f"s_cmp_gt_u32 s{sSPIN}, {cfg.spin}")
e("s_cbranch_scc1 L_opollout")
e("s_cmp_eq_u64 vcc, 0")
e("s_cbranch_scc0 L_opoll")
a.label("L_opollout")
for k in range(3):
    e(f"v_add_u32 v60, s{OTH+k}, v58")
    e(f"ds_write_b128 v60, {v(S1+4*k,4)}")
e(f"v_lshrrev_b32 v60, 1, v{vG}")
e("v_lshlrev_b32 v60, 10, v60")
e(f"v_and_b32 v61, 1, v{vG}")
e("v_lshl_add_u32 v60, v61, 9, v60")
e(f"v_lshl_add_u32 v60, v{vTK}, 4, v60")
e("s_waitcnt lgkmcnt(0)")
e("s_barrier")
stamp("ogath")
OFR = 128
def o_reads(S):
    for th in range(2):
        e(f"ds_read_b128 {v(OFR+8*(S%6)+4*th,4)}, v60 offset:{S*2048+th*256}")
for S in range(5): o_reads(S)
for S in range(16):
    left = min(S + 5, 16) - (S + 1)
    e(f"s_waitcnt lgkmcnt({2*left})")
    for th in range(2):
        mf16(O0 + 4 * th, WF + 4 * S, OFR + 8 * (S % 6) + 4 * th, "0" if S == 0 else v(O0 + 4 * th, 4))
    if S + 5 < 16: o_reads(S + 5)
e(f"s_cmp_eq_u32 s{sOWN}, 1")
e("s_cbranch_scc0 L_noy")
for k in range(1, NREP):
    for i in range(4): e(f"v_add_f32 v{8+i}, v{8+i}, v{8+4*k+i}")
e(f"v_mov_b32 v62, s{sR16}")
e("v_ashrrev_i32 v63, 31, v62")
e("v_not_b32 v63, v63")
e("v_or_b32 v63, 0x80000000, v63")
e("v_xor_b32 v62, v62, v63")
e("v_and_b32 v62, 0xffff0000, v62")
sigmoid(62)
round_bf16(62)
for i in range(4):
    round_bf16(8 + i)
    e(f"v_mul_f32 v{8+i}, v{8+i}, v62")
    round_bf16(8 + i)
a.label("L_noy")
e(f"s_and_b32 s{sA}, s{sSEL}, 31")
e(f"s_cmp_eq_u32 s{sOWN}, 1")
e(f"s_cselect_b32 s{sA}, s{sA}, 64")
for th in range(2):
    acc = O0 + 4 * th; xr = 42 + 2 * th; gt = 48 + th
    e(f"v_add_u32 v61, {16*th}, v{vTK}")
    e(f"v_cmp_eq_u32 vcc, s{sA}, v61")
    e(f"v_lshlrev_b32 v{S0}, 16, v{xr}")
    e(f"v_and_b32 v{S0+1}, 0xffff0000, v{xr}")
    e(f"v_lshlrev_b32 v{S0+2}, 16, v{xr+1}")
    e(f"v_and_b32 v{S0+3}, 0xffff0000, v{xr+1}")
    e(f"v_sub_f32 v62, 1.0, v{gt}")
    for i in range(4):
        e(f"v_cndmask_b32 v63, 0, v{8+i}, vcc")
        e(f"v_add_f32 v{S0+i}, v{S0+i}, v63")
        e(f"v_mul_f32 v{S0+i}, v{S0+i}, v62")
        e(f"v_fmac_f32 v{S0+i}, v{acc+i}, v{gt}")
    e(f"v_cvt_pk_bf16_f32 v{S0+4+2*th}, v{S0}, v{S0+1}")
    e(f"v_cvt_pk_bf16_f32 v{S0+5+2*th}, v{S0+2}, v{S0+3}")
    e(f"buffer_store_dwordx2 {v(S0+4+2*th,2)}, v40, {s(rOUT,4)}, s{(sF,sE)[th]} offen")
if cfg.stamps:
    stamp("stored")
    e("s_waitcnt vmcnt(0)")
    stamp("end")
    e(f"s_lshl_b32 s{sA}, s2, 3")
    e(f"s_add_u32 s{sA}, s{sA}, s{sW}")
    e(f"s_lshl_b32 s{sA}, s{sA}, 6")
    e(f"s_add_u32 s{sA}, s{sA}, {WS_STAMP}")
    e("v_mov_b32 v6, 0")
    for q in range(4):
        for i in range(4): e(f"v_mov_b32 v{8+i}, s{sST+4*q+i}")
        e(f"buffer_store_dwordx4 v[8:11], v6, {s(rWS,4)}, s{sA} offen offset:{16*q}")
        e("s_nop 1")
a.label("L_end")
e("s_endpgm")

a.label("L_hook1")
a.hist = []
e(f"s_cmp_eq_u32 s{sFV}, 1")
e("s_cbranch_scc0 L_hook1_wo")
e(f"v_lshrrev_b32 v8, 2, v{vTK}")
e(f"v_and_b32 v9, 3, v{vTK}")
e("v_lshrrev_b32 v6, 1, v9")
e(f"v_mul_u32_u24 v6, {F_U-F_G}, v6")
e("v_and_b32 v7, 1, v9")
e("v_lshl_add_u32 v6, v7, 3, v6")
e(f"v_lshl_add_u32 v7, v{vG}, 3, v8")
e("v_lshl_add_u32 v6, v7, 4, v6")
e(f"v_add_u32 v12, {F_G}, v6")
e(f"v_lshlrev_b32 v13, 4, v{vG}")
e(f"v_add_u32 v13, {F_X}, v13")
e("s_waitcnt vmcnt(0)")
def f_reads(S):
    w = 16 + 8 * (S % 5)
    e(f"ds_read_b64_tr_b16 {v(w,2)}, v12 offset:{S*512}")
    e(f"ds_read_b64_tr_b16 {v(w+2,2)}, v12 offset:{S*512+64}")
    e(f"ds_read_b128 {v(w+4,4)}, v13 offset:{S*64}")
for S in range(4): f_reads(S)
for S in range(16):
    left = min(S + 4, 16) - (S + 1)
    e(f"s_waitcnt lgkmcnt({3*left})")
    w = 16 + 8 * (S % 5)
    mf16(56, w, w + 4, "0" if S == 0 else v(56, 4))
    if S + 4 < 16: f_reads(S + 4)
e("v_mul_u32_u24 v6, 1088, v8")
e(f"v_lshl_add_u32 v6, v{vG}, 5, v6")
e("v_lshl_add_u32 v6, v9, 3, v6")
e(f"v_add_u32 v12, {F_D}, v6")
for J in range(8):
    e(f"ds_read_b64_tr_b16 {v(16+4*J,2)}, v12 offset:{J*128}")
    e(f"ds_read_b64_tr_b16 {v(18+4*J,2)}, v12 offset:{J*128+4*1088}")
for i in range(4):
    round_bf16(56 + i)
    e(f"v_mov_b32 v{48+i}, v{56+i}")
for i in range(4): e(f"v_permlane32_swap_b32 v{56+i}, v{48+i}")
for i in range(4):
    e(f"v_mov_b32 v{52+i}, v{56+i}")
    sigmoid(52 + i)
    e(f"v_mul_f32 v{56+i}, v{56+i}, v{52+i}")
    round_bf16(56 + i)
    e(f"v_mul_f32 v{56+i}, v{56+i}, v{48+i}")
e("v_cvt_pk_bf16_f32 v48, v56, v57")
e("v_cvt_pk_bf16_f32 v49, v58, v59")
e("v_mov_b32 v50, v48")
e("v_mov_b32 v51, v49")
e("v_permlane16_swap_b32 v48, v50")
e("v_permlane16_swap_b32 v49, v51")
e(f"v_cmp_eq_u32 vcc, v8, v{vG}")
for i in range(4): e(f"v_cndmask_b32 v{48+i}, 0, v{48+i}, vcc")
e("s_waitcnt lgkmcnt(0)")
e(f"s_and_b32 s{sA}, s2, {NREP-1}")
e(f"s_lshl_b32 s{sA}, s{sA}, 11")
e(f"s_add_u32 s{sA}, s{sA}, {WS_Y}")
for J in range(0, 8, 2):
    mf16(52, 48, 16 + 4 * J, "0")
    mf16(56, 48, 20 + 4 * J, "0")
    e(f"buffer_atomic_add_f32 v52, v4, {s(rWS,4)}, s{sA} offen offset:{J*256}")
    e(f"buffer_atomic_add_f32 v56, v4, {s(rWS,4)}, s{sA} offen offset:{J*256+256}")
a.label("L_hook1_wo")
e("v_xor_b32 v11, 128, v10")
for S in range(NWO, 16):
    for w in range(8):
        e(f"s_mov_b32 m0, {S*8192+w*1024}")
        e(f"s_mov_b32 s{sB}, {S*32768+w*4096}")
        dma(10 if (w & 1) else 11, rWO, f"s{sB}")
e("s_branch L_nohook")
a.label("L_hook2")
e(f"s_cmp_eq_u32 s{sFV}, 1")
e("s_cbranch_scc0 L_nohook")
e("s_waitcnt vmcnt(0)")
e("s_mov_b64 exec, 1")
e("v_mov_b32 v6, 0")
e("v_mov_b32 v7, 1")
e(f"s_mov_b32 s{sA}, {WS_CNT}")
e(f"buffer_atomic_add v7, v6, {s(rWS,4)}, s{sA} offen sc1")
e("s_mov_b64 exec, -1")
e("s_branch L_nohook")
a.label("L_hook3")
e(f"s_cmp_eq_u32 s{sOWN}, 1")
e("s_cbranch_scc0 L_nohook")
e("v_mov_b32 v6, 0")
e(f"s_mov_b32 s{sA}, {WS_CNT}")
e(f"s_mov_b32 s{sSPIN}, 0")
a.label("L_ypoll")
e(f"buffer_load_dword v7, v6, {s(rWS,4)}, s{sA} offen sc1")
e(f"s_add_u32 s{sSPIN}, s{sSPIN}, 1")
e("s_waitcnt vmcnt(0)")
e(f"v_readfirstlane_b32 s{sB}, v7")
e(f"s_cmp_gt_u32 s{sSPIN}, {cfg.spin}")
e("s_cbranch_scc1 L_ypollout")
e(f"s_cmp_eq_u32 s{sB}, 224")
e("s_cbranch_scc0 L_ypoll")
a.label("L_ypollout")
e(f"s_lshl_b32 s{sA}, s{sHG}, 9")
e(f"s_lshl_b32 s{sB}, s{sW}, 6")
e(f"s_add_u32 s{sA}, s{sA}, s{sB}")
e(f"s_add_u32 s{sA}, s{sA}, {WS_Y}")
e(f"v_lshlrev_b32 v6, 4, v{vG}")
for k in range(NREP):
    e(f"s_add_u32 s{sB}, s{sA}, {k*2048}")
    e(f"buffer_load_dwordx4 {v(8+4*k,4)}, v6, {s(rWS,4)}, s{sB} offen sc1")
e("s_branch L_nohook")
a.label("L_fallback")
a.hist = []
e(f"s_mov_b32 s{sFB}, 1")
e(f"s_lshl_b32 s{sA}, s{sW}, 9")
e(f"s_add_u32 s{sA}, s{sA}, {NEGB}")
e(f"v_lshlrev_b32 v50, 3, v{vL}")
e(f"v_add_u32 v50, s{sA}, v50")
e("v_mov_b32 v52, 0xff800000")
e("v_mov_b32 v53, 0xff800000")
e("ds_write_b64 v50, v[52:53]")
e(f"v_add_u32 v{vQa}, {QB}, v5")
e(f"v_add_u32 v{vCa}, {NEGB}, v255")
e(f"s_mov_b32 s{sIT}, 0")
e("s_waitcnt lgkmcnt(0)")
e("s_barrier")
a.label("L_fb_loop")
e(f"ds_read_b128 {v(QF,4)}, v{vQa}")
e("v_mov_b32 v54, 0xff800000")
e("s_waitcnt lgkmcnt(0)")
for j in range(8):
    mf32(S0, KF + 4 * j, QF, "0")
    for r in range(0, 16, 2):
        e(f"v_max3_f32 v54, v54, v{S0+r}, v{S0+r+1}")
for i in range(4): e(f"ds_max_f32 v{vCa}, v54 offset:{4*i}")
e(f"v_add_u32 v{vQa}, 1024, v{vQa}")
e(f"v_add_u32 v{vCa}, 512, v{vCa}")
e(f"s_add_u32 s{sIT}, s{sIT}, 1")
e(f"s_cmp_lt_u32 s{sIT}, 8")
e("s_cbranch_scc1 L_fb_loop")
e("s_waitcnt lgkmcnt(0)")
e("s_barrier")
e("ds_read_b64 v[52:53], v50")
e("s_waitcnt lgkmcnt(0)")
e("v_xor_b32 v52, 0x80000000, v52")
e("v_xor_b32 v53, 0x80000000, v53")
e("ds_write_b64 v50, v[52:53]")
e(f"v_lshl_or_b32 v54, s{sW}, 6, v{vL}")
for i in range(4): e(f"v_mov_b32 v{56+i}, 0")
e("v_lshlrev_b32 v55, 4, v54")
e(f"v_add_u32 v55, {OB}, v55")
e("ds_write_b128 v55, v[56:59]")
e("ds_write_b128 v55, v[56:59] offset:8192")
e("v_lshlrev_b32 v55, 2, v54")
e(f"v_add_u32 v55, {OB+16384}, v55")
e("ds_write_b32 v55, v56")
e("s_branch L_attn")

a.raw(f""".section .rodata,"a"
.p2align 6
.amdhsa_kernel {NAME}_kernel
  .amdhsa_next_free_vgpr 256
  .amdhsa_next_free_sgpr 102
  .amdhsa_accum_offset 256
  .amdhsa_group_segment_fixed_size 0
  .amdhsa_kernarg_size 112
  .amdhsa_user_sgpr_count 2
  .amdhsa_user_sgpr_kernarg_segment_ptr 1
  .amdhsa_system_sgpr_workgroup_id_x 1
.end_amdhsa_kernel""")
open(sys.argv[1], "w").write(a.text())
print("nops added:", a.nops_added, "stamps:", STAMPS)
```

```python
import sys, struct
from asmlib import Asm, v, s

NAME = "gated_mix__grouped_kv_mqa__moe_arch_mod__prompt"
def f2u(x): return struct.unpack("<I", struct.pack("<f", x))[0]

class Cfg:
    stamps = 0
    clk = 0
    force_fallback = 0
    spin = 0x40000
    prio = 1
    psleep = 2
    noffn = 0
    gearly = 0
    nup = 0
    xoe = 0
cfg = Cfg()
for a_ in sys.argv[2:]:
    k_, val_ = a_.split("=")
    assert hasattr(cfg, k_), k_
    setattr(cfg, k_, int(val_))

WS_K = 0; WS_V = 65536; WS_Y = 131072; WS_CNT = WS_Y + 32768; WS_O = 1 << 20; WS_STAMP = 4 << 20
WS_BYTES = 8 << 20
NREP = 8
KB = 1024
XB_ = 0; WB = 64 * KB; WKB = 124 * KB; QB = 128 * KB; SLD = 136 * KB; SLT = 152 * KB
RGB = 156 * KB; FMX = 156 * KB; SCR = 158 * KB
QN2 = SCR + 1024
FBF = SCR + 16
GOW = SCR + 20
GB_ = SCR + 512
FW = 3
FB = 96 * KB
F_G = 0; F_U = 8192 + 64; F_D = 16384 + 128; F_X = F_D + 8 * 1088
NWO = 12
CSCALE = 0.25 * 1.4426950408889634

sW = 3; sGR = 4; sHG = 5; sA = 6; sB = 7; sC = 8; sD = 9; sE = 10; sF = 11; sIT = 12; sFB = 13; sSEL = 14; sR16 = 15
pX, pWQ, pWK, pWV, pWO, pBX, pWR, pWG = 16, 18, 20, 22, 24, 26, 28, 30
pWU, pWD, pGW, pOUT, pDBG, pWS = 32, 34, 36, 38, 40, 42
rX, rWQ, rWO, rT1, rWS, rOUT, rDBG, rT2 = 44, 48, 52, 56, 60, 64, 68, 72
sF0 = 76; sFV = 77; sOWN = 78; sSPIN = 79; sOH = 80; sTH = 81; sTG = 82; sU = 83
sST = 84
vL = 1; vTK = 2; vG = 3; vL4 = 4; vL16 = 5
XA = 64; XBr = 128
KF = 64; V0 = 96; S0 = 128; S1 = 144; O0 = 160; O1 = 176; V1 = 192; CM = 224; PP = 240; QF = 248
vAd = 54; vAt = 59; vNq = 252

a = Asm()
e = a.e
STAMPS = []
def stamp(name, sets=(1,)):
    if not cfg.stamps: return
    if name not in ("entry", "K0", "loopend", "end") and cfg.stamps not in sets: return
    i = len(STAMPS)
    assert i < 16
    a.c(f"stamp {i}: {name}")
    e("s_memtime s[100:101]" if cfg.clk else "s_memrealtime s[100:101]")
    e("s_waitcnt lgkmcnt(0)")
    e(f"s_mov_b32 s{sST+i}, s100")
    STAMPS.append(name)

def srd(r, p, nbytes):
    e(f"s_mov_b32 s{r}, s{p}")
    e(f"s_mov_b32 s{r+1}, s{p+1}")
    e(f"s_mov_b32 s{r+2}, {nbytes}")
    e(f"s_mov_b32 s{r+3}, 0x20000")
def srd_sel(r, p1, p0, nbytes):
    e(f"s_cselect_b32 s{r}, s{p1}, s{p0}")
    e(f"s_cselect_b32 s{r+1}, s{p1+1}, s{p0+1}")
    e(f"s_mov_b32 s{r+2}, {nbytes}")
    e(f"s_mov_b32 s{r+3}, 0x20000")
def dma(voff, r, soff, off=0):
    o = f" offset:{off}" if off else ""
    e(f"buffer_load_dwordx4 v{voff}, {s(r,4)}, {soff} offen{o} lds")
def mf16(d, A, B, C):
    e(f"v_mfma_f32_16x16x32_bf16 {v(d,4)}, {v(A,4)}, {v(B,4)}, {C}")
def mf32(d, A, B, C):
    e(f"v_mfma_f32_32x32x16_bf16 {v(d,16)}, {v(A,4)}, {v(B,4)}, {C}")
def sum_over_g(x, t):
    e(f"v_mov_b32 v{t}, v{x}")
    e(f"v_permlane32_swap_b32 v{x}, v{t}")
    e(f"v_add_f32 v{x}, v{x}, v{t}")
    e(f"v_mov_b32 v{t}, v{x}")
    e(f"v_permlane16_swap_b32 v{x}, v{t}")
    e(f"v_add_f32 v{x}, v{x}, v{t}")
def round_bf16(x):
    e(f"v_cvt_pk_bf16_f32 v{x}, v{x}, v{x}")
    e(f"v_and_b32 v{x}, 0xffff0000, v{x}")
def sigmoid(x):
    e(f"v_mul_f32 v{x}, 0x{f2u(-1.4426950408889634):08x}, v{x}")
    e(f"v_exp_f32 v{x}, v{x}")
    e(f"v_add_f32 v{x}, 1.0, v{x}")
    e(f"v_rcp_f32 v{x}, v{x}")
uid = [0]
def L(p):
    uid[0] += 1
    return f"L_{p}_{uid[0]}"
def vmw(n): e(f"s_waitcnt vmcnt({n})")

def wq_steps(lo, hi):
    for S in range(lo, hi):
        e(f"s_add_u32 m0, s{sE}, {S*4096}")
        e(f"s_mov_b32 s{sA}, {S*32768}")
        dma(10, rWQ, f"s{sA}")

def arrive():
    Ld = L("arr")
    e("s_mov_b64 exec, 1")
    e(f"v_mov_b32 v20, {SCR}")
    e("v_mov_b32 v21, 1")
    e("ds_add_rtn_u32 v22, v20, v21")
    e("ds_read_b64 v[24:25], v20 offset:8")
    e(f"s_lshl_b32 s{sA}, s{sTG}, 2")
    e(f"v_mov_b32 v23, s{sA}")
    e("s_waitcnt lgkmcnt(0)")
    e(f"v_readfirstlane_b32 s{sA}, v22")
    e("v_lshrrev_b32 v24, 20, v24")
    e("v_add_u32 v24, 1, v24")
    e("v_min_u32 v24, 0x7ff, v24")
    e("v_and_b32 v25, 0xfffff800, v25")
    e("v_or_b32 v24, v24, v25")
    e(f"s_cmp_eq_u32 s{sA}, 5")
    e(f"s_cbranch_scc0 {Ld}")
    e(f"buffer_store_dword v24, v23, {s(rDBG,4)}, 0 offen sc1")
    a.label(Ld)
    e("s_mov_b64 exec, -1")

def zero_slots(t0):
    e(f"v_lshl_or_b32 v{t0+4}, s{sW}, 6, v{vL}")
    for i in range(4): e(f"v_mov_b32 v{t0+i}, 0")
    e(f"v_lshlrev_b32 v{t0+5}, 4, v{t0+4}")
    e(f"v_add_u32 v{t0+5}, {SLD}, v{t0+5}")
    e(f"ds_write_b128 v{t0+5}, {v(t0,4)}")
    e(f"ds_write_b128 v{t0+5}, {v(t0,4)} offset:8192")
    e(f"v_lshlrev_b32 v{t0+5}, 3, v{t0+4}")
    e(f"v_add_u32 v{t0+5}, {SLT}, v{t0+5}")
    e(f"ds_write_b64 v{t0+5}, {v(t0,2)}")

a.raw(f"""; fused gated-mix kernel: MQA attention (32 heads, d=16) + top-1 routed SwiGLU + sigmoid gate, one launch
; @launch grid=(256,1,1) block=(512,1,1) lds=163840
.amdgcn_target "amdgcn-amd-amdhsa--gfx950"
.text
.globl {NAME}_kernel
.p2align 8
.type {NAME}_kernel,@function
{NAME}_kernel:""")
e("s_cmp_ge_u32 s2, 256")
e("s_cbranch_scc1 L_end")
e("s_load_dwordx16 s[16:31], s[0:1], 0")
e("s_load_dwordx8 s[32:39], s[0:1], 64")
e("s_load_dwordx4 s[40:43], s[0:1], 96")
e(f"v_and_b32 v{vL}, 63, v0")
e("v_lshrrev_b32 v6, 6, v0")
e(f"v_and_b32 v{vTK}, 15, v0")
e(f"v_readfirstlane_b32 s{sW}, v6")
e(f"v_lshrrev_b32 v{vG}, 4, v{vL}")
e(f"v_lshlrev_b32 v{vL16}, 4, v{vL}")
e(f"v_lshlrev_b32 v{vL4}, 2, v{vL}")
e(f"s_and_b32 s{sA}, s2, 7")
e(f"s_lshr_b32 s{sHG}, s2, 5")
e(f"s_bfe_u32 s{sB}, s2, 0x20003")
e(f"s_lshl_b32 s{sGR}, s{sA}, 2")
e(f"s_add_u32 s{sGR}, s{sGR}, s{sB}")
e(f"s_and_b32 s{sOH}, s{sHG}, 1")
e(f"s_lshl_b32 s{sTG}, s{sGR}, 1")
e(f"s_add_u32 s{sTG}, s{sTG}, s{sOH}")
e(f"s_lshr_b32 s{sTH}, s{sW}, 2")
e(f"s_xor_b32 s{sTH}, s{sTH}, s{sOH}")
e(f"s_lshl_b32 s{sC}, s{sB}, 3")
e(f"s_add_u32 s{sC}, s{sC}, s{sA}")
e(f"s_cmp_lt_u32 s{sC}, 28")
e(f"s_cselect_b32 s{sFV}, {0 if cfg.noffn else 1}, 0")
e(f"s_lshl_b32 s{sC}, s{sC}, 6")
e(f"s_lshl_b32 s{sB}, s{sHG}, 3")
e(f"s_add_u32 s{sF0}, s{sC}, s{sB}")
e(f"s_mov_b32 s{sFB}, 0")
e("v_mov_b32 v10, 0")
e("v_mov_b32 v11, 0")
e(f"s_cmp_ge_u32 s{sW}, 4")
e("s_cbranch_scc1 L_ld_hi")
e(f"s_and_b32 s{sA}, s{sW}, 1")
e(f"s_lshl_b32 s{sA}, s{sA}, 7")
e(f"v_xor_b32 v6, s{sA}, v{vL16}")
e(f"s_lshl_b32 s{sC}, s{sW}, 13")
e(f"s_lshl_b32 s{sD}, s{sOH}, 15")
e(f"s_add_u32 s{sC}, s{sC}, s{sD}")
e(f"s_lshl_b32 s{sB}, s{sGR}, 16")
e("s_waitcnt lgkmcnt(0)")
stamp("entry")
srd(rX, pX, 2097152)
def x_dma(vb, sl, sg, st_):
    for i in range(8):
        if i % 4 == 0:
            e(f"s_add_u32 m0, s{sl}, {XB_ + (i>>2)*4096}")
            e(f"s_add_u32 s{st_}, s{sg}, m0")
        e(f"v_xor_b32 v7, {i<<4}, v{vb}")
        dma(7, rX, f"s{st_}", (i & 3) * 1024)
x_dma(6, sC, sB, sD)
e(f"v_lshlrev_b32 v8, 2, v{vTK}")
e("v_mov_b32 v12, 0")
e(f"v_add_u32 v8, {SCR}, v8")
e("ds_write_b32 v8, v12")
e("ds_write_b32 v8, v12 offset:1024")
e("ds_write_b32 v8, v12 offset:1088")
srd(rWS, pWS, WS_BYTES)
srd(rWQ, pWQ, 524288)
e(f"s_cmp_lt_u32 s{sHG}, 2")
e("s_cbranch_scc0 L_setup")
e(f"s_lshl_b32 s{sB}, s{sTG}, 2")
e(f"s_add_u32 s{sB}, s{sB}, s{sW}")
e(f"s_lshl_b32 s{sB}, s{sB}, 8")
e(f"s_add_u32 s{sB}, s{sB}, {WS_Y}")
e(f"buffer_store_dword v12, v{vL4}, {s(rWS,4)}, s{sB} offen sc1")
e("s_branch L_setup")
a.label("L_ld_hi")
e(f"s_sub_u32 s{sD}, s{sW}, 4")
e(f"s_and_b32 s{sA}, s{sD}, 1")
e(f"v_and_b32 v6, 16, v{vL}")
e("v_lshlrev_b32 v6, 3, v6")
e(f"v_xor_b32 v6, v6, v{vL16}")
e(f"s_lshl_b32 s{sB}, s{sA}, 7")
e(f"v_xor_b32 v11, s{sB}, v{vL16}")
e(f"s_lshl_b32 s{sB}, s{sA}, 13")
e(f"s_lshl_b32 s{sC}, s{sD}, 13")
e(f"s_lshl_b32 s{sSPIN}, s{sTH}, 15")
e(f"s_add_u32 s{sSPIN}, s{sSPIN}, s{sC}")
e(f"s_lshl_b32 s{sIT}, s{sGR}, 16")
e("s_waitcnt lgkmcnt(0)")
if cfg.stamps:
    STAMPS.pop(); stamp("entry")
srd(rX, pX, 2097152)
e(f"s_cmp_lt_u32 s{sHG}, 2")
e("s_cbranch_scc1 L_hi_kv")
x_dma(11, sSPIN, sIT, sF)
e("s_branch L_hi_nokv")
a.label("L_hi_kv")
e(f"s_cmp_ge_u32 s{sD}, 2")
srd_sel(rT2, pWV, pWK, 16384)
e(f"s_add_u32 m0, s{sC}, {WKB}")
for i in range(8):
    if i == 4:
        e(f"s_add_u32 m0, s{sC}, {WKB+4096}")
        e(f"s_add_u32 s{sB}, s{sB}, 4096")
    dma(6, rT2, f"s{sB}", (i & 3) * 1024)
a.label("L_hi_nokv")
e(f"s_lshl_b32 s{sB}, s{sA}, 10")
e(f"s_add_u32 m0, s{sB}, {RGB}")
e(f"s_cmp_eq_u32 s{sA}, 1")
srd_sel(rT1, pGW, pWR, 1024)
dma(vL16, rT1, "0")
srd(rWQ, pWQ, 524288)
e(f"s_lshl_b32 s{sA}, s{sA}, 2")
e(f"v_and_b32 v6, 1, v{vG}")
e("v_lshlrev_b32 v6, 1, v6")
e(f"v_or_b32 v6, s{sA}, v6")
e(f"v_and_b32 v7, 7, v{vL}")
e("v_xor_b32 v6, v6, v7")
e("v_lshlrev_b32 v6, 4, v6")
e(f"v_lshrrev_b32 v7, 3, v{vL}")
e("v_lshl_add_u32 v6, v7, 10, v6")
e(f"s_lshl_b32 s{sA}, s{sHG}, 7")
e(f"s_add_u32 s{sA}, s{sA}, s{sC}")
e(f"v_add_u32 v10, s{sA}, v6")
e(f"s_lshl_b32 s{sE}, s{sD}, 10")
e(f"s_add_u32 s{sE}, s{sE}, {WB}")
e(f"s_cmp_lt_u32 s{sHG}, 2")
e("s_cbranch_scc1 L_hi_p")
wq_steps(0, 16)
e("s_branch L_hi_q")
a.label("L_hi_p")
if cfg.xoe: x_dma(11, sSPIN, sIT, sF)
wq_steps(0, cfg.nup)
a.label("L_hi_q")
srd(rWS, pWS, WS_BYTES)
a.label("L_setup")
srd(rWO, pWO, 524288)
srd(rOUT, pOUT, 2097152)
srd(rDBG, pDBG, 256)
e(f"v_and_b32 v6, 11, v{vTK}")
e("v_cmp_eq_u32 vcc, 0, v6")
e("v_mov_b32 v7, 0x3f803f80")
e(f"v_cndmask_b32 v{V1}, 0, v7, vcc")
for i in range(1, 32): e(f"v_mov_b32 v{V1+i}, v{V1}")
e(f"s_and_b32 s{sA}, s{sW}, 3")
e(f"s_lshr_b32 s{sB}, s{sW}, 2")
e(f"v_lshlrev_b32 v6, 3, v{vL}")
for k in range(5):
    if k < 4:
        e(f"s_add_u32 s{sC}, s{sA}, {k}")
        e(f"s_and_b32 s{sC}, s{sC}, 3")
        e(f"s_lshl_b32 s{sD}, s{sB}, 2")
    else:
        e(f"s_add_u32 s{sC}, s{sA}, 2")
        e(f"s_and_b32 s{sC}, s{sC}, 3")
        e(f"s_xor_b32 s{sD}, s{sB}, 1")
        e(f"s_lshl_b32 s{sD}, s{sD}, 2")
    e(f"s_add_u32 s{sC}, s{sC}, s{sD}")
    e(f"s_lshl_b32 s{sD}, s{sC}, 11")
    e(f"s_add_u32 s{sD}, s{sD}, {SLD}")
    e(f"v_add_u32 v{vAd+k}, s{sD}, v{vL16}")
    e(f"s_lshl_b32 s{sD}, s{sC}, 9")
    e(f"s_add_u32 s{sD}, s{sD}, {SLT}")
    e(f"v_add_u32 v{vAt+k}, s{sD}, v6")
e(f"s_lshl_b32 s{sA}, s{sA}, 1")
for k in range(4):
    e(f"s_xor_b32 s{sC}, s{sB}, {k}")
    e(f"s_add_u32 s{sC}, s{sC}, s{sA}")
    e(f"s_and_b32 s{sC}, s{sC}, 7")
    e(f"s_lshl_b32 s{sC}, s{sC}, 10")
    e(f"s_add_u32 s{sC}, s{sC}, {QB}")
    e(f"v_add_u32 v{vNq+k}, s{sC}, v{vL16}")
e(f"s_xor_b32 s{sC}, s{sB}, 7")
e(f"s_add_u32 s{sC}, s{sC}, s{sA}")
e(f"s_and_b32 s{sU}, s{sC}, 7")
e(f"s_and_b32 s{sA}, s{sW}, 1")
e(f"s_lshl_b32 s{sB}, s{sA}, 14")
e(f"s_lshl_b32 s{sC}, s{sOH}, 15")
e(f"s_add_u32 s{sB}, s{sB}, s{sC}")
for q in range(4):
    e(f"v_add_u32 v6, {4*q}, v{vG}")
    e(f"v_xor_b32 v6, v6, v{vTK}")
    e("v_lshlrev_b32 v6, 4, v6")
    e(f"v_lshl_add_u32 v6, v{vTK}, 10, v6")
    e(f"v_add_u32 v{12+q}, s{sB}, v6")
e(f"v_lshrrev_b32 v8, 2, v{vTK}")
e(f"v_and_b32 v9, 3, v{vTK}")
e(f"s_lshr_b32 s{sA}, s{sW}, 1")
e(f"s_lshl_b32 s{sA}, s{sA}, 14")
e(f"s_add_u32 s{sA}, s{sA}, {WKB}")
e(f"v_and_b32 v6, 1, v{vG}")
e("v_lshlrev_b32 v6, 7, v6")
e(f"v_lshl_add_u32 v6, v{vG}, 8, v6")
e("v_lshl_add_u32 v6, v8, 5, v6")
e("v_lshl_add_u32 v6, v9, 3, v6")
e(f"v_add_u32 v16, s{sA}, v6")
e("v_xor_b32 v17, 128, v16")
e(f"v_and_b32 v6, 1, v{vTK}")
e("v_lshlrev_b32 v6, 10, v6")
e(f"v_lshl_add_u32 v6, v{vG}, 4, v6")
e(f"v_add_u32 v18, {RGB}, v6")
e(f"v_and_b32 v6, 1, v{vG}")
e("v_lshrrev_b32 v7, 1, v8")
e("v_lshl_or_b32 v6, v6, 1, v7")
e(f"s_and_b32 s{sA}, s{sW}, 3")
e(f"v_xor_b32 v6, s{sA}, v6")
e("v_lshlrev_b32 v6, 5, v6")
e("v_lshl_add_u32 v6, v9, 3, v6")
e(f"v_lshl_add_u32 v7, v{vG}, 3, v8")
e("v_lshl_add_u32 v6, v7, 7, v6")
e(f"v_add_u32 v26, {WB}, v6")
e(f"s_and_b32 s{sA}, s{sW}, 1")
e(f"s_lshl_b32 s{sA}, s{sA}, 4")
e(f"v_add_u32 v30, s{sA}, v{vTK}")
e(f"v_lshrrev_b32 v6, 1, v{vG}")
e("v_lshlrev_b32 v6, 9, v6")
e(f"v_and_b32 v7, 1, v{vG}")
e("v_lshl_add_u32 v6, v7, 3, v6")
e(f"s_and_b32 s{sA}, s{sW}, 3")
e(f"s_lshl_b32 s{sA}, s{sA}, 1")
e(f"s_add_u32 s{sA}, s{sA}, s{sTH}")
e(f"s_lshl_b32 s{sA}, s{sA}, 10")
e(f"s_add_u32 s{sA}, s{sA}, {QB}")
e(f"v_add_u32 v6, s{sA}, v6")
e("v_lshl_add_u32 v28, v30, 4, v6")
e("v_xor_b32 v29, 256, v28")
e("v_lshlrev_b32 v30, 2, v30")
e(f"v_add_u32 v30, {QN2}, v30")
e("v_xor_b32 v31, 64, v30")
e(f"v_and_b32 v6, 31, v{vL}")
e(f"v_lshrrev_b32 v7, 5, v{vL}")
e(f"v_lshlrev_b32 v{PP}, 5, v6")
e(f"v_lshl_add_u32 v{PP}, v7, 4, v{PP}")
e(f"v_lshlrev_b32 v{PP+2}, 2, v6")
e(f"v_add_u32 v{PP+2}, {QN2}, v{PP+2}")
e(f"v_add_u32 v{PP+3}, {SCR+256}, v{vL4}")
e(f"s_cmp_lt_u32 s{sHG}, 2")
e("s_cbranch_scc1 L_w_p")
e(f"s_cmp_ge_u32 s{sW}, 4")
e("s_cbranch_scc1 L_w_nh")
vmw(0)
a.label("L_w_nh")
vmw(16)
e("s_branch L_B1a")
a.label("L_w_p")
e(f"s_cmp_ge_u32 s{sW}, 4")
e("s_cbranch_scc1 L_w_ph")
vmw(1)
a.label("L_w_ph")
vmw(max(1, 8 * cfg.xoe + cfg.nup) if (cfg.xoe or cfg.nup) else 0)
a.label("L_B1a")
e("s_waitcnt lgkmcnt(0)")
e("s_barrier")
stamp("B1a")
def x_read(dst, S): e(f"ds_read_b128 {v(dst,4)}, v{12+(S&3)} offset:{(S>>2)*256}")
def rg_chain(xdst, publish):
    def rd(S):
        x_read(xdst(S), S)
        e(f"ds_read_b128 {v(32+4*(S%5),4)}, v18 offset:{S*64}")
    for S in range(4): rd(S)
    for S in range(16):
        left = min(S + 4, 16) - (S + 1)
        e(f"s_waitcnt lgkmcnt({2*left})")
        mf16(QF, 32 + 4 * (S % 5), xdst(S), "0" if S == 0 else v(QF, 4))
        if S + 4 < 16: rd(S + 4)
    e(f"s_and_b32 s{sA}, s{sW}, 1")
    e(f"s_lshl_b32 s{sA}, s{sA}, 4")
    e(f"v_add_u32 v6, s{sA}, v{vTK}")
    if publish:
        round_bf16(QF)
        e(f"v_ashrrev_i32 v19, 31, v{QF}")
        e("v_or_b32 v19, 0x80000000, v19")
        e(f"v_xor_b32 v19, v19, v{QF}")
        e("v_and_b32 v19, 0xffff0000, v19")
        e("v_lshl_or_b32 v19, v6, 11, v19")
        e(f"v_mov_b32 v21, {SCR}")
        e("ds_max_u32 v21, v19 offset:12")
    round_bf16(QF + 1)
    sigmoid(QF + 1)
    round_bf16(QF + 1)
    e("v_lshlrev_b32 v6, 2, v6")
    e(f"v_add_u32 v6, {GB_}, v6")
    e(f"ds_write_b32 v6, v{QF+1}")
e(f"s_cmp_ge_u32 s{sW}, 6")
e("s_cbranch_scc1 L_role_ld")
e(f"s_cmp_ge_u32 s{sW}, 4")
e("s_cbranch_scc1 L_role_rg")
e(f"s_cmp_lt_u32 s{sHG}, 2")
e("s_cbranch_scc0 L_role_none")
def kv_reads(S):
    x_read(XA + 4 * S, S)
    w = 32 + 4 * (S % 5)
    e(f"ds_read_b64_tr_b16 {v(w,2)}, v16 offset:{S*1024}")
    e(f"ds_read_b64_tr_b16 {v(w+2,2)}, v17 offset:{S*1024}")
def kv_chain(swap):
    for S in range(4): kv_reads(S)
    for S in range(16):
        left = min(S + 4, 16) - (S + 1)
        e(f"s_waitcnt lgkmcnt({3*left})")
        w = 32 + 4 * (S % 5)
        C = "0" if S == 0 else v(QF, 4)
        if swap: mf16(QF, XA + 4 * S, w, C)
        else: mf16(QF, w, XA + 4 * S, C)
        if S + 4 < 16: kv_reads(S + 4)
e(f"s_cmp_ge_u32 s{sW}, 2")
e("s_cbranch_scc1 L_role_v")
e(f"s_lshl_b32 s{sA}, s{sTG}, 10")
e(f"s_lshl_b32 s{sB}, s{sW}, 9")
e(f"s_add_u32 s{sA}, s{sA}, s{sB}")
e(f"v_lshlrev_b32 v6, 5, v{vTK}")
e(f"v_lshl_add_u32 v6, v{vG}, 3, v6")
kv_chain(False)
e(f"v_cvt_pk_bf16_f32 v20, v{QF}, v{QF+1}")
e(f"v_cvt_pk_bf16_f32 v21, v{QF+2}, v{QF+3}")
e(f"buffer_store_dwordx2 v[20:21], v6, {s(rWS,4)}, s{sA} offen sc1")
e(f"v_mul_f32 v22, v{QF}, v{QF}")
for i in range(1, 4): e(f"v_fmac_f32 v22, v{QF+i}, v{QF+i}")
sum_over_g(22, 23)
e(f"v_mov_b32 v23, {SCR}")
e("ds_max_u32 v23, v22 offset:8")
e("s_branch L_role_done")
a.label("L_role_v")
e(f"s_lshl_b32 s{sA}, s{sTG}, 10")
e(f"s_and_b32 s{sB}, s{sW}, 1")
e(f"s_lshl_b32 s{sB}, s{sB}, 8")
e(f"s_add_u32 s{sA}, s{sA}, s{sB}")
e(f"s_add_u32 s{sA}, s{sA}, {WS_V}")
e(f"v_and_b32 v6, 1, v{vG}")
e("v_lshlrev_b32 v6, 9, v6")
e(f"v_lshl_add_u32 v6, v{vTK}, 4, v6")
e(f"v_lshrrev_b32 v7, 1, v{vG}")
e("v_lshl_add_u32 v6, v7, 3, v6")
kv_chain(True)
e(f"v_cvt_pk_bf16_f32 v20, v{QF}, v{QF+1}")
e(f"v_cvt_pk_bf16_f32 v21, v{QF+2}, v{QF+3}")
e(f"buffer_store_dwordx2 v[20:21], v6, {s(rWS,4)}, s{sA} offen sc1")
e("s_branch L_role_done")
a.label("L_role_rg")
rg_chain(lambda S: XA + 4 * S, True)
e(f"s_cmp_lt_u32 s{sHG}, 2")
e("s_cbranch_scc0 L_role_ld")
arrive()
a.label("L_role_ld")
for q in range(4): e(f"v_xor_b32 v{12+q}, 0x8000, v{12+q}")
e(f"s_cmp_lt_u32 s{sHG}, 2")
e("s_cbranch_scc0 L_role_none")
if not cfg.xoe: x_dma(11, sSPIN, sIT, sF)
wq_steps(cfg.nup, 15)
vmw(15 - (0 if cfg.xoe else cfg.nup))
stamp("arrived")
e("s_barrier")
wq_steps(15, 16)
for S in range(16): x_read(XA + 4 * S, S)
for q in range(4): e(f"v_xor_b32 v{12+q}, 0x4000, v{12+q}")
for S in range(16): x_read(XBr + 4 * S, S)
e("s_branch L_B1b")
a.label("L_role_none")
for S in range(16): x_read(XA + 4 * S, S)
a.label("L_role_done")
for q in range(4): e(f"v_xor_b32 v{12+q}, 0x4000, v{12+q}")
for S in range(16): x_read(XBr + 4 * S, S)
e(f"s_cmp_lt_u32 s{sHG}, 2")
e("s_cbranch_scc0 L_noarr")
e("s_waitcnt vmcnt(0)")
arrive()
a.label("L_noarr")
if cfg.stamps == 1: STAMPS.pop()
stamp("arrived")
e("s_barrier")
a.label("L_B1b")
stamp("B1b")
zero_slots(32)
ACC0 = QF; ACC1 = PP + 4
def q_chunk(lo, hi, vm):
    e(f"s_waitcnt vmcnt({vm})")
    e("s_barrier")
    wreg = lambda S: (32, 36, 40, 44, 48, 20, CM, CM + 4, CM + 8, CM + 12)[S - lo]
    for S in range(lo, hi):
        w = wreg(S)
        e(f"ds_read_b64_tr_b16 {v(w,2)}, v26 offset:{S*4096}")
        e(f"ds_read_b64_tr_b16 {v(w+2,2)}, v26 offset:{S*4096+512}")
    for S in range(lo, hi):
        e(f"s_waitcnt lgkmcnt({min(15, 2*(hi-1-S))})")
        w = wreg(S)
        mf16(ACC0, w, XA + 4 * S, "0" if S == 0 else v(ACC0, 4))
        mf16(ACC1, w, XBr + 4 * S, "0" if S == 0 else v(ACC1, 4))
q_chunk(0, 8, 8)
q_chunk(8, 16, 0)
stamp("qdone")
e(f"s_mov_b32 s{sB}, 0x{f2u(CSCALE):08x}")
for hf, acc in ((0, ACC0), (1, ACC1)):
    for i in range(4): e(f"v_mul_f32 v{acc+i}, s{sB}, v{acc+i}")
    e(f"v_cvt_pk_bf16_f32 v{20+2*hf}, v{acc}, v{acc+1}")
    e(f"v_cvt_pk_bf16_f32 v{21+2*hf}, v{acc+2}, v{acc+3}")
    e(f"ds_write_b64 v{28+hf}, {v(20+2*hf,2)}")
    e(f"v_mul_f32 v{24+hf}, v{acc}, v{acc}")
    for i in range(1, 4): e(f"v_fmac_f32 v{24+hf}, v{acc+i}, v{acc+i}")
e("v_mov_b32 v6, v24")
e("v_mov_b32 v7, v25")
e("v_permlane32_swap_b32 v24, v6")
e("v_permlane32_swap_b32 v25, v7")
e("v_add_f32 v24, v24, v6")
e("v_add_f32 v25, v25, v7")
e("v_mov_b32 v6, v24")
e("v_mov_b32 v7, v25")
e("v_permlane16_swap_b32 v24, v6")
e("v_permlane16_swap_b32 v25, v7")
e("v_add_f32 v24, v24, v6")
e("v_add_f32 v25, v25, v7")
e("ds_max_u32 v30, v24")
e("ds_max_u32 v31, v25")
stamp("prepoll")
e(f"s_cmp_eq_u32 s{sW}, 0")
e("s_cbranch_scc0 L_nopoll")
e(f"s_mov_b32 s{sSPIN}, 0")
a.label("L_poll")
e(f"buffer_load_dword v6, v{vL4}, {s(rDBG,4)}, 0 offen sc1")
e(f"s_add_u32 s{sSPIN}, s{sSPIN}, 1")
e("s_waitcnt vmcnt(0)")
e("v_cmp_eq_u32 vcc, 0, v6")
e(f"s_cmp_gt_u32 s{sSPIN}, {cfg.spin}")
e("s_cbranch_scc1 L_pollout")
e("s_cmp_eq_u64 vcc, 0")
e("s_cbranch_scc1 L_pollout")
if cfg.psleep: e(f"s_sleep {cfg.psleep}")
e("s_branch L_poll")
a.label("L_pollout")
e(f"ds_write_b32 v{PP+3}, v6")
a.label("L_nopoll")
e(f"s_lshl_b32 s{sA}, s{sW}, 13")
e(f"s_add_u32 s{sB}, s{sA}, {WS_V}")
e(f"s_add_u32 s{sE}, s{sA}, 4096")
e(f"s_add_u32 s{sF}, s{sB}, 4096")
e("s_waitcnt lgkmcnt(0)")
e("s_barrier")
stamp("B6")
e(f"ds_read_b32 v6, v{PP+3}")
e(f"ds_read_b32 v19, v{PP+2}")
def kv_load(j):
    e(f"buffer_load_dwordx4 {v(KF+4*j,4)}, v{PP}, {s(rWS,4)}, s{sA if j<4 else sE} offen offset:{(j&3)*1024} sc1")
    e(f"buffer_load_dwordx4 {v(V0+4*j,4)}, v{vL16}, {s(rWS,4)}, s{sB if j<4 else sF} offen offset:{(j&3)*1024} sc1")
for j in range(4): kv_load(j)
e("s_waitcnt lgkmcnt(0)")
e("v_and_b32 v7, 0x7ff, v6")
e("v_and_b32 v6, 0xfffff800, v6")
e(f"v_or_b32 v6, v6, v{vL}")
e("v_sqrt_f32 v19, v19")
for m in ("row_shr:1 row_mask:0xf", "row_shr:2 row_mask:0xf", "row_shr:4 row_mask:0xf", "row_shr:8 row_mask:0xf",
          "row_bcast:15 row_mask:0xa", "row_bcast:31 row_mask:0xc"):
    e(f"v_max_u32_dpp v7, v7, v7 {m} bank_mask:0xf")
    e(f"v_max_u32_dpp v6, v6, v6 {m} bank_mask:0xf")
e(f"v_readlane_b32 s{sB}, v7, 63")
e(f"v_readlane_b32 s{sA}, v6, 63")
e(f"s_lshl_b32 s{sB}, s{sB}, 20")
e(f"v_sqrt_f32 v7, s{sB}")
e(f"v_mul_f32 v19, 0x{f2u(-1.02 * (8.0 if cfg.force_fallback else 1.0)):08x}, v19")
e(f"v_mul_f32 v{CM}, v7, v19")
for j in range(4, 8): kv_load(j)
for i in range(1, 16): e(f"v_mov_b32 v{CM+i}, v{CM}")
e(f"s_and_b32 s{sC}, s{sA}, 63")
e(f"s_cmp_eq_u32 s{sC}, s{sTG}")
e(f"s_cselect_b32 s{sOWN}, 1, 0")
e(f"s_lshl_b32 s{sC}, s{sC}, 5")
e(f"s_bfe_u32 s{sD}, s{sA}, 0x5000b")
e(f"s_add_u32 s{sSEL}, s{sC}, s{sD}")
e(f"s_and_b32 s{sR16}, s{sA}, 0xffff0000")
stamp("kviss")

a.label("L_attn")
e(f"ds_read_b128 {v(QF,4)}, v{vNq}")
e(f"v_mov_b32 v52, {GOW}")
e(f"s_mov_b32 s{sIT}, 0")
for r in range(10):
    e(f"v_mov_b32 v{O0+r}, 0")
e(f"s_cmp_eq_u32 s{sFB}, 0")
e("s_cbranch_scc0 L_fbc_0")
a.label("L_fbr_0")
if cfg.prio: e("s_setprio 3")
vmw(15)
e("s_waitcnt lgkmcnt(0)")
mf32(S0, KF, QF, v(CM, 16))
stamp("K0")
STUBS = []
a.strict = True
for st in range(8):
    O = (O0, O1)[st & 1]; Op = (O1, O0)[st & 1]
    k = st & 3
    for j in range(8):
        t = st * 8 + j
        Sc = (S0, S1)[t & 1]; Sn = (S1, S0)[t & 1]
        jn = (j + 1) & 7
        def ex(p):
            e(f"v_exp_f32 v{Sc+2*p}, v{Sc+2*p}")
            e(f"v_exp_f32 v{Sc+2*p+1}, v{Sc+2*p+1}")
        def cv(p): e(f"v_cvt_pk_bf16_f32 v{PP+p}, v{Sc+2*p}, v{Sc+2*p+1}")
        def init_reads():
            kk = k if st < 7 else 4
            e(f"ds_read_b64 {v(Op+8,2)}, v{vAt+kk}")
            e(f"ds_read_b128 {v(Op,4)}, v{vAd+kk}")
            e(f"ds_read_b128 {v(Op+4,4)}, v{vAd+kk} offset:1024")
            if st == 7: e("ds_read_b32 v53, v52")
        if j == 7:
            e("s_waitcnt lgkmcnt(0)")
            if st == 7: e(f"v_mul_u32_u24 v{Op+9}, v53, v{Op+9}")
            e(f"v_cmp_ne_u32 vcc, {st}, v{Op+9}")
            if st < 7:
                e(f"s_cmp_eq_u32 s{sFB}, 0")
                e(f"s_cbranch_scc0 L_fbc_{st+1}")
            else:
                e("s_nop 1")
            if st == 0:
                e(f"s_cmp_lt_u32 s{sW}, 4")
                e("s_cbranch_scc1 L_hook0")
            if st == 6: e("s_branch L_hook6")
            if st in (2, 4):
                e(f"s_cmp_eq_u32 s{sW}, {FW}")
                e(f"s_cbranch_scc1 L_hook{st}")
            a.label(f"L_fbr_{st+1}")
            e(f"s_cbranch_vccnz L_retry_{st}")
            a.label(f"L_ok_{st}")
            stamp(f"st{st}", (2,))
            STUBS.append((st, Op, k if st < 7 else 4))
            if cfg.prio and st in (1, 3, 5): e(f"s_setprio {3 - (st + 1) // 2}")
        def smf():
            if st == 0 and j < 7: vmw(15 - 2 * jn)
            if not (st == 7 and j == 7):
                mf32(Sn, KF + 4 * jn, QF, v(CM, 16))
        def pv1():
            if j == 0:
                if st > 0: mf32(Op, V1 + 4 * 7, PP + 4, v(Op, 16))
            else: mf32(O, V1 + 4 * (j - 1), PP + 4, v(O, 16))
        def side():
            if st == 0:
                if j == 6: vmw(0)
                Lsk = L("nosw")
                e(f"s_cmp_eq_u32 s{sFB}, 0")
                e(f"s_cbranch_scc0 {Lsk}")
                for jj in ([j] if j < 6 else [6, 7] if j == 6 else []):
                    for i in range(4): e(f"v_permlane16_swap_b32 v{V0+4*jj+i}, v{V1+4*jj+i}")
                a.label(Lsk)
            if j == 6 and st < 7:
                kn = (st + 1) & 3
                if st + 1 >= 4: e(f"v_xor_b32 v{vNq+kn}, 4096, v{vNq+kn}")
                e(f"ds_read_b128 {v(QF,4)}, v{vNq+kn}")
            if j == 5: init_reads()
        if t == 0:
            e("s_nop 7"); e("s_nop 3")
        ex(0); pv1(); ex(1); ex(2); cv(0); smf(); ex(3); cv(1); ex(4); cv(2); ex(5); cv(3); side(); ex(6)
        mf32(O, V0 + 4 * j, PP, v(O, 16))
        cv(4); ex(7); cv(5); cv(6); cv(7)
        if j == 0 and st > 0:
            kp = (st - 1) & 3
            e(f"v_mov_b32 v{Op+9}, {st}")
            e(f"ds_write_b128 v{vAd+kp}, {v(Op,4)}")
            e(f"ds_write_b128 v{vAd+kp}, {v(Op+4,4)} offset:1024")
            e(f"ds_write_b64 v{vAt+kp}, {v(Op+8,2)}")
a.strict = False
mf32(O1, V1 + 4 * 7, PP + 4, v(O1, 16))
if cfg.prio: e("s_setprio 3")
e(f"s_and_b32 s{sB}, s{sU}, 1")
e(f"s_lshl_b32 s{sB}, s{sB}, 15")
e(f"s_lshr_b32 s{sC}, s{sU}, 1")
e(f"s_lshl_b32 s{sC}, s{sC}, 10")
e(f"s_add_u32 s{sB}, s{sB}, s{sC}")
e(f"s_lshl_b32 s{sA}, s{sGR}, 16")
e(f"s_add_u32 s{sB}, s{sB}, s{sA}")
e(f"s_lshl_b32 s{sC}, s{sHG}, 12")
e(f"s_add_u32 s{sB}, s{sB}, s{sC}")
e(f"s_add_u32 s{sB}, s{sB}, {WS_O}")
stamp("loopend")
e(f"v_add_f32 v{O1+8}, v{O1+8}, v{O0+8}")
for r in range(8): e(f"v_add_f32 v{O1+r}, v{O1+r}, v{O0+r}")
e(f"v_rcp_f32 v51, v{O1+8}")
e(f"v_cmp_gt_f32 vcc, 0x{f2u(2.0**-80):08x}, v{O1+8}")
for r in range(8): e(f"v_mul_f32 v{O1+r}, v{O1+r}, v51")
for r in range(4):
    e(f"v_cvt_pk_bf16_f32 v{PP+r}, v{O1+2*r}, v{O1+2*r+1}")
for r in range(4): e(f"v_min_u32 v{PP+r}, -2, v{PP+r}")
e(f"s_cmp_eq_u32 s{sFB}, 0")
e("s_cbranch_scc0 L_pub")
e("s_cbranch_vccz L_pub")
e(f"v_mov_b32 v50, {FBF}")
e("v_mov_b32 v51, 1")
e("ds_write_b32 v50, v51")
e("s_branch L_nopub")
a.label("L_pub")
e(f"buffer_store_dwordx4 {v(PP,4)}, v{vL16}, {s(rWS,4)}, s{sB} offen sc1")
a.label("L_nopub")
stamp("opub")
e(f"s_lshl_b32 s{sF}, s{sTG}, 15")
e(f"s_lshl_b32 s{sD}, s{sW}, 12")
e(f"s_add_u32 s{sA}, s{sF}, s{sD}")
e(f"s_add_u32 s{sA}, s{sA}, {WS_O}")
e(f"s_lshr_b32 s{sB}, s{sHG}, 1")
e(f"s_lshl_b32 s{sB}, s{sB}, 8")
e(f"s_add_u32 s{sF}, s{sF}, s{sB}")
e(f"s_lshl_b32 s{sB}, s{sW}, 5")
e(f"s_add_u32 s{sF}, s{sF}, s{sB}")
e(f"s_add_u32 s{sE}, s{sF}, 16384")
e(f"v_lshlrev_b32 v40, 10, v{vTK}")
e(f"v_lshl_add_u32 v40, v{vG}, 3, v40")
e(f"buffer_load_dwordx2 v[42:43], v40, {s(rX,4)}, s{sF} offen")
e(f"buffer_load_dwordx2 v[44:45], v40, {s(rX,4)}, s{sE} offen")
def gather():
    for k in range(4):
        e(f"buffer_load_dwordx4 {v(S0+4*k,4)}, v{vL16}, {s(rWS,4)}, s{sA} offen offset:{k*1024} sc1")
T = CM
e(f"v_lshrrev_b32 v{T+2}, 2, v{vTK}")
e(f"v_and_b32 v{T+3}, 3, v{vTK}")
e(f"v_and_b32 v{T}, 1, v{vG}")
e(f"v_lshl_or_b32 v{T}, v{T}, 2, v{T+2}")
e(f"v_lshrrev_b32 v{T+1}, 1, v{vG}")
e(f"v_lshl_add_u32 v{T+1}, v{T+1}, 4, v{T}")
e(f"v_xor_b32 v{T}, s{sW}, v{T}")
e(f"v_lshlrev_b32 v{T}, 5, v{T}")
e(f"v_lshl_add_u32 v{T}, v{T+3}, 3, v{T}")
e(f"v_lshl_add_u32 v{T}, v{T+1}, 8, v{T}")
e(f"v_add_u32 v{T+1}, 0x10000, v{T}")
e(f"v_mov_b32 v50, {FBF}")
e(f"v_lshlrev_b32 v48, 2, v{vTK}")
e(f"v_add_u32 v48, {GB_}, v48")
e(f"v_add_u32 v46, s{sD}, v{vL16}")
e(f"v_lshrrev_b32 v{T+6}, 1, v{vG}")
e(f"v_lshlrev_b32 v{T+6}, 10, v{T+6}")
e(f"v_and_b32 v{T+7}, 1, v{vG}")
e(f"v_lshl_add_u32 v{T+6}, v{T+7}, 9, v{T+6}")
e(f"v_lshl_add_u32 v{T+6}, v{vTK}, 4, v{T+6}")
e("s_waitcnt vmcnt(3) lgkmcnt(0)")
e("s_barrier")
stamp("B8")
e("ds_read_b32 v51, v50")
e("ds_read2_b32 v[48:49], v48 offset0:0 offset1:16")
if cfg.gearly: gather()
e("s_waitcnt lgkmcnt(0)")
e(f"v_readfirstlane_b32 s{sC}, v51")
e(f"s_cmp_gt_u32 s{sC}, s{sFB}")
e("s_cbranch_scc1 L_fallback")
WF = 64
for S in range(16):
    b = T if S < 8 else T + 1; o = (S & 7) * 8192
    e(f"ds_read_b64_tr_b16 {v(WF+4*S,2)}, v{b} offset:{o}")
    e(f"ds_read_b64_tr_b16 {v(WF+4*S+2,2)}, v{b} offset:{o+2048}")
if not cfg.gearly: gather()
e(f"s_mov_b32 s{sSPIN}, 0")
e("s_waitcnt lgkmcnt(0)")
e("s_barrier")
a.label("L_opoll")
e("s_waitcnt vmcnt(0)")
e(f"v_max3_u32 v{T+8}, v{S0}, v{S0+1}, v{S0+2}")
for r in range(3, 15, 2):
    e(f"v_max3_u32 v{T+8}, v{T+8}, v{S0+r}, v{S0+r+1}")
e(f"v_max_u32 v{T+8}, v{T+8}, v{S0+15}")
e(f"v_cmp_eq_u32 vcc, -1, v{T+8}")
e(f"s_add_u32 s{sSPIN}, s{sSPIN}, 1")
e(f"s_cmp_gt_u32 s{sSPIN}, {cfg.spin}")
e("s_cbranch_scc1 L_opollout")
e("s_cbranch_vccz L_opollout")
gather()
e("s_branch L_opoll")
a.label("L_opollout")
for k in range(4):
    e(f"ds_write_b128 v46, {v(S0+4*k,4)} offset:{k*1024}")
if cfg.stamps == 1: e(f"s_mov_b32 s{sST+15}, s{sSPIN}")
e("s_waitcnt lgkmcnt(0)")
e("s_barrier")
stamp("ogath")
OFR = 128
AC = O1
def o_reads(S):
    for th in range(2):
        e(f"ds_read_b128 {v(OFR+8*(S%6)+4*th,4)}, v{T+6} offset:{S*2048+th*256}")
for S in range(5): o_reads(S)
for S in range(16):
    left = min(S + 5, 16) - (S + 1)
    e(f"s_waitcnt lgkmcnt({2*left})")
    for th in range(2):
        mf16(AC + 4 * th, WF + 4 * S, OFR + 8 * (S % 6) + 4 * th, "0" if S == 0 else v(AC + 4 * th, 4))
    if S + 5 < 16: o_reads(S + 5)
e(f"s_cmp_eq_u32 s{sOWN}, 1")
e("s_cbranch_scc0 L_noy")
for k in range(1, NREP):
    for i in range(4): e(f"v_add_f32 v{8+i}, v{8+i}, v{8+4*k+i}")
e(f"v_mov_b32 v52, s{sR16}")
e("v_ashrrev_i32 v53, 31, v52")
e("v_not_b32 v53, v53")
e("v_or_b32 v53, 0x80000000, v53")
e("v_xor_b32 v52, v52, v53")
e("v_and_b32 v52, 0xffff0000, v52")
sigmoid(52)
round_bf16(52)
for i in range(4):
    round_bf16(8 + i)
    e(f"v_mul_f32 v{8+i}, v{8+i}, v52")
    round_bf16(8 + i)
a.label("L_noy")
e(f"s_and_b32 s{sA}, s{sSEL}, 31")
e(f"s_cmp_eq_u32 s{sOWN}, 1")
e(f"s_cselect_b32 s{sA}, s{sA}, 64")
for th in range(2):
    acc = AC + 4 * th; xr = 42 + 2 * th; gt = 48 + th; X = V1
    e(f"v_add_u32 v51, {16*th}, v{vTK}")
    e(f"v_cmp_eq_u32 vcc, s{sA}, v51")
    e(f"v_lshlrev_b32 v{X}, 16, v{xr}")
    e(f"v_and_b32 v{X+1}, 0xffff0000, v{xr}")
    e(f"v_lshlrev_b32 v{X+2}, 16, v{xr+1}")
    e(f"v_and_b32 v{X+3}, 0xffff0000, v{xr+1}")
    e(f"v_sub_f32 v52, 1.0, v{gt}")
    for i in range(4):
        e(f"v_cndmask_b32 v53, 0, v{8+i}, vcc")
        e(f"v_add_f32 v{X+i}, v{X+i}, v53")
        e(f"v_mul_f32 v{X+i}, v{X+i}, v52")
        e(f"v_fmac_f32 v{X+i}, v{acc+i}, v{gt}")
    e(f"v_cvt_pk_bf16_f32 v{X+4+2*th}, v{X}, v{X+1}")
    e(f"v_cvt_pk_bf16_f32 v{X+5+2*th}, v{X+2}, v{X+3}")
    e(f"buffer_store_dwordx2 {v(X+4+2*th,2)}, v40, {s(rOUT,4)}, s{(sF,sE)[th]} offen")
if cfg.stamps:
    stamp("stored")
    e("s_waitcnt vmcnt(0)")
    stamp("end")
    e(f"s_lshl_b32 s{sA}, s2, 3")
    e(f"s_add_u32 s{sA}, s{sA}, s{sW}")
    e(f"s_lshl_b32 s{sA}, s{sA}, 6")
    e(f"s_add_u32 s{sA}, s{sA}, {WS_STAMP}")
    e("v_mov_b32 v6, 0")
    for q in range(4):
        for i in range(4): e(f"v_mov_b32 v{8+i}, s{sST+4*q+i}")
        e(f"buffer_store_dwordx4 v[8:11], v6, {s(rWS,4)}, s{sA} offen offset:{16*q}")
        e("s_nop 1")
a.label("L_end")
e("s_endpgm")

for st, Op, kk in STUBS:
    a.label(f"L_retry_{st}")
    a.hist = []
    e("s_sleep 1")
    e(f"s_add_u32 s{sIT}, s{sIT}, 1")
    e(f"s_cmp_gt_u32 s{sIT}, {cfg.spin*16}")
    e(f"s_cbranch_scc1 L_ok_{st}")
    e(f"ds_read_b64 {v(Op+8,2)}, v{vAt+kk}")
    e(f"ds_read_b128 {v(Op,4)}, v{vAd+kk}")
    e(f"ds_read_b128 {v(Op+4,4)}, v{vAd+kk} offset:1024")
    if st == 7: e("ds_read_b32 v53, v52")
    e("s_waitcnt lgkmcnt(0)")
    if st == 7: e(f"v_mul_u32_u24 v{Op+9}, v53, v{Op+9}")
    e(f"v_cmp_ne_u32 vcc, {st}, v{Op+9}")
    e("s_nop 4")
    e(f"s_cbranch_vccnz L_retry_{st}")
    e(f"s_branch L_ok_{st}")

a.label("L_hook0")
a.hist = []
e(f"s_and_b32 s{sA}, s{sW}, 1")
e(f"s_lshl_b32 s{sA}, s{sA}, 3")
e(f"v_lshlrev_b32 v10, 1, v{vG}")
e(f"v_or_b32 v10, s{sA}, v10")
e(f"v_xor_b32 v10, v10, v{vTK}")
e("v_lshlrev_b32 v10, 4, v10")
e(f"v_lshl_add_u32 v10, v{vG}, 10, v10")
e(f"s_lshr_b32 s{sA}, s{sHG}, 1")
e(f"s_lshl_b32 s{sA}, s{sA}, 8")
e(f"v_add_u32 v10, s{sA}, v10")
e(f"s_lshl_b32 s{sA}, s{sW}, 12")
e(f"s_lshl_b32 s{sE}, s{sW}, 10")
for S in range(2 * NWO):
    e(f"s_add_u32 m0, s{sE}, {S*4096}")
    e(f"s_add_u32 s{sB}, s{sA}, {S*16384}")
    dma(10, rWO, f"s{sB}")
e(f"s_cmp_eq_u32 s{sW}, {FW}")
e("s_cbranch_scc0 L_fbr_1")
for i in range(4): e(f"v_mov_b32 v{16+i}, -1")
e(f"s_lshl_b32 s{sB}, s{sGR}, 16")
e(f"s_lshl_b32 s{sC}, s{sHG}, 12")
e(f"s_add_u32 s{sB}, s{sB}, s{sC}")
e(f"s_add_u32 s{sB}, s{sB}, {WS_O}")
for i in range(8):
    if i == 4: e(f"s_add_u32 s{sB}, s{sB}, 32768")
    e(f"buffer_store_dwordx4 v[16:19], v{vL16}, {s(rWS,4)}, s{sB} offen offset:{(i&3)*1024} sc1")
e(f"s_cmp_eq_u32 s{sFV}, 1")
e("s_cbranch_scc0 L_fbr_1")
srd(rT1, pWD, 1792 * 1024)
e(f"s_lshl_b32 s{sA}, s{sF0}, 10")
for i in range(8):
    e(f"s_add_u32 s{sB}, s{sA}, {i*1024}")
    e(f"s_mov_b32 m0, {FB+F_D+i*1088}")
    dma(vL16, rT1, f"s{sB}")
e(f"s_lshl_b32 s{sB}, s{sSEL}, 10")
e(f"s_mov_b32 m0, {FB+F_X}")
dma(vL16, rX, f"s{sB}")
srd(rT1, pWG, 512 * 3584)
srd(rT2, pWU, 512 * 3584)
e(f"s_movk_i32 s{sA}, 3584")
e(f"v_mul_lo_u32 v12, v{vL}, s{sA}")
e(f"s_lshl_b32 s{sA}, s{sF0}, 1")
e(f"v_add_u32 v12, s{sA}, v12")
for i in range(8):
    e(f"s_mov_b32 s{sB}, {i*64*3584}")
    e(f"s_mov_b32 m0, {FB+F_G+i*1024}")
    dma(12, rT1, f"s{sB}")
    e(f"s_mov_b32 m0, {FB+F_U+i*1024}")
    dma(12, rT2, f"s{sB}")
e("s_branch L_fbr_1")
a.label("L_hook2")
a.hist = []
e(f"s_cmp_eq_u32 s{sFV}, 1")
e("s_cbranch_scc0 L_hook2_wo")
e("s_mov_b64 s[22:23], vcc")
e(f"v_lshrrev_b32 v8, 2, v{vTK}")
e(f"v_and_b32 v9, 3, v{vTK}")
e("v_lshrrev_b32 v6, 1, v9")
e(f"v_mul_u32_u24 v6, {F_U-F_G}, v6")
e("v_and_b32 v7, 1, v9")
e("v_lshl_add_u32 v6, v7, 3, v6")
e(f"v_lshl_add_u32 v7, v{vG}, 3, v8")
e("v_lshl_add_u32 v12, v7, 4, v6")
e(f"v_add_u32 v12, {FB}, v12")
e(f"v_lshlrev_b32 v13, 4, v{vG}")
e(f"v_add_u32 v13, {FB}, v13")
e("s_waitcnt vmcnt(0)")
def f_reads(S):
    w = 16 + 8 * (S % 4)
    e(f"ds_read_b64_tr_b16 {v(w,2)}, v12 offset:{F_G+S*512}")
    e(f"ds_read_b64_tr_b16 {v(w+2,2)}, v12 offset:{F_G+S*512+64}")
    e(f"ds_read_b128 {v(w+4,4)}, v13 offset:{F_X+S*64}")
for S in range(3): f_reads(S)
for S in range(16):
    left = min(S + 3, 16) - (S + 1)
    e(f"s_waitcnt lgkmcnt({3*left})")
    w = 16 + 8 * (S % 4)
    mf16(48, w, w + 4, "0" if S == 0 else v(48, 4))
    if S + 3 < 16: f_reads(S + 3)
e("v_mul_u32_u24 v6, 1088, v8")
e(f"v_lshl_add_u32 v6, v{vG}, 5, v6")
e("v_lshl_add_u32 v12, v9, 3, v6")
e(f"v_add_u32 v12, {FB}, v12")
def d_reads(J0):
    for J in range(J0, J0 + 4):
        e(f"ds_read_b64_tr_b16 {v(16+4*(J&3),2)}, v12 offset:{F_D+J*128}")
        e(f"ds_read_b64_tr_b16 {v(18+4*(J&3),2)}, v12 offset:{F_D+J*128+4*1088}")
d_reads(0)
for i in range(4):
    round_bf16(48 + i)
    e(f"v_mov_b32 v{32+i}, v{48+i}")
for i in range(4): e(f"v_permlane32_swap_b32 v{48+i}, v{32+i}")
for i in range(4):
    e(f"v_mov_b32 v{36+i}, v{48+i}")
    sigmoid(36 + i)
    e(f"v_mul_f32 v{48+i}, v{48+i}, v{36+i}")
    round_bf16(48 + i)
    e(f"v_mul_f32 v{48+i}, v{48+i}, v{32+i}")
e("v_cvt_pk_bf16_f32 v32, v48, v49")
e("v_cvt_pk_bf16_f32 v33, v50, v51")
e("v_mov_b32 v34, v32")
e("v_mov_b32 v35, v33")
e("v_permlane16_swap_b32 v32, v34")
e("v_permlane16_swap_b32 v33, v35")
e(f"v_cmp_eq_u32 vcc, v8, v{vG}")
for i in range(4): e(f"v_cndmask_b32 v{32+i}, 0, v{32+i}, vcc")
e(f"s_and_b32 s{sA}, s2, {NREP-1}")
e(f"s_lshl_b32 s{sA}, s{sA}, 11")
e(f"s_add_u32 s{sA}, s{sA}, {WS_Y}")
for J0 in (0, 4):
    e("s_waitcnt lgkmcnt(0)")
    for J in range(J0, J0 + 4):
        mf16(36 + 4 * (J & 3), 32, 16 + 4 * (J & 3), "0")
    if J0 == 0: d_reads(4)
    for J in range(J0, J0 + 4):
        e(f"buffer_atomic_add_f32 v{36+4*(J&3)}, v{vL4}, {s(rWS,4)}, s{sA} offen offset:{J*256}")
e("s_mov_b64 vcc, s[22:23]")
a.label("L_hook2_wo")
assert FW & 1
e("v_xor_b32 v11, 128, v10")
for S in range(NWO, 16):
    for w in range(8):
        e(f"s_mov_b32 m0, {S*8192+w*1024}")
        e(f"s_mov_b32 s{sB}, {S*32768+w*4096}")
        dma(10 if (w & 1) else 11, rWO, f"s{sB}")
e("s_branch L_fbr_3")
a.label("L_hook4")
e("s_waitcnt vmcnt(0)")
e("s_mov_b64 exec, 1")
e("v_mov_b32 v6, 0")
e("v_mov_b32 v7, 1")
e(f"s_mov_b32 s{sA}, {WS_CNT}")
e(f"buffer_atomic_add v7, v6, {s(rWS,4)}, s{sA} offen sc1")
e("s_mov_b64 exec, -1")
e("s_branch L_fbr_5")
a.label("L_hook6")
e(f"s_cmp_eq_u32 s{sOWN}, 1")
e("s_cbranch_scc1 L_hook6_go")
e(f"s_cmp_eq_u32 s{sW}, {FW}")
e("s_cbranch_scc0 L_fbr_7")
a.label("L_hook6_go")
e("v_mov_b32 v6, 0")
e(f"s_mov_b32 s{sA}, {WS_CNT}")
e(f"s_mov_b32 s{sSPIN}, 0")
a.label("L_ypoll")
e(f"buffer_load_dword v7, v6, {s(rWS,4)}, s{sA} offen sc1")
e(f"s_add_u32 s{sSPIN}, s{sSPIN}, 1")
e("s_waitcnt vmcnt(0)")
e(f"v_readfirstlane_b32 s{sB}, v7")
e(f"s_cmp_gt_u32 s{sSPIN}, {cfg.spin}")
e("s_cbranch_scc1 L_ypollout")
e(f"s_cmp_eq_u32 s{sB}, 256")
e("s_cbranch_scc0 L_ypoll")
a.label("L_ypollout")
e("v_mov_b32 v7, 1")
e("ds_write_b32 v52, v7")
e(f"s_cmp_eq_u32 s{sOWN}, 1")
e("s_cbranch_scc0 L_fbr_7")
e(f"s_lshr_b32 s{sA}, s{sHG}, 1")
e(f"s_lshl_b32 s{sA}, s{sA}, 9")
e(f"s_lshl_b32 s{sB}, s{sW}, 6")
e(f"s_add_u32 s{sA}, s{sA}, s{sB}")
e(f"s_add_u32 s{sA}, s{sA}, {WS_Y}")
e(f"v_lshlrev_b32 v6, 4, v{vG}")
for k in range(NREP):
    e(f"s_add_u32 s{sB}, s{sA}, {k*2048}")
    e(f"buffer_load_dwordx4 {v(8+4*k,4)}, v6, {s(rWS,4)}, s{sB} offen sc1")
e("s_branch L_fbr_7")
for st in range(8):
    a.label(f"L_fbc_{st}")
    a.hist = []
    e(f"v_subrev_u32 v40, {QB}, v{vNq+(st&3)}")
    e("v_lshrrev_b32 v40, 10, v40")
    e(f"v_and_b32 v41, 31, v{vL}")
    e("v_lshl_add_u32 v40, v40, 5, v41")
    e("v_lshlrev_b32 v40, 2, v40")
    e(f"v_add_u32 v40, {FMX}, v40")
    e("ds_read_b32 v41, v40")
    e("s_waitcnt lgkmcnt(0)")
    for i in range(16): e(f"v_sub_f32 v{CM+i}, 0, v41")
    e("s_nop 1")
    e(f"s_branch L_fbr_{st}")
a.label("L_fallback")
a.hist = []
e("s_waitcnt vmcnt(0)")
e(f"s_mov_b32 s{sFB}, 1")
e(f"v_lshl_or_b32 v40, s{sW}, 6, v{vL}")
e("v_and_b32 v40, 255, v40")
e("v_lshlrev_b32 v40, 2, v40")
e(f"v_add_u32 v40, {FMX}, v40")
e("v_mov_b32 v41, 0xff800000")
e("ds_write_b32 v40, v41")
zero_slots(44)
for k in range(4): e(f"v_xor_b32 v{vNq+k}, 4096, v{vNq+k}")
e(f"v_add_u32 v42, {QB}, v{vL16}")
e(f"v_and_b32 v43, 31, v{vL}")
e("v_lshlrev_b32 v43, 2, v43")
e(f"v_add_u32 v43, {FMX}, v43")
e(f"s_mov_b32 s{sIT}, 0")
e("s_waitcnt lgkmcnt(0)")
e("s_barrier")
a.label("L_fb_loop")
e(f"ds_read_b128 {v(QF,4)}, v42")
e("v_mov_b32 v41, 0xff800000")
e("s_waitcnt lgkmcnt(0)")
for j in range(8):
    mf32(S0, KF + 4 * j, QF, "0")
    for r in range(0, 16, 2):
        e(f"v_max3_f32 v41, v41, v{S0+r}, v{S0+r+1}")
e("ds_max_f32 v43, v41")
e("v_add_u32 v42, 1024, v42")
e("v_add_u32 v43, 128, v43")
e(f"s_add_u32 s{sIT}, s{sIT}, 1")
e(f"s_cmp_lt_u32 s{sIT}, 8")
e("s_cbranch_scc1 L_fb_loop")
e("s_waitcnt lgkmcnt(0)")
e("s_barrier")
e("s_branch L_attn")

a.raw(f""".section .rodata,"a"
.p2align 6
.amdhsa_kernel {NAME}_kernel
  .amdhsa_next_free_vgpr 256
  .amdhsa_next_free_sgpr 102
  .amdhsa_accum_offset 256
  .amdhsa_group_segment_fixed_size 0
  .amdhsa_kernarg_size 112
  .amdhsa_user_sgpr_count 2
  .amdhsa_user_sgpr_kernarg_segment_ptr 1
  .amdhsa_system_sgpr_workgroup_id_x 1
.end_amdhsa_kernel""")
open(sys.argv[1], "w").write(a.text())
print("nops added:", a.nops_added, "stamps:", STAMPS)
```

```python
import sys, struct
from asmlib import Asm, v, s

NAME = "gated_mix__grouped_kv_mqa__moe_arch_mod__prompt"
def f2u(x): return struct.unpack("<I", struct.pack("<f", x))[0]

class Cfg:
    stamps = 0
    clk = 0
    force_fallback = 0
    spin = 0x40000
    prio = 1
    psleep = 2
    noffn = 0
    dbgwg = -1
    dbgwave = 7
    gearly = 0
    nup = 0
    xoe = 0
cfg = Cfg()
for a_ in sys.argv[2:]:
    k_, val_ = a_.split("=")
    assert hasattr(cfg, k_), k_
    setattr(cfg, k_, int(val_))

WS_K = 0; WS_V = 65536; WS_Y = 131072; WS_CNT = WS_Y + 32768; WS_O = 1 << 20; WS_STAMP = 4 << 20
WS_BYTES = 8 << 20
NREP = 8
KB = 1024
XB_ = 0; WB = 64 * KB; WKB = 124 * KB; QB = 128 * KB; SLD = 136 * KB; SLT = 152 * KB
RGB = 156 * KB; FMX = 156 * KB; SCR = 158 * KB
QN2 = SCR + 1024
FBF = SCR + 16
GOW = SCR + 20
GB_ = SCR + 512
FW = 3
FB = 96 * KB
F_G = 0; F_U = 8192 + 64; F_D = 16384 + 128; F_X = F_D + 8 * 1088
NWO = 12
CSCALE = 0.25 * 1.4426950408889634

sW = 3; sGR = 4; sHG = 5; sA = 6; sB = 7; sC = 8; sD = 9; sE = 10; sF = 11; sIT = 12; sFB = 13; sSEL = 14; sR16 = 15
pX, pWQ, pWK, pWV, pWO, pBX, pWR, pWG = 16, 18, 20, 22, 24, 26, 28, 30
pWU, pWD, pGW, pOUT, pDBG, pWS = 32, 34, 36, 38, 40, 42
rX, rWQ, rWO, rT1, rWS, rOUT, rDBG, rT2 = 44, 48, 52, 56, 60, 64, 68, 72
sF0 = 76; sFV = 77; sOWN = 78; sSPIN = 79; sOH = 80; sTH = 81; sTG = 82; sU = 83
sST = 84
vL = 1; vTK = 2; vG = 3; vL4 = 4; vL16 = 5
XA = 64; XBr = 128
KF = 64; V0 = 96; S0 = 128; S1 = 144; O0 = 160; O1 = 176; V1 = 192; CM = 224; PP = 240; QF = 248
vAd = 54; vAt = 59; vNq = 252

a = Asm()
e = a.e
STAMPS = []
def stamp(name, sets=(1,)):
    if not cfg.stamps: return
    if name not in ("entry", "K0", "loopend", "end") and cfg.stamps not in sets: return
    i = len(STAMPS)
    assert i < 16
    a.c(f"stamp {i}: {name}")
    e("s_memtime s[100:101]" if cfg.clk else "s_memrealtime s[100:101]")
    e("s_waitcnt lgkmcnt(0)")
    e(f"s_mov_b32 s{sST+i}, s100")
    STAMPS.append(name)

def srd(r, p, nbytes):
    e(f"s_mov_b32 s{r}, s{p}")
    e(f"s_mov_b32 s{r+1}, s{p+1}")
    e(f"s_mov_b32 s{r+2}, {nbytes}")
    e(f"s_mov_b32 s{r+3}, 0x20000")
def srd_sel(r, p1, p0, nbytes):
    e(f"s_cselect_b32 s{r}, s{p1}, s{p0}")
    e(f"s_cselect_b32 s{r+1}, s{p1+1}, s{p0+1}")
    e(f"s_mov_b32 s{r+2}, {nbytes}")
    e(f"s_mov_b32 s{r+3}, 0x20000")
def dma(voff, r, soff, off=0):
    o = f" offset:{off}" if off else ""
    e(f"buffer_load_dwordx4 v{voff}, {s(r,4)}, {soff} offen{o} lds")
def mf16(d, A, B, C):
    e(f"v_mfma_f32_16x16x32_bf16 {v(d,4)}, {v(A,4)}, {v(B,4)}, {C}")
def mf32(d, A, B, C):
    e(f"v_mfma_f32_32x32x16_bf16 {v(d,16)}, {v(A,4)}, {v(B,4)}, {C}")
def sum_over_g(x, t):
    e(f"v_mov_b32 v{t}, v{x}")
    e(f"v_permlane32_swap_b32 v{x}, v{t}")
    e(f"v_add_f32 v{x}, v{x}, v{t}")
    e(f"v_mov_b32 v{t}, v{x}")
    e(f"v_permlane16_swap_b32 v{x}, v{t}")
    e(f"v_add_f32 v{x}, v{x}, v{t}")
def round_bf16(x):
    e(f"v_cvt_pk_bf16_f32 v{x}, v{x}, v{x}")
    e(f"v_and_b32 v{x}, 0xffff0000, v{x}")
def sigmoid(x):
    e(f"v_mul_f32 v{x}, 0x{f2u(-1.4426950408889634):08x}, v{x}")
    e(f"v_exp_f32 v{x}, v{x}")
    e(f"v_add_f32 v{x}, 1.0, v{x}")
    e(f"v_rcp_f32 v{x}, v{x}")
uid = [0]
def L(p):
    uid[0] += 1
    return f"L_{p}_{uid[0]}"
def vmw(n): e(f"s_waitcnt vmcnt({n})")

def wq_steps(lo, hi):
    for S in range(lo, hi):
        e(f"s_add_u32 m0, s{sE}, {S*4096}")
        e(f"s_mov_b32 s{sA}, {S*32768}")
        dma(10, rWQ, f"s{sA}")

def arrive():
    Ld = L("arr")
    e("s_mov_b64 exec, 1")
    e(f"v_mov_b32 v20, {SCR}")
    e("v_mov_b32 v21, 1")
    e("ds_add_rtn_u32 v22, v20, v21")
    e("ds_read_b64 v[24:25], v20 offset:8")
    e(f"s_lshl_b32 s{sA}, s{sTG}, 2")
    e(f"v_mov_b32 v23, s{sA}")
    e("s_waitcnt lgkmcnt(0)")
    e(f"v_readfirstlane_b32 s{sA}, v22")
    e("v_lshrrev_b32 v24, 20, v24")
    e("v_add_u32 v24, 1, v24")
    e("v_min_u32 v24, 0x7ff, v24")
    e("v_and_b32 v25, 0xfffff800, v25")
    e("v_or_b32 v24, v24, v25")
    e(f"s_cmp_eq_u32 s{sA}, 5")
    e(f"s_cbranch_scc0 {Ld}")
    e(f"buffer_store_dword v24, v23, {s(rDBG,4)}, 0 offen sc1")
    a.label(Ld)
    e("s_mov_b64 exec, -1")

def zero_slots(t0):
    e(f"v_lshl_or_b32 v{t0+4}, s{sW}, 6, v{vL}")
    for i in range(4): e(f"v_mov_b32 v{t0+i}, 0")
    e(f"v_lshlrev_b32 v{t0+5}, 4, v{t0+4}")
    e(f"v_add_u32 v{t0+5}, {SLD}, v{t0+5}")
    e(f"ds_write_b128 v{t0+5}, {v(t0,4)}")
    e(f"ds_write_b128 v{t0+5}, {v(t0,4)} offset:8192")
    e(f"v_lshlrev_b32 v{t0+5}, 3, v{t0+4}")
    e(f"v_add_u32 v{t0+5}, {SLT}, v{t0+5}")
    e(f"ds_write_b64 v{t0+5}, {v(t0,2)}")

a.raw(f"""; fused gated-mix kernel: MQA attention (32 heads, d=16) + top-1 routed SwiGLU + sigmoid gate, one launch
; @launch grid=(256,1,1) block=(512,1,1) lds=163840
.amdgcn_target "amdgcn-amd-amdhsa--gfx950"
.text
.globl {NAME}_kernel
.p2align 8
.type {NAME}_kernel,@function
{NAME}_kernel:""")
e("s_cmp_ge_u32 s2, 256")
e("s_cbranch_scc1 L_end")
e("s_load_dwordx16 s[16:31], s[0:1], 0")
e("s_load_dwordx8 s[32:39], s[0:1], 64")
e("s_load_dwordx4 s[40:43], s[0:1], 96")
e(f"v_and_b32 v{vL}, 63, v0")
e("v_lshrrev_b32 v6, 6, v0")
e(f"v_and_b32 v{vTK}, 15, v0")
e(f"v_readfirstlane_b32 s{sW}, v6")
e(f"v_lshrrev_b32 v{vG}, 4, v{vL}")
e(f"v_lshlrev_b32 v{vL16}, 4, v{vL}")
e(f"v_lshlrev_b32 v{vL4}, 2, v{vL}")
e(f"s_and_b32 s{sA}, s2, 7")
e(f"s_lshr_b32 s{sHG}, s2, 5")
e(f"s_bfe_u32 s{sB}, s2, 0x20003")
e(f"s_lshl_b32 s{sGR}, s{sA}, 2")
e(f"s_add_u32 s{sGR}, s{sGR}, s{sB}")
e(f"s_and_b32 s{sOH}, s{sHG}, 1")
e(f"s_lshl_b32 s{sTG}, s{sGR}, 1")
e(f"s_add_u32 s{sTG}, s{sTG}, s{sOH}")
e(f"s_lshr_b32 s{sTH}, s{sW}, 2")
e(f"s_xor_b32 s{sTH}, s{sTH}, s{sOH}")
e(f"s_lshl_b32 s{sC}, s{sB}, 3")
e(f"s_add_u32 s{sC}, s{sC}, s{sA}")
e(f"s_cmp_lt_u32 s{sC}, 28")
e(f"s_cselect_b32 s{sFV}, {0 if cfg.noffn else 1}, 0")
e(f"s_lshl_b32 s{sC}, s{sC}, 6")
e(f"s_lshl_b32 s{sB}, s{sHG}, 3")
e(f"s_add_u32 s{sF0}, s{sC}, s{sB}")
e(f"s_mov_b32 s{sFB}, 0")
e("v_mov_b32 v10, 0")
e("v_mov_b32 v11, 0")
e(f"s_cmp_ge_u32 s{sW}, 4")
e("s_cbranch_scc1 L_ld_hi")
e(f"s_and_b32 s{sA}, s{sW}, 1")
e(f"s_lshl_b32 s{sA}, s{sA}, 7")
e(f"v_xor_b32 v6, s{sA}, v{vL16}")
e(f"s_lshl_b32 s{sC}, s{sW}, 13")
e(f"s_lshl_b32 s{sD}, s{sOH}, 15")
e(f"s_add_u32 s{sC}, s{sC}, s{sD}")
e(f"s_lshl_b32 s{sB}, s{sGR}, 16")
e("s_waitcnt lgkmcnt(0)")
stamp("entry")
srd(rX, pX, 2097152)
def x_dma(vb, sl, sg, st_):
    for i in range(8):
        if i % 4 == 0:
            e(f"s_add_u32 m0, s{sl}, {XB_ + (i>>2)*4096}")
            e(f"s_add_u32 s{st_}, s{sg}, m0")
        e(f"v_xor_b32 v7, {i<<4}, v{vb}")
        dma(7, rX, f"s{st_}", (i & 3) * 1024)
x_dma(6, sC, sB, sD)
e(f"v_lshlrev_b32 v8, 2, v{vTK}")
e("v_mov_b32 v12, 0")
e(f"v_add_u32 v8, {SCR}, v8")
e("ds_write_b32 v8, v12")
e("ds_write_b32 v8, v12 offset:1024")
e("ds_write_b32 v8, v12 offset:1088")
srd(rWS, pWS, WS_BYTES)
srd(rWQ, pWQ, 524288)
e(f"s_cmp_lt_u32 s{sHG}, 2")
e("s_cbranch_scc0 L_setup")
e(f"s_lshl_b32 s{sB}, s{sTG}, 2")
e(f"s_add_u32 s{sB}, s{sB}, s{sW}")
e(f"s_lshl_b32 s{sB}, s{sB}, 8")
e(f"s_add_u32 s{sB}, s{sB}, {WS_Y}")
e(f"buffer_store_dword v12, v{vL4}, {s(rWS,4)}, s{sB} offen sc1")
e("s_branch L_setup")
a.label("L_ld_hi")
e(f"s_sub_u32 s{sD}, s{sW}, 4")
e(f"s_and_b32 s{sA}, s{sD}, 1")
e(f"v_and_b32 v6, 16, v{vL}")
e("v_lshlrev_b32 v6, 3, v6")
e(f"v_xor_b32 v6, v6, v{vL16}")
e(f"s_lshl_b32 s{sB}, s{sA}, 7")
e(f"v_xor_b32 v11, s{sB}, v{vL16}")
e(f"s_lshl_b32 s{sB}, s{sA}, 13")
e(f"s_lshl_b32 s{sC}, s{sD}, 13")
e(f"s_lshl_b32 s{sSPIN}, s{sTH}, 15")
e(f"s_add_u32 s{sSPIN}, s{sSPIN}, s{sC}")
e(f"s_lshl_b32 s{sIT}, s{sGR}, 16")
e("s_waitcnt lgkmcnt(0)")
if cfg.stamps:
    STAMPS.pop(); stamp("entry")
srd(rX, pX, 2097152)
e(f"s_cmp_lt_u32 s{sHG}, 2")
e("s_cbranch_scc1 L_hi_kv")
x_dma(11, sSPIN, sIT, sF)
e("s_branch L_hi_nokv")
a.label("L_hi_kv")
e(f"s_cmp_ge_u32 s{sD}, 2")
srd_sel(rT2, pWV, pWK, 16384)
e(f"s_add_u32 m0, s{sC}, {WKB}")
for i in range(8):
    if i == 4:
        e(f"s_add_u32 m0, s{sC}, {WKB+4096}")
        e(f"s_add_u32 s{sB}, s{sB}, 4096")
    dma(6, rT2, f"s{sB}", (i & 3) * 1024)
a.label("L_hi_nokv")
e(f"s_lshl_b32 s{sB}, s{sA}, 10")
e(f"s_add_u32 m0, s{sB}, {RGB}")
e(f"s_cmp_eq_u32 s{sA}, 1")
srd_sel(rT1, pGW, pWR, 1024)
dma(vL16, rT1, "0")
srd(rWQ, pWQ, 524288)
e(f"s_lshl_b32 s{sA}, s{sA}, 2")
e(f"v_and_b32 v6, 1, v{vG}")
e("v_lshlrev_b32 v6, 1, v6")
e(f"v_or_b32 v6, s{sA}, v6")
e(f"v_and_b32 v7, 7, v{vL}")
e("v_xor_b32 v6, v6, v7")
e("v_lshlrev_b32 v6, 4, v6")
e(f"v_lshrrev_b32 v7, 3, v{vL}")
e("v_lshl_add_u32 v6, v7, 10, v6")
e(f"s_lshl_b32 s{sA}, s{sHG}, 7")
e(f"s_add_u32 s{sA}, s{sA}, s{sC}")
e(f"v_add_u32 v10, s{sA}, v6")
e(f"s_lshl_b32 s{sE}, s{sD}, 10")
e(f"s_add_u32 s{sE}, s{sE}, {WB}")
e(f"s_cmp_lt_u32 s{sHG}, 2")
e("s_cbranch_scc1 L_hi_p")
wq_steps(0, 16)
e("s_branch L_hi_q")
a.label("L_hi_p")
if cfg.xoe: x_dma(11, sSPIN, sIT, sF)
wq_steps(0, cfg.nup)
a.label("L_hi_q")
srd(rWS, pWS, WS_BYTES)
a.label("L_setup")
srd(rWO, pWO, 524288)
srd(rOUT, pOUT, 2097152)
srd(rDBG, pDBG, 256)
e(f"v_and_b32 v6, 11, v{vTK}")
e("v_cmp_eq_u32 vcc, 0, v6")
e("v_mov_b32 v7, 0x3f803f80")
e(f"v_cndmask_b32 v{V1}, 0, v7, vcc")
for i in range(1, 32): e(f"v_mov_b32 v{V1+i}, v{V1}")
e(f"s_and_b32 s{sA}, s{sW}, 3")
e(f"s_lshr_b32 s{sB}, s{sW}, 2")
e(f"v_lshlrev_b32 v6, 3, v{vL}")
for k in range(5):
    if k < 4:
        e(f"s_add_u32 s{sC}, s{sA}, {k}")
        e(f"s_and_b32 s{sC}, s{sC}, 3")
        e(f"s_lshl_b32 s{sD}, s{sB}, 2")
    else:
        e(f"s_add_u32 s{sC}, s{sA}, 2")
        e(f"s_and_b32 s{sC}, s{sC}, 3")
        e(f"s_xor_b32 s{sD}, s{sB}, 1")
        e(f"s_lshl_b32 s{sD}, s{sD}, 2")
    e(f"s_add_u32 s{sC}, s{sC}, s{sD}")
    e(f"s_lshl_b32 s{sD}, s{sC}, 11")
    e(f"s_add_u32 s{sD}, s{sD}, {SLD}")
    e(f"v_add_u32 v{vAd+k}, s{sD}, v{vL16}")
    e(f"s_lshl_b32 s{sD}, s{sC}, 9")
    e(f"s_add_u32 s{sD}, s{sD}, {SLT}")
    e(f"v_add_u32 v{vAt+k}, s{sD}, v6")
e(f"s_lshl_b32 s{sA}, s{sA}, 1")
for k in range(4):
    e(f"s_xor_b32 s{sC}, s{sB}, {k}")
    e(f"s_add_u32 s{sC}, s{sC}, s{sA}")
    e(f"s_and_b32 s{sC}, s{sC}, 7")
    e(f"s_lshl_b32 s{sC}, s{sC}, 10")
    e(f"s_add_u32 s{sC}, s{sC}, {QB}")
    e(f"v_add_u32 v{vNq+k}, s{sC}, v{vL16}")
e(f"s_xor_b32 s{sC}, s{sB}, 7")
e(f"s_add_u32 s{sC}, s{sC}, s{sA}")
e(f"s_and_b32 s{sU}, s{sC}, 7")
e(f"s_and_b32 s{sA}, s{sW}, 1")
e(f"s_lshl_b32 s{sB}, s{sA}, 14")
e(f"s_lshl_b32 s{sC}, s{sOH}, 15")
e(f"s_add_u32 s{sB}, s{sB}, s{sC}")
for q in range(4):
    e(f"v_add_u32 v6, {4*q}, v{vG}")
    e(f"v_xor_b32 v6, v6, v{vTK}")
    e("v_lshlrev_b32 v6, 4, v6")
    e(f"v_lshl_add_u32 v6, v{vTK}, 10, v6")
    e(f"v_add_u32 v{12+q}, s{sB}, v6")
e(f"v_lshrrev_b32 v8, 2, v{vTK}")
e(f"v_and_b32 v9, 3, v{vTK}")
e(f"s_lshr_b32 s{sA}, s{sW}, 1")
e(f"s_lshl_b32 s{sA}, s{sA}, 14")
e(f"s_add_u32 s{sA}, s{sA}, {WKB}")
e(f"v_and_b32 v6, 1, v{vG}")
e("v_lshlrev_b32 v6, 7, v6")
e(f"v_lshl_add_u32 v6, v{vG}, 8, v6")
e("v_lshl_add_u32 v6, v8, 5, v6")
e("v_lshl_add_u32 v6, v9, 3, v6")
e(f"v_add_u32 v16, s{sA}, v6")
e("v_xor_b32 v17, 128, v16")
e(f"v_and_b32 v6, 1, v{vTK}")
e("v_lshlrev_b32 v6, 10, v6")
e(f"v_lshl_add_u32 v6, v{vG}, 4, v6")
e(f"v_add_u32 v18, {RGB}, v6")
e(f"v_and_b32 v6, 1, v{vG}")
e("v_lshrrev_b32 v7, 1, v8")
e("v_lshl_or_b32 v6, v6, 1, v7")
e(f"s_and_b32 s{sA}, s{sW}, 3")
e(f"v_xor_b32 v6, s{sA}, v6")
e("v_lshlrev_b32 v6, 5, v6")
e("v_lshl_add_u32 v6, v9, 3, v6")
e(f"v_lshl_add_u32 v7, v{vG}, 3, v8")
e("v_lshl_add_u32 v6, v7, 7, v6")
e(f"v_add_u32 v26, {WB}, v6")
e(f"s_and_b32 s{sA}, s{sW}, 1")
e(f"s_lshl_b32 s{sA}, s{sA}, 4")
e(f"v_add_u32 v30, s{sA}, v{vTK}")
e(f"v_lshrrev_b32 v6, 1, v{vG}")
e("v_lshlrev_b32 v6, 9, v6")
e(f"v_and_b32 v7, 1, v{vG}")
e("v_lshl_add_u32 v6, v7, 3, v6")
e(f"s_and_b32 s{sA}, s{sW}, 3")
e(f"s_lshl_b32 s{sA}, s{sA}, 1")
e(f"s_add_u32 s{sA}, s{sA}, s{sTH}")
e(f"s_lshl_b32 s{sA}, s{sA}, 10")
e(f"s_add_u32 s{sA}, s{sA}, {QB}")
e(f"v_add_u32 v6, s{sA}, v6")
e("v_lshl_add_u32 v28, v30, 4, v6")
e("v_xor_b32 v29, 256, v28")
e("v_lshlrev_b32 v30, 2, v30")
e(f"v_add_u32 v30, {QN2}, v30")
e("v_xor_b32 v31, 64, v30")
e(f"v_and_b32 v6, 31, v{vL}")
e(f"v_lshrrev_b32 v7, 5, v{vL}")
e(f"v_lshlrev_b32 v{PP}, 5, v6")
e(f"v_lshl_add_u32 v{PP}, v7, 4, v{PP}")
e(f"v_lshlrev_b32 v{PP+2}, 2, v6")
e(f"v_add_u32 v{PP+2}, {QN2}, v{PP+2}")
e(f"v_add_u32 v{PP+3}, {SCR+256}, v{vL4}")
e(f"s_cmp_lt_u32 s{sHG}, 2")
e("s_cbranch_scc1 L_w_p")
e(f"s_cmp_ge_u32 s{sW}, 4")
e("s_cbranch_scc1 L_w_nh")
vmw(0)
a.label("L_w_nh")
vmw(16)
e("s_branch L_B1a")
a.label("L_w_p")
e(f"s_cmp_ge_u32 s{sW}, 4")
e("s_cbranch_scc1 L_w_ph")
vmw(1)
a.label("L_w_ph")
vmw(max(1, 8 * cfg.xoe + cfg.nup) if (cfg.xoe or cfg.nup) else 0)
a.label("L_B1a")
e("s_waitcnt lgkmcnt(0)")
e("s_barrier")
stamp("B1a")
def x_read(dst, S): e(f"ds_read_b128 {v(dst,4)}, v{12+(S&3)} offset:{(S>>2)*256}")
def rg_chain(xdst, publish):
    def rd(S):
        x_read(xdst(S), S)
        e(f"ds_read_b128 {v(32+4*(S%5),4)}, v18 offset:{S*64}")
    for S in range(4): rd(S)
    for S in range(16):
        left = min(S + 4, 16) - (S + 1)
        e(f"s_waitcnt lgkmcnt({2*left})")
        mf16(QF, 32 + 4 * (S % 5), xdst(S), "0" if S == 0 else v(QF, 4))
        if S + 4 < 16: rd(S + 4)
    e(f"s_and_b32 s{sA}, s{sW}, 1")
    e(f"s_lshl_b32 s{sA}, s{sA}, 4")
    e(f"v_add_u32 v6, s{sA}, v{vTK}")
    if publish:
        round_bf16(QF)
        e(f"v_ashrrev_i32 v19, 31, v{QF}")
        e("v_or_b32 v19, 0x80000000, v19")
        e(f"v_xor_b32 v19, v19, v{QF}")
        e("v_and_b32 v19, 0xffff0000, v19")
        e("v_lshl_or_b32 v19, v6, 11, v19")
        e(f"v_mov_b32 v21, {SCR}")
        e("ds_max_u32 v21, v19 offset:12")
    round_bf16(QF + 1)
    sigmoid(QF + 1)
    round_bf16(QF + 1)
    e("v_lshlrev_b32 v6, 2, v6")
    e(f"v_add_u32 v6, {GB_}, v6")
    e(f"ds_write_b32 v6, v{QF+1}")
e(f"s_cmp_ge_u32 s{sW}, 6")
e("s_cbranch_scc1 L_role_ld")
e(f"s_cmp_ge_u32 s{sW}, 4")
e("s_cbranch_scc1 L_role_rg")
e(f"s_cmp_lt_u32 s{sHG}, 2")
e("s_cbranch_scc0 L_role_none")
def kv_reads(S):
    x_read(XA + 4 * S, S)
    w = 32 + 4 * (S % 5)
    e(f"ds_read_b64_tr_b16 {v(w,2)}, v16 offset:{S*1024}")
    e(f"ds_read_b64_tr_b16 {v(w+2,2)}, v17 offset:{S*1024}")
def kv_chain(swap):
    for S in range(4): kv_reads(S)
    for S in range(16):
        left = min(S + 4, 16) - (S + 1)
        e(f"s_waitcnt lgkmcnt({3*left})")
        w = 32 + 4 * (S % 5)
        C = "0" if S == 0 else v(QF, 4)
        if swap: mf16(QF, XA + 4 * S, w, C)
        else: mf16(QF, w, XA + 4 * S, C)
        if S + 4 < 16: kv_reads(S + 4)
e(f"s_cmp_ge_u32 s{sW}, 2")
e("s_cbranch_scc1 L_role_v")
e(f"s_lshl_b32 s{sA}, s{sTG}, 10")
e(f"s_lshl_b32 s{sB}, s{sW}, 9")
e(f"s_add_u32 s{sA}, s{sA}, s{sB}")
e(f"v_lshlrev_b32 v6, 5, v{vTK}")
e(f"v_lshl_add_u32 v6, v{vG}, 3, v6")
kv_chain(False)
e(f"v_cvt_pk_bf16_f32 v20, v{QF}, v{QF+1}")
e(f"v_cvt_pk_bf16_f32 v21, v{QF+2}, v{QF+3}")
e(f"buffer_store_dwordx2 v[20:21], v6, {s(rWS,4)}, s{sA} offen sc1")
e(f"v_mul_f32 v22, v{QF}, v{QF}")
for i in range(1, 4): e(f"v_fmac_f32 v22, v{QF+i}, v{QF+i}")
sum_over_g(22, 23)
e(f"v_mov_b32 v23, {SCR}")
e("ds_max_u32 v23, v22 offset:8")
e("s_branch L_role_done")
a.label("L_role_v")
e(f"s_lshl_b32 s{sA}, s{sTG}, 10")
e(f"s_and_b32 s{sB}, s{sW}, 1")
e(f"s_lshl_b32 s{sB}, s{sB}, 8")
e(f"s_add_u32 s{sA}, s{sA}, s{sB}")
e(f"s_add_u32 s{sA}, s{sA}, {WS_V}")
e(f"v_and_b32 v6, 1, v{vG}")
e("v_lshlrev_b32 v6, 9, v6")
e(f"v_lshl_add_u32 v6, v{vTK}, 4, v6")
e(f"v_lshrrev_b32 v7, 1, v{vG}")
e("v_lshl_add_u32 v6, v7, 3, v6")
kv_chain(True)
e(f"v_cvt_pk_bf16_f32 v20, v{QF}, v{QF+1}")
e(f"v_cvt_pk_bf16_f32 v21, v{QF+2}, v{QF+3}")
e(f"buffer_store_dwordx2 v[20:21], v6, {s(rWS,4)}, s{sA} offen sc1")
e("s_branch L_role_done")
a.label("L_role_rg")
rg_chain(lambda S: XA + 4 * S, True)
e(f"s_cmp_lt_u32 s{sHG}, 2")
e("s_cbranch_scc0 L_role_ld")
arrive()
a.label("L_role_ld")
for q in range(4): e(f"v_xor_b32 v{12+q}, 0x8000, v{12+q}")
e(f"s_cmp_lt_u32 s{sHG}, 2")
e("s_cbranch_scc0 L_role_none")
if not cfg.xoe: x_dma(11, sSPIN, sIT, sF)
wq_steps(cfg.nup, 15)
vmw(15 - (0 if cfg.xoe else cfg.nup))
stamp("arrived")
e("s_barrier")
wq_steps(15, 16)
for S in range(16): x_read(XA + 4 * S, S)
for q in range(4): e(f"v_xor_b32 v{12+q}, 0x4000, v{12+q}")
for S in range(16): x_read(XBr + 4 * S, S)
e("s_branch L_B1b")
a.label("L_role_none")
for S in range(16): x_read(XA + 4 * S, S)
a.label("L_role_done")
for q in range(4): e(f"v_xor_b32 v{12+q}, 0x4000, v{12+q}")
for S in range(16): x_read(XBr + 4 * S, S)
e(f"s_cmp_lt_u32 s{sHG}, 2")
e("s_cbranch_scc0 L_noarr")
e("s_waitcnt vmcnt(0)")
arrive()
a.label("L_noarr")
if cfg.stamps == 1: STAMPS.pop()
stamp("arrived")
e("s_barrier")
a.label("L_B1b")
stamp("B1b")
zero_slots(32)
ACC0 = QF; ACC1 = PP + 4
def q_chunk(lo, hi, vm):
    e(f"s_waitcnt vmcnt({vm})")
    e("s_barrier")
    wreg = lambda S: (32, 36, 40, 44, 48, 20, CM, CM + 4, CM + 8, CM + 12)[S - lo]
    for S in range(lo, hi):
        w = wreg(S)
        e(f"ds_read_b64_tr_b16 {v(w,2)}, v26 offset:{S*4096}")
        e(f"ds_read_b64_tr_b16 {v(w+2,2)}, v26 offset:{S*4096+512}")
    for S in range(lo, hi):
        e(f"s_waitcnt lgkmcnt({min(15, 2*(hi-1-S))})")
        w = wreg(S)
        mf16(ACC0, w, XA + 4 * S, "0" if S == 0 else v(ACC0, 4))
        mf16(ACC1, w, XBr + 4 * S, "0" if S == 0 else v(ACC1, 4))
q_chunk(0, 8, 8)
q_chunk(8, 16, 0)
stamp("qdone")
e(f"s_mov_b32 s{sB}, 0x{f2u(CSCALE):08x}")
for hf, acc in ((0, ACC0), (1, ACC1)):
    for i in range(4): e(f"v_mul_f32 v{acc+i}, s{sB}, v{acc+i}")
    e(f"v_cvt_pk_bf16_f32 v{20+2*hf}, v{acc}, v{acc+1}")
    e(f"v_cvt_pk_bf16_f32 v{21+2*hf}, v{acc+2}, v{acc+3}")
    e(f"ds_write_b64 v{28+hf}, {v(20+2*hf,2)}")
    e(f"v_mul_f32 v{24+hf}, v{acc}, v{acc}")
    for i in range(1, 4): e(f"v_fmac_f32 v{24+hf}, v{acc+i}, v{acc+i}")
e("v_mov_b32 v6, v24")
e("v_mov_b32 v7, v25")
e("v_permlane32_swap_b32 v24, v6")
e("v_permlane32_swap_b32 v25, v7")
e("v_add_f32 v24, v24, v6")
e("v_add_f32 v25, v25, v7")
e("v_mov_b32 v6, v24")
e("v_mov_b32 v7, v25")
e("v_permlane16_swap_b32 v24, v6")
e("v_permlane16_swap_b32 v25, v7")
e("v_add_f32 v24, v24, v6")
e("v_add_f32 v25, v25, v7")
e("ds_max_u32 v30, v24")
e("ds_max_u32 v31, v25")
stamp("prepoll")
e(f"s_cmp_eq_u32 s{sW}, 0")
e("s_cbranch_scc0 L_nopoll")
e(f"s_mov_b32 s{sSPIN}, 0")
a.label("L_poll")
e(f"buffer_load_dword v6, v{vL4}, {s(rDBG,4)}, 0 offen sc1")
e(f"s_add_u32 s{sSPIN}, s{sSPIN}, 1")
e("s_waitcnt vmcnt(0)")
e("v_cmp_eq_u32 vcc, 0, v6")
e(f"s_cmp_gt_u32 s{sSPIN}, {cfg.spin}")
e("s_cbranch_scc1 L_pollout")
e("s_cmp_eq_u64 vcc, 0")
e("s_cbranch_scc1 L_pollout")
if cfg.psleep: e(f"s_sleep {cfg.psleep}")
e("s_branch L_poll")
a.label("L_pollout")
e(f"ds_write_b32 v{PP+3}, v6")
a.label("L_nopoll")
e(f"s_lshl_b32 s{sA}, s{sW}, 13")
e(f"s_add_u32 s{sB}, s{sA}, {WS_V}")
e(f"s_add_u32 s{sE}, s{sA}, 4096")
e(f"s_add_u32 s{sF}, s{sB}, 4096")
e("s_waitcnt lgkmcnt(0)")
e("s_barrier")
stamp("B6")
e(f"ds_read_b32 v6, v{PP+3}")
e(f"ds_read_b32 v19, v{PP+2}")
def kv_load(j):
    e(f"buffer_load_dwordx4 {v(KF+4*j,4)}, v{PP}, {s(rWS,4)}, s{sA if j<4 else sE} offen offset:{(j&3)*1024} sc1")
    e(f"buffer_load_dwordx4 {v(V0+4*j,4)}, v{vL16}, {s(rWS,4)}, s{sB if j<4 else sF} offen offset:{(j&3)*1024} sc1")
for j in range(4): kv_load(j)
e("s_waitcnt lgkmcnt(0)")
e("v_and_b32 v7, 0x7ff, v6")
e("v_and_b32 v6, 0xfffff800, v6")
e(f"v_or_b32 v6, v6, v{vL}")
e("v_sqrt_f32 v19, v19")
for m in ("row_shr:1 row_mask:0xf", "row_shr:2 row_mask:0xf", "row_shr:4 row_mask:0xf", "row_shr:8 row_mask:0xf",
          "row_bcast:15 row_mask:0xa", "row_bcast:31 row_mask:0xc"):
    e(f"v_max_u32_dpp v7, v7, v7 {m} bank_mask:0xf")
    e(f"v_max_u32_dpp v6, v6, v6 {m} bank_mask:0xf")
e(f"v_readlane_b32 s{sB}, v7, 63")
e(f"v_readlane_b32 s{sA}, v6, 63")
e(f"s_lshl_b32 s{sB}, s{sB}, 20")
e(f"v_sqrt_f32 v7, s{sB}")
e(f"v_mul_f32 v19, 0x{f2u(-1.02 * (8.0 if cfg.force_fallback else 1.0)):08x}, v19")
e(f"v_mul_f32 v{CM}, v7, v19")
for j in range(4, 8): kv_load(j)
for i in range(1, 16): e(f"v_mov_b32 v{CM+i}, v{CM}")
e(f"s_and_b32 s{sC}, s{sA}, 63")
e(f"s_cmp_eq_u32 s{sC}, s{sTG}")
e(f"s_cselect_b32 s{sOWN}, 1, 0")
e(f"s_lshl_b32 s{sC}, s{sC}, 5")
e(f"s_bfe_u32 s{sD}, s{sA}, 0x5000b")
e(f"s_add_u32 s{sSEL}, s{sC}, s{sD}")
e(f"s_and_b32 s{sR16}, s{sA}, 0xffff0000")
stamp("kviss")

a.label("L_attn")
e(f"ds_read_b128 {v(QF,4)}, v{vNq}")
e(f"v_mov_b32 v52, {GOW}")
e(f"s_mov_b32 s{sIT}, 0")
for r in range(10):
    e(f"v_mov_b32 v{O0+r}, 0")
e(f"s_cmp_eq_u32 s{sFB}, 0")
e("s_cbranch_scc0 L_fbc_0")
a.label("L_fbr_0")
if cfg.prio: e("s_setprio 3")
vmw(15)
e("s_waitcnt lgkmcnt(0)")
mf32(S0, KF, QF, v(CM, 16))
stamp("K0")
STUBS = []
a.strict = True
for st in range(8):
    O = (O0, O1)[st & 1]; Op = (O1, O0)[st & 1]
    k = st & 3
    for j in range(8):
        t = st * 8 + j
        Sc = (S0, S1)[t & 1]; Sn = (S1, S0)[t & 1]
        jn = (j + 1) & 7
        def ex(p):
            e(f"v_exp_f32 v{Sc+2*p}, v{Sc+2*p}")
            e(f"v_exp_f32 v{Sc+2*p+1}, v{Sc+2*p+1}")
        def cv(p): e(f"v_cvt_pk_bf16_f32 v{PP+p}, v{Sc+2*p}, v{Sc+2*p+1}")
        def init_reads():
            kk = k if st < 7 else 4
            e(f"ds_read_b64 {v(Op+8,2)}, v{vAt+kk}")
            e(f"ds_read_b128 {v(Op,4)}, v{vAd+kk}")
            e(f"ds_read_b128 {v(Op+4,4)}, v{vAd+kk} offset:1024")
            if st == 7: e("ds_read_b32 v53, v52")
        if j == 7:
            e("s_waitcnt lgkmcnt(0)")
            if st == 7: e(f"v_mul_u32_u24 v{Op+9}, v53, v{Op+9}")
            e(f"v_cmp_ne_u32 vcc, {st}, v{Op+9}")
            if st < 7:
                e(f"s_cmp_eq_u32 s{sFB}, 0")
                e(f"s_cbranch_scc0 L_fbc_{st+1}")
            else:
                e("s_nop 1")
            if st == 0:
                e(f"s_cmp_lt_u32 s{sW}, 4")
                e("s_cbranch_scc1 L_hook0")
            if st == 6: e("s_branch L_hook6")
            if st in (2, 4):
                e(f"s_cmp_eq_u32 s{sW}, {FW}")
                e(f"s_cbranch_scc1 L_hook{st}")
            a.label(f"L_fbr_{st+1}")
            e(f"s_cbranch_vccnz L_retry_{st}")
            a.label(f"L_ok_{st}")
            stamp(f"st{st}", (2,))
            STUBS.append((st, Op, k if st < 7 else 4))
            if cfg.prio and st in (1, 3, 5): e(f"s_setprio {3 - (st + 1) // 2}")
        def smf():
            if st == 0 and j < 7: vmw(15 - 2 * jn)
            if not (st == 7 and j == 7):
                mf32(Sn, KF + 4 * jn, QF, v(CM, 16))
        def pv1():
            if j == 0:
                if st > 0: mf32(Op, V1 + 4 * 7, PP + 4, v(Op, 16))
            else: mf32(O, V1 + 4 * (j - 1), PP + 4, v(O, 16))
        def side():
            if st == 0:
                if j == 6: vmw(0)
                Lsk = L("nosw")
                e(f"s_cmp_eq_u32 s{sFB}, 0")
                e(f"s_cbranch_scc0 {Lsk}")
                for jj in ([j] if j < 6 else [6, 7] if j == 6 else []):
                    for i in range(4): e(f"v_permlane16_swap_b32 v{V0+4*jj+i}, v{V1+4*jj+i}")
                a.label(Lsk)
            if j == 6 and st < 7:
                kn = (st + 1) & 3
                if st + 1 >= 4: e(f"v_xor_b32 v{vNq+kn}, 4096, v{vNq+kn}")
                e(f"ds_read_b128 {v(QF,4)}, v{vNq+kn}")
            if j == 5: init_reads()
        if t == 0:
            e("s_nop 7"); e("s_nop 3")
        ex(0); pv1(); ex(1); ex(2); cv(0); smf(); ex(3); cv(1); ex(4); cv(2); ex(5); cv(3); side(); ex(6)
        mf32(O, V0 + 4 * j, PP, v(O, 16))
        cv(4); ex(7); cv(5); cv(6); cv(7)
        if j == 0 and st > 0:
            kp = (st - 1) & 3
            e(f"v_mov_b32 v{Op+9}, {st}")
            e(f"ds_write_b128 v{vAd+kp}, {v(Op,4)}")
            e(f"ds_write_b128 v{vAd+kp}, {v(Op+4,4)} offset:1024")
            e(f"ds_write_b64 v{vAt+kp}, {v(Op+8,2)}")
a.strict = False
mf32(O1, V1 + 4 * 7, PP + 4, v(O1, 16))
if cfg.prio: e("s_setprio 3")
e(f"s_and_b32 s{sB}, s{sU}, 1")
e(f"s_lshl_b32 s{sB}, s{sB}, 15")
e(f"s_lshr_b32 s{sC}, s{sU}, 1")
e(f"s_lshl_b32 s{sC}, s{sC}, 10")
e(f"s_add_u32 s{sB}, s{sB}, s{sC}")
e(f"s_lshl_b32 s{sA}, s{sGR}, 16")
e(f"s_add_u32 s{sB}, s{sB}, s{sA}")
e(f"s_lshl_b32 s{sC}, s{sHG}, 12")
e(f"s_add_u32 s{sB}, s{sB}, s{sC}")
e(f"s_add_u32 s{sB}, s{sB}, {WS_O}")
stamp("loopend")
e(f"v_add_f32 v{O1+8}, v{O1+8}, v{O0+8}")
for r in range(8): e(f"v_add_f32 v{O1+r}, v{O1+r}, v{O0+r}")
e(f"v_rcp_f32 v51, v{O1+8}")
e(f"v_cmp_gt_f32 vcc, 0x{f2u(2.0**-80):08x}, v{O1+8}")
for r in range(8): e(f"v_mul_f32 v{O1+r}, v{O1+r}, v51")
for r in range(4):
    e(f"v_cvt_pk_bf16_f32 v{PP+r}, v{O1+2*r}, v{O1+2*r+1}")
for r in range(4): e(f"v_min_u32 v{PP+r}, -2, v{PP+r}")
e(f"s_cmp_eq_u32 s{sFB}, 0")
e("s_cbranch_scc0 L_pub")
e("s_cbranch_vccz L_pub")
e(f"v_mov_b32 v50, {FBF}")
e("v_mov_b32 v51, 1")
e("ds_write_b32 v50, v51")
e("s_branch L_nopub")
a.label("L_pub")
e(f"buffer_store_dwordx4 {v(PP,4)}, v{vL16}, {s(rWS,4)}, s{sB} offen sc1")
a.label("L_nopub")
stamp("opub")
e(f"s_lshl_b32 s{sF}, s{sTG}, 15")
e(f"s_lshl_b32 s{sD}, s{sW}, 12")
e(f"s_add_u32 s{sA}, s{sF}, s{sD}")
e(f"s_add_u32 s{sA}, s{sA}, {WS_O}")
e(f"s_lshr_b32 s{sB}, s{sHG}, 1")
e(f"s_lshl_b32 s{sB}, s{sB}, 8")
e(f"s_add_u32 s{sF}, s{sF}, s{sB}")
e(f"s_lshl_b32 s{sB}, s{sW}, 5")
e(f"s_add_u32 s{sF}, s{sF}, s{sB}")
e(f"s_add_u32 s{sE}, s{sF}, 16384")
e(f"v_lshlrev_b32 v40, 10, v{vTK}")
e(f"v_lshl_add_u32 v40, v{vG}, 3, v40")
e(f"buffer_load_dwordx2 v[42:43], v40, {s(rX,4)}, s{sF} offen")
e(f"buffer_load_dwordx2 v[44:45], v40, {s(rX,4)}, s{sE} offen")
def gather():
    for k in range(4):
        e(f"buffer_load_dwordx4 {v(S0+4*k,4)}, v{vL16}, {s(rWS,4)}, s{sA} offen offset:{k*1024} sc1")
T = CM
e(f"v_lshrrev_b32 v{T+2}, 2, v{vTK}")
e(f"v_and_b32 v{T+3}, 3, v{vTK}")
e(f"v_and_b32 v{T}, 1, v{vG}")
e(f"v_lshl_or_b32 v{T}, v{T}, 2, v{T+2}")
e(f"v_lshrrev_b32 v{T+1}, 1, v{vG}")
e(f"v_lshl_add_u32 v{T+1}, v{T+1}, 4, v{T}")
e(f"v_xor_b32 v{T}, s{sW}, v{T}")
e(f"v_lshlrev_b32 v{T}, 5, v{T}")
e(f"v_lshl_add_u32 v{T}, v{T+3}, 3, v{T}")
e(f"v_lshl_add_u32 v{T}, v{T+1}, 8, v{T}")
e(f"v_add_u32 v{T+1}, 0x10000, v{T}")
e(f"v_mov_b32 v50, {FBF}")
e(f"v_lshlrev_b32 v48, 2, v{vTK}")
e(f"v_add_u32 v48, {GB_}, v48")
e(f"v_add_u32 v46, s{sD}, v{vL16}")
e(f"v_lshrrev_b32 v{T+6}, 1, v{vG}")
e(f"v_lshlrev_b32 v{T+6}, 10, v{T+6}")
e(f"v_and_b32 v{T+7}, 1, v{vG}")
e(f"v_lshl_add_u32 v{T+6}, v{T+7}, 9, v{T+6}")
e(f"v_lshl_add_u32 v{T+6}, v{vTK}, 4, v{T+6}")
e("s_waitcnt vmcnt(3) lgkmcnt(0)")
e("s_barrier")
stamp("B8")
e("ds_read_b32 v51, v50")
e("ds_read2_b32 v[48:49], v48 offset0:0 offset1:16")
if cfg.gearly: gather()
e("s_waitcnt lgkmcnt(0)")
e(f"v_readfirstlane_b32 s{sC}, v51")
e(f"s_cmp_gt_u32 s{sC}, s{sFB}")
e("s_cbranch_scc1 L_fallback")
WF = 64
for S in range(16):
    b = T if S < 8 else T + 1; o = (S & 7) * 8192
    e(f"ds_read_b64_tr_b16 {v(WF+4*S,2)}, v{b} offset:{o}")
    e(f"ds_read_b64_tr_b16 {v(WF+4*S+2,2)}, v{b} offset:{o+2048}")
if not cfg.gearly: gather()
e(f"s_mov_b32 s{sSPIN}, 0")
e("s_waitcnt lgkmcnt(0)")
e("s_barrier")
a.label("L_opoll")
e("s_waitcnt vmcnt(0)")
e(f"v_max3_u32 v{T+8}, v{S0}, v{S0+1}, v{S0+2}")
for r in range(3, 15, 2):
    e(f"v_max3_u32 v{T+8}, v{T+8}, v{S0+r}, v{S0+r+1}")
e(f"v_max_u32 v{T+8}, v{T+8}, v{S0+15}")
e(f"v_cmp_eq_u32 vcc, -1, v{T+8}")
e(f"s_add_u32 s{sSPIN}, s{sSPIN}, 1")
e(f"s_cmp_gt_u32 s{sSPIN}, {cfg.spin}")
e("s_cbranch_scc1 L_opollout")
e("s_cbranch_vccz L_opollout")
gather()
e("s_branch L_opoll")
a.label("L_opollout")
for k in range(4):
    e(f"ds_write_b128 v46, {v(S0+4*k,4)} offset:{k*1024}")
if cfg.stamps == 1: e(f"s_mov_b32 s{sST+15}, s{sSPIN}")
e("s_waitcnt lgkmcnt(0)")
e("s_barrier")
stamp("ogath")
OFR = 128
AC = O1
def o_reads(S):
    for th in range(2):
        e(f"ds_read_b128 {v(OFR+8*(S%6)+4*th,4)}, v{T+6} offset:{S*2048+th*256}")
for S in range(5): o_reads(S)
for S in range(16):
    left = min(S + 5, 16) - (S + 1)
    e(f"s_waitcnt lgkmcnt({2*left})")
    for th in range(2):
        mf16(AC + 4 * th, WF + 4 * S, OFR + 8 * (S % 6) + 4 * th, "0" if S == 0 else v(AC + 4 * th, 4))
    if S + 5 < 16: o_reads(S + 5)
e(f"s_cmp_eq_u32 s{sOWN}, 1")
e("s_cbranch_scc0 L_noy")
for k in range(1, NREP):
    for i in range(4): e(f"v_add_f32 v{8+i}, v{8+i}, v{8+4*k+i}")
e(f"v_mov_b32 v52, s{sR16}")
e("v_ashrrev_i32 v53, 31, v52")
e("v_not_b32 v53, v53")
e("v_or_b32 v53, 0x80000000, v53")
e("v_xor_b32 v52, v52, v53")
e("v_and_b32 v52, 0xffff0000, v52")
sigmoid(52)
round_bf16(52)
for i in range(4):
    round_bf16(8 + i)
    e(f"v_mul_f32 v{8+i}, v{8+i}, v52")
    round_bf16(8 + i)
a.label("L_noy")
e(f"s_and_b32 s{sA}, s{sSEL}, 31")
e(f"s_cmp_eq_u32 s{sOWN}, 1")
e(f"s_cselect_b32 s{sA}, s{sA}, 64")
for th in range(2):
    acc = AC + 4 * th; xr = 42 + 2 * th; gt = 48 + th; X = V1
    e(f"v_add_u32 v51, {16*th}, v{vTK}")
    e(f"v_cmp_eq_u32 vcc, s{sA}, v51")
    e(f"v_lshlrev_b32 v{X}, 16, v{xr}")
    e(f"v_and_b32 v{X+1}, 0xffff0000, v{xr}")
    e(f"v_lshlrev_b32 v{X+2}, 16, v{xr+1}")
    e(f"v_and_b32 v{X+3}, 0xffff0000, v{xr+1}")
    e(f"v_sub_f32 v52, 1.0, v{gt}")
    for i in range(4):
        e(f"v_cndmask_b32 v53, 0, v{8+i}, vcc")
        e(f"v_add_f32 v{X+i}, v{X+i}, v53")
        e(f"v_mul_f32 v{X+i}, v{X+i}, v52")
        e(f"v_fmac_f32 v{X+i}, v{acc+i}, v{gt}")
    e(f"v_cvt_pk_bf16_f32 v{X+4+2*th}, v{X}, v{X+1}")
    e(f"v_cvt_pk_bf16_f32 v{X+5+2*th}, v{X+2}, v{X+3}")
    e(f"buffer_store_dwordx2 {v(X+4+2*th,2)}, v40, {s(rOUT,4)}, s{(sF,sE)[th]} offen")
if cfg.stamps:
    stamp("stored")
    e("s_waitcnt vmcnt(0)")
    stamp("end")
    if cfg.dbgwg >= 0:
        e(f"s_cmp_eq_u32 s2, {cfg.dbgwg}")
        e("s_cbranch_scc0 L_end")
        e(f"s_cmp_eq_u32 s{sW}, {cfg.dbgwave}")
        e("s_cbranch_scc0 L_end")
        e("v_mov_b32 v6, 0")
        for i in range(1, 16): e(f"s_sub_u32 s{sST+i}, s{sST+i}, s{sST}")
        for q in range(4):
            for i in range(4): e(f"v_mov_b32 v{8+i}, s{sST+4*q+i}")
            e(f"buffer_store_dwordx4 v[8:11], v6, {s(rDBG,4)}, 0 offen offset:{16*q}")
            e("s_nop 1")
    else:
        e(f"s_lshl_b32 s{sA}, s2, 3")
        e(f"s_add_u32 s{sA}, s{sA}, s{sW}")
        e(f"s_lshl_b32 s{sA}, s{sA}, 6")
        e(f"s_add_u32 s{sA}, s{sA}, {WS_STAMP}")
        e("v_mov_b32 v6, 0")
        for q in range(4):
            for i in range(4): e(f"v_mov_b32 v{8+i}, s{sST+4*q+i}")
            e(f"buffer_store_dwordx4 v[8:11], v6, {s(rWS,4)}, s{sA} offen offset:{16*q}")
            e("s_nop 1")
a.label("L_end")
e("s_endpgm")

for st, Op, kk in STUBS:
    a.label(f"L_retry_{st}")
    a.hist = []
    e("s_sleep 1")
    e(f"s_add_u32 s{sIT}, s{sIT}, 1")
    e(f"s_cmp_gt_u32 s{sIT}, {cfg.spin*16}")
    e(f"s_cbranch_scc1 L_ok_{st}")
    e(f"ds_read_b64 {v(Op+8,2)}, v{vAt+kk}")
    e(f"ds_read_b128 {v(Op,4)}, v{vAd+kk}")
    e(f"ds_read_b128 {v(Op+4,4)}, v{vAd+kk} offset:1024")
    if st == 7: e("ds_read_b32 v53, v52")
    e("s_waitcnt lgkmcnt(0)")
    if st == 7: e(f"v_mul_u32_u24 v{Op+9}, v53, v{Op+9}")
    e(f"v_cmp_ne_u32 vcc, {st}, v{Op+9}")
    e("s_nop 4")
    e(f"s_cbranch_vccnz L_retry_{st}")
    e(f"s_branch L_ok_{st}")

a.label("L_hook0")
a.hist = []
e(f"s_and_b32 s{sA}, s{sW}, 1")
e(f"s_lshl_b32 s{sA}, s{sA}, 3")
e(f"v_lshlrev_b32 v10, 1, v{vG}")
e(f"v_or_b32 v10, s{sA}, v10")
e(f"v_xor_b32 v10, v10, v{vTK}")
e("v_lshlrev_b32 v10, 4, v10")
e(f"v_lshl_add_u32 v10, v{vG}, 10, v10")
e(f"s_lshr_b32 s{sA}, s{sHG}, 1")
e(f"s_lshl_b32 s{sA}, s{sA}, 8")
e(f"v_add_u32 v10, s{sA}, v10")
e(f"s_lshl_b32 s{sA}, s{sW}, 12")
e(f"s_lshl_b32 s{sE}, s{sW}, 10")
for S in range(2 * NWO):
    e(f"s_add_u32 m0, s{sE}, {S*4096}")
    e(f"s_add_u32 s{sB}, s{sA}, {S*16384}")
    dma(10, rWO, f"s{sB}")
e(f"s_cmp_eq_u32 s{sW}, {FW}")
e("s_cbranch_scc0 L_fbr_1")
for i in range(4): e(f"v_mov_b32 v{16+i}, -1")
e(f"s_lshl_b32 s{sB}, s{sGR}, 16")
e(f"s_lshl_b32 s{sC}, s{sHG}, 12")
e(f"s_add_u32 s{sB}, s{sB}, s{sC}")
e(f"s_add_u32 s{sB}, s{sB}, {WS_O}")
for i in range(8):
    if i == 4: e(f"s_add_u32 s{sB}, s{sB}, 32768")
    e(f"buffer_store_dwordx4 v[16:19], v{vL16}, {s(rWS,4)}, s{sB} offen offset:{(i&3)*1024} sc1")
e(f"s_cmp_eq_u32 s{sFV}, 1")
e("s_cbranch_scc0 L_fbr_1")
srd(rT1, pWD, 1792 * 1024)
e(f"s_lshl_b32 s{sA}, s{sF0}, 10")
for i in range(8):
    e(f"s_add_u32 s{sB}, s{sA}, {i*1024}")
    e(f"s_mov_b32 m0, {FB+F_D+i*1088}")
    dma(vL16, rT1, f"s{sB}")
e(f"s_lshl_b32 s{sB}, s{sSEL}, 10")
e(f"s_mov_b32 m0, {FB+F_X}")
dma(vL16, rX, f"s{sB}")
srd(rT1, pWG, 512 * 3584)
srd(rT2, pWU, 512 * 3584)
e(f"s_movk_i32 s{sA}, 3584")
e(f"v_mul_lo_u32 v12, v{vL}, s{sA}")
e(f"s_lshl_b32 s{sA}, s{sF0}, 1")
e(f"v_add_u32 v12, s{sA}, v12")
for i in range(8):
    e(f"s_mov_b32 s{sB}, {i*64*3584}")
    e(f"s_mov_b32 m0, {FB+F_G+i*1024}")
    dma(12, rT1, f"s{sB}")
    e(f"s_mov_b32 m0, {FB+F_U+i*1024}")
    dma(12, rT2, f"s{sB}")
e("s_branch L_fbr_1")
a.label("L_hook2")
a.hist = []
e(f"s_cmp_eq_u32 s{sFV}, 1")
e("s_cbranch_scc0 L_hook2_wo")
e("s_mov_b64 s[22:23], vcc")
e(f"v_lshrrev_b32 v8, 2, v{vTK}")
e(f"v_and_b32 v9, 3, v{vTK}")
e("v_lshrrev_b32 v6, 1, v9")
e(f"v_mul_u32_u24 v6, {F_U-F_G}, v6")
e("v_and_b32 v7, 1, v9")
e("v_lshl_add_u32 v6, v7, 3, v6")
e(f"v_lshl_add_u32 v7, v{vG}, 3, v8")
e("v_lshl_add_u32 v12, v7, 4, v6")
e(f"v_add_u32 v12, {FB}, v12")
e(f"v_lshlrev_b32 v13, 4, v{vG}")
e(f"v_add_u32 v13, {FB}, v13")
e("s_waitcnt vmcnt(0)")
def f_reads(S):
    w = 16 + 8 * (S % 4)
    e(f"ds_read_b64_tr_b16 {v(w,2)}, v12 offset:{F_G+S*512}")
    e(f"ds_read_b64_tr_b16 {v(w+2,2)}, v12 offset:{F_G+S*512+64}")
    e(f"ds_read_b128 {v(w+4,4)}, v13 offset:{F_X+S*64}")
for S in range(3): f_reads(S)
for S in range(16):
    left = min(S + 3, 16) - (S + 1)
    e(f"s_waitcnt lgkmcnt({3*left})")
    w = 16 + 8 * (S % 4)
    mf16(48, w, w + 4, "0" if S == 0 else v(48, 4))
    if S + 3 < 16: f_reads(S + 3)
e("v_mul_u32_u24 v6, 1088, v8")
e(f"v_lshl_add_u32 v6, v{vG}, 5, v6")
e("v_lshl_add_u32 v12, v9, 3, v6")
e(f"v_add_u32 v12, {FB}, v12")
def d_reads(J0):
    for J in range(J0, J0 + 4):
        e(f"ds_read_b64_tr_b16 {v(16+4*(J&3),2)}, v12 offset:{F_D+J*128}")
        e(f"ds_read_b64_tr_b16 {v(18+4*(J&3),2)}, v12 offset:{F_D+J*128+4*1088}")
d_reads(0)
for i in range(4):
    round_bf16(48 + i)
    e(f"v_mov_b32 v{32+i}, v{48+i}")
for i in range(4): e(f"v_permlane32_swap_b32 v{48+i}, v{32+i}")
for i in range(4):
    e(f"v_mov_b32 v{36+i}, v{48+i}")
    sigmoid(36 + i)
    e(f"v_mul_f32 v{48+i}, v{48+i}, v{36+i}")
    round_bf16(48 + i)
    e(f"v_mul_f32 v{48+i}, v{48+i}, v{32+i}")
e("v_cvt_pk_bf16_f32 v32, v48, v49")
e("v_cvt_pk_bf16_f32 v33, v50, v51")
e("v_mov_b32 v34, v32")
e("v_mov_b32 v35, v33")
e("v_permlane16_swap_b32 v32, v34")
e("v_permlane16_swap_b32 v33, v35")
e(f"v_cmp_eq_u32 vcc, v8, v{vG}")
for i in range(4): e(f"v_cndmask_b32 v{32+i}, 0, v{32+i}, vcc")
e(f"s_and_b32 s{sA}, s2, {NREP-1}")
e(f"s_lshl_b32 s{sA}, s{sA}, 11")
e(f"s_add_u32 s{sA}, s{sA}, {WS_Y}")
for J0 in (0, 4):
    e("s_waitcnt lgkmcnt(0)")
    for J in range(J0, J0 + 4):
        mf16(36 + 4 * (J & 3), 32, 16 + 4 * (J & 3), "0")
    if J0 == 0: d_reads(4)
    for J in range(J0, J0 + 4):
        e(f"buffer_atomic_add_f32 v{36+4*(J&3)}, v{vL4}, {s(rWS,4)}, s{sA} offen offset:{J*256}")
e("s_mov_b64 vcc, s[22:23]")
a.label("L_hook2_wo")
assert FW & 1
e("v_xor_b32 v11, 128, v10")
for S in range(NWO, 16):
    for w in range(8):
        e(f"s_mov_b32 m0, {S*8192+w*1024}")
        e(f"s_mov_b32 s{sB}, {S*32768+w*4096}")
        dma(10 if (w & 1) else 11, rWO, f"s{sB}")
e("s_branch L_fbr_3")
a.label("L_hook4")
e("s_waitcnt vmcnt(0)")
e("s_mov_b64 exec, 1")
e("v_mov_b32 v6, 0")
e("v_mov_b32 v7, 1")
e(f"s_mov_b32 s{sA}, {WS_CNT}")
e(f"buffer_atomic_add v7, v6, {s(rWS,4)}, s{sA} offen sc1")
e("s_mov_b64 exec, -1")
e("s_branch L_fbr_5")
a.label("L_hook6")
e(f"s_cmp_eq_u32 s{sOWN}, 1")
e("s_cbranch_scc1 L_hook6_go")
e(f"s_cmp_eq_u32 s{sW}, {FW}")
e("s_cbranch_scc0 L_fbr_7")
a.label("L_hook6_go")
e("v_mov_b32 v6, 0")
e(f"s_mov_b32 s{sA}, {WS_CNT}")
e(f"s_mov_b32 s{sSPIN}, 0")
a.label("L_ypoll")
e(f"buffer_load_dword v7, v6, {s(rWS,4)}, s{sA} offen sc1")
e(f"s_add_u32 s{sSPIN}, s{sSPIN}, 1")
e("s_waitcnt vmcnt(0)")
e(f"v_readfirstlane_b32 s{sB}, v7")
e(f"s_cmp_gt_u32 s{sSPIN}, {cfg.spin}")
e("s_cbranch_scc1 L_ypollout")
e(f"s_cmp_eq_u32 s{sB}, 256")
e("s_cbranch_scc0 L_ypoll")
a.label("L_ypollout")
e("v_mov_b32 v7, 1")
e("ds_write_b32 v52, v7")
e(f"s_cmp_eq_u32 s{sOWN}, 1")
e("s_cbranch_scc0 L_fbr_7")
e(f"s_lshr_b32 s{sA}, s{sHG}, 1")
e(f"s_lshl_b32 s{sA}, s{sA}, 9")
e(f"s_lshl_b32 s{sB}, s{sW}, 6")
e(f"s_add_u32 s{sA}, s{sA}, s{sB}")
e(f"s_add_u32 s{sA}, s{sA}, {WS_Y}")
e(f"v_lshlrev_b32 v6, 4, v{vG}")
for k in range(NREP):
    e(f"s_add_u32 s{sB}, s{sA}, {k*2048}")
    e(f"buffer_load_dwordx4 {v(8+4*k,4)}, v6, {s(rWS,4)}, s{sB} offen sc1")
e("s_branch L_fbr_7")
for st in range(8):
    a.label(f"L_fbc_{st}")
    a.hist = []
    e(f"v_subrev_u32 v40, {QB}, v{vNq+(st&3)}")
    e("v_lshrrev_b32 v40, 10, v40")
    e(f"v_and_b32 v41, 31, v{vL}")
    e("v_lshl_add_u32 v40, v40, 5, v41")
    e("v_lshlrev_b32 v40, 2, v40")
    e(f"v_add_u32 v40, {FMX}, v40")
    e("ds_read_b32 v41, v40")
    e("s_waitcnt lgkmcnt(0)")
    for i in range(16): e(f"v_sub_f32 v{CM+i}, 0, v41")
    e("s_nop 1")
    e(f"s_branch L_fbr_{st}")
a.label("L_fallback")
a.hist = []
e("s_waitcnt vmcnt(0)")
e(f"s_mov_b32 s{sFB}, 1")
e(f"v_lshl_or_b32 v40, s{sW}, 6, v{vL}")
e("v_and_b32 v40, 255, v40")
e("v_lshlrev_b32 v40, 2, v40")
e(f"v_add_u32 v40, {FMX}, v40")
e("v_mov_b32 v41, 0xff800000")
e("ds_write_b32 v40, v41")
zero_slots(44)
for k in range(4): e(f"v_xor_b32 v{vNq+k}, 4096, v{vNq+k}")
e(f"v_add_u32 v42, {QB}, v{vL16}")
e(f"v_and_b32 v43, 31, v{vL}")
e("v_lshlrev_b32 v43, 2, v43")
e(f"v_add_u32 v43, {FMX}, v43")
e(f"s_mov_b32 s{sIT}, 0")
e("s_waitcnt lgkmcnt(0)")
e("s_barrier")
a.label("L_fb_loop")
e(f"ds_read_b128 {v(QF,4)}, v42")
e("v_mov_b32 v41, 0xff800000")
e("s_waitcnt lgkmcnt(0)")
for j in range(8):
    mf32(S0, KF + 4 * j, QF, "0")
    for r in range(0, 16, 2):
        e(f"v_max3_f32 v41, v41, v{S0+r}, v{S0+r+1}")
e("ds_max_f32 v43, v41")
e("v_add_u32 v42, 1024, v42")
e("v_add_u32 v43, 128, v43")
e(f"s_add_u32 s{sIT}, s{sIT}, 1")
e(f"s_cmp_lt_u32 s{sIT}, 8")
e("s_cbranch_scc1 L_fb_loop")
e("s_waitcnt lgkmcnt(0)")
e("s_barrier")
e("s_branch L_attn")

a.raw(f""".section .rodata,"a"
.p2align 6
.amdhsa_kernel {NAME}_kernel
  .amdhsa_next_free_vgpr 256
  .amdhsa_next_free_sgpr 102
  .amdhsa_accum_offset 256
  .amdhsa_group_segment_fixed_size 0
  .amdhsa_kernarg_size 112
  .amdhsa_user_sgpr_count 2
  .amdhsa_user_sgpr_kernarg_segment_ptr 1
  .amdhsa_system_sgpr_workgroup_id_x 1
.end_amdhsa_kernel""")
open(sys.argv[1], "w").write(a.text())
print("nops added:", a.nops_added, "stamps:", STAMPS)
```

```python
import sys, struct
from asmlib import Asm, v, s

NAME = "gated_mix__grouped_kv_mqa__moe_arch_mod__prompt"
def f2u(x): return struct.unpack("<I", struct.pack("<f", x))[0]

class Cfg:
    stamps = 0
    clk = 0
    force_fallback = 0
    spin = 0x40000
    prio = 1
    psleep = 2
    noffn = 0
    narr = 4
    whi = 0
    chunk = 8
    pollat = 10
    pollat0 = 5
    kv1 = 4
    cpf = 1
    nfirst = 4
    probe = 0
    hold = 0
    holdus = 60
    dbgwg = -1
    dbgwave = 7
    gearly = 0
    nup = 0
    xoe = 0
cfg = Cfg()
for a_ in sys.argv[2:]:
    k_, val_ = a_.split("=")
    assert hasattr(cfg, k_), k_
    setattr(cfg, k_, int(val_))

WS_K = 0; WS_V = 65536; WS_Y = 131072; WS_CNT = WS_Y + 32768; WS_REC = 256 * 1024; WS_EP = 320 * 1024; WS_G = 384 * 1024; WS_O = 1 << 20; WS_STAMP = 4 << 20
WS_BYTES = 8 << 20
NREP = 8
KB = 1024
XB_ = 0; WB = 64 * KB; WKB = 128 * KB; QB = 128 * KB; SLD = 136 * KB; SLT = 152 * KB
RGB = 156 * KB; FMX = 156 * KB; SCR = 158 * KB
QN2 = SCR + 1024
FBF = SCR + 16
GOW = SCR + 20
FDN = SCR + 24
HV = SCR + 256; ZV = SCR + 32
FW = 3
FB = 96 * KB
F_G = 0; F_U = 8192 + 64; F_D = 16384 + 128; F_X = F_D + 8 * 1088
NWO = 12
CSCALE = 0.25 * 1.4426950408889634

sW = 3; sGR = 4; sHG = 5; sA = 6; sB = 7; sC = 8; sD = 9; sE = 10; sF = 11; sIT = 12; sFB = 13; sSEL = 14; sR16 = 15
pX, pWQ, pWK, pWV, pWO, pBX, pWR, pWG = 16, 18, 20, 22, 24, 26, 28, 30
pWU, pWD, pGW, pOUT, pDBG, pWS = 32, 34, 36, 38, 40, 42
rX, rWQ, rWO, rT1, rWS, rOUT, rDBG, rT2 = 44, 48, 52, 56, 60, 64, 68, 72
sF0 = 76; sFV = 77; sOWN = 78; sSPIN = 79; sOH = 80; sTH = 81; sTG = 82; sU = 83
sRHO = 14; sXL = 15; sXG = 12; sWX = 78
sT = 68; sPB = 69; sID = 70; sHK = 71
sST = 84
vL = 1; vTK = 2; vG = 3; vL4 = 4; vL16 = 5
XA = 64; XBr = 128
KF = 64; V0 = 96; S0 = 128; S1 = 144; O0 = 160; O1 = 176; V1 = 192; CM = 224; PP = 240; QF = 248
vAd = 54; vAt = 59; vNq = 252

a = Asm()
e = a.e
STAMPS = []
uid = [0]
def L(p):
    uid[0] += 1
    return f"L_{p}_{uid[0]}"
HOLD = {1: "end", 2: "B6", 3: "loopend", 4: "B1a", 5: "entry"}
def stamp(name, sets=(1,)):
    if cfg.hold and HOLD[cfg.hold] == name:
        Lh = L("hold")
        a.label(Lh)
        e("s_memrealtime s[100:101]")
        e("s_waitcnt lgkmcnt(0)")
        e("s_sub_u32 s100, s100, s98")
        e(f"s_cmp_lt_u32 s100, {cfg.holdus * 100}")
        e(f"s_cbranch_scc1 {Lh}")
    if not cfg.stamps: return
    if cfg.probe and name != "entry": return
    if cfg.stamps == 3 and name in ("B1a", "polled", "B1b", "qdone", "prepoll", "B6", "kviss"): pass
    elif name not in ("entry", "K0", "loopend", "end") and cfg.stamps not in sets: return
    i = len(STAMPS)
    assert i < 16
    a.c(f"stamp {i}: {name}")
    e("s_memtime s[100:101]" if cfg.clk else "s_memrealtime s[100:101]")
    e("s_waitcnt lgkmcnt(0)")
    e(f"s_mov_b32 s{sST+i}, s100")
    STAMPS.append(name)

def xstamp(i, st_=3):
    if cfg.stamps != st_: return
    a.c(f"stamp {i}: x{i}")
    e("s_memrealtime s[100:101]")
    e("s_waitcnt lgkmcnt(0)")
    e(f"s_mov_b32 s{sST+i}, s100")
def srd(r, p, nbytes):
    e(f"s_mov_b32 s{r}, s{p}")
    e(f"s_mov_b32 s{r+1}, s{p+1}")
    e(f"s_mov_b32 s{r+2}, {nbytes}")
    e(f"s_mov_b32 s{r+3}, 0x20000")
def srd_sel(r, p1, p0, nbytes):
    e(f"s_cselect_b32 s{r}, s{p1}, s{p0}")
    e(f"s_cselect_b32 s{r+1}, s{p1+1}, s{p0+1}")
    e(f"s_mov_b32 s{r+2}, {nbytes}")
    e(f"s_mov_b32 s{r+3}, 0x20000")
def dma(voff, r, soff, off=0):
    o = f" offset:{off}" if off else ""
    e(f"buffer_load_dwordx4 v{voff}, {s(r,4)}, {soff} offen{o} lds")
def mf16(d, A, B, C):
    e(f"v_mfma_f32_16x16x32_bf16 {v(d,4)}, {v(A,4)}, {v(B,4)}, {C}")
def mf32(d, A, B, C):
    e(f"v_mfma_f32_32x32x16_bf16 {v(d,16)}, {v(A,4)}, {v(B,4)}, {C}")
def sum_over_g(x, t):
    e(f"v_mov_b32 v{t}, v{x}")
    e(f"v_permlane32_swap_b32 v{x}, v{t}")
    e(f"v_add_f32 v{x}, v{x}, v{t}")
    e(f"v_mov_b32 v{t}, v{x}")
    e(f"v_permlane16_swap_b32 v{x}, v{t}")
    e(f"v_add_f32 v{x}, v{x}, v{t}")
def round_bf16(x):
    e(f"v_cvt_pk_bf16_f32 v{x}, v{x}, v{x}")
    e(f"v_and_b32 v{x}, 0xffff0000, v{x}")
def sigmoid(x):
    e(f"v_mul_f32 v{x}, 0x{f2u(-1.4426950408889634):08x}, v{x}")
    e(f"v_exp_f32 v{x}, v{x}")
    e(f"v_add_f32 v{x}, 1.0, v{x}")
    e(f"v_rcp_f32 v{x}, v{x}")
def vmw(n): e(f"s_waitcnt vmcnt({n})")

def wq_steps(lo, hi):
    for S in range(lo, hi):
        e(f"s_add_u32 m0, s{sE}, {S*4096}")
        e(f"s_xor_b32 s{sA}, s{sWX}, {S*32768}")
        dma(10, rWQ, f"s{sA}")

def row_max(x):
    for n in (8, 4, 2, 1):
        e(f"v_max_u32_dpp v{x}, v{x}, v{x} row_ror:{n} row_mask:0xf bank_mask:0xf")

def zero_slots(t0):
    e(f"v_lshl_or_b32 v{t0+2}, s{sW}, 6, v{vL}")
    for i in range(2): e(f"v_mov_b32 v{t0+i}, 0")
    e(f"v_lshlrev_b32 v{t0+2}, 3, v{t0+2}")
    e(f"v_add_u32 v{t0+2}, {SLT}, v{t0+2}")
    e(f"ds_write_b64 v{t0+2}, {v(t0,2)}")

a.raw(f"""; fused gated-mix kernel: MQA attention (32 heads, d=16) + top-1 routed SwiGLU + sigmoid gate, one launch
; @launch grid=(256,1,1) block=(512,1,1) lds=163840
.amdgcn_target "amdgcn-amd-amdhsa--gfx950"
.text
.globl {NAME}_kernel
.p2align 12
.fill 832, 4, 0xbf800000
.p2align 8
.type {NAME}_kernel,@function
{NAME}_kernel:""")
e("s_cmp_ge_u32 s2, 256")
e("s_cbranch_scc1 L_end")
if cfg.hold: e("s_memrealtime s[98:99]")
xstamp(4, 5)
e("s_load_dwordx16 s[16:31], s[0:1], 0")
e("s_load_dwordx8 s[32:39], s[0:1], 64")
e("s_load_dwordx4 s[40:43], s[0:1], 96")
e(f"v_and_b32 v{vL}, 63, v0")
e("v_lshrrev_b32 v6, 6, v0")
e(f"v_and_b32 v{vTK}, 15, v0")
e(f"v_readfirstlane_b32 s{sW}, v6")
e(f"v_lshrrev_b32 v{vG}, 4, v{vL}")
e(f"v_lshlrev_b32 v{vL16}, 4, v{vL}")
e(f"v_lshlrev_b32 v{vL4}, 2, v{vL}")
e(f"s_and_b32 s{sA}, s2, 7")
e(f"s_lshr_b32 s{sHG}, s2, 5")
e(f"s_bfe_u32 s{sB}, s2, 0x20003")
e(f"s_lshl_b32 s{sGR}, s{sA}, 2")
e(f"s_add_u32 s{sGR}, s{sGR}, s{sB}")
e(f"s_mov_b32 s{sRHO}, s{sB}")
e(f"s_and_b32 s{sOH}, s{sHG}, 1")
e(f"s_lshr_b32 s{sTH}, s{sW}, 2")
e(f"s_xor_b32 s{sTH}, s{sTH}, s{sOH}")
e(f"s_lshl_b32 s{sC}, s{sB}, 3")
e(f"s_add_u32 s{sC}, s{sC}, s{sA}")
e(f"s_cmp_lt_u32 s{sC}, 28")
e(f"s_cselect_b32 s{sFV}, {0 if cfg.noffn else 1}, 0")
e(f"s_lshl_b32 s{sC}, s{sC}, 6")
e(f"s_lshl_b32 s{sB}, s{sHG}, 3")
e(f"s_add_u32 s{sF0}, s{sC}, s{sB}")
e(f"s_bfe_u32 s{sPB}, s{sHG}, 0x10001")
e(f"s_lshl_b32 s{sXL}, s{sOH}, 1")
e(f"s_add_u32 s{sXL}, s{sXL}, s{sPB}")
e(f"s_xor_b32 s{sXL}, s{sXL}, s{sW}")
e(f"s_lshl_b32 s{sXL}, s{sXL}, 14")
e(f"s_lshl_b32 s{sXG}, s{sGR}, 16")
e(f"s_lshl_b32 s{sB}, s{sRHO}, 8")
e(f"v_xor_b32 v11, s{sB}, v{vL16}")
e(f"s_and_b32 s{sD}, s{sW}, 3")
e(f"s_and_b32 s{sA}, s{sW}, 1")
e(f"s_lshl_b32 s{sC}, s{sD}, 13")
e(f"s_lshl_b32 s{sB}, s{sA}, 2")
e(f"v_and_b32 v6, 1, v{vG}")
e("v_lshlrev_b32 v6, 1, v6")
e(f"v_or_b32 v6, s{sB}, v6")
e(f"v_and_b32 v7, 7, v{vL}")
e("v_xor_b32 v6, v6, v7")
e("v_lshlrev_b32 v6, 4, v6")
e(f"v_lshrrev_b32 v7, 3, v{vL}")
e("v_lshl_add_u32 v6, v7, 10, v6")
e(f"s_lshl_b32 s{sB}, s{sHG}, 7")
e(f"s_add_u32 s{sB}, s{sB}, s{sC}")
e(f"v_add_u32 v10, s{sB}, v6")
e(f"s_lshl_b32 s{sE}, s{sD}, 10")
e(f"s_add_u32 s{sE}, s{sE}, {WB}")
e(f"s_lshl_b32 s{sWX}, s{sRHO}, 17")
e(f"v_and_b32 v6, 16, v{vL}")
e("v_lshlrev_b32 v6, 3, v6")
e(f"v_xor_b32 v21, v6, v{vL16}")
for r_, n_ in ((rX, 2097152), (rWQ, 524288), (rT2, 16384), (rT1, 1024)):
    e(f"s_mov_b32 s{r_+2}, {n_}")
    e(f"s_mov_b32 s{r_+3}, 0x20000")
e(f"s_lshl_b32 s{sA}, s{sW}, 14")
e(f"s_xor_b32 s{sA}, s{sA}, s{sXL}")
e(f"s_lshl_b32 s{sB}, s{sW}, 12")
e(f"s_add_u32 s{sU}, s{sA}, s{sB}")
e(f"s_add_u32 s{sF}, s{sU}, s{sXG}")
e(f"s_lshl_b32 s{sC}, s{sW}, 6")
e(f"v_xor_b32 v12, s{sC}, v11")
for i in range(1, 4): e(f"v_xor_b32 v{12+i}, {16*i}, v12")
e(f"s_lshl_b32 s{sC}, s{sRHO}, 12")
e(f"s_xor_b32 s{sC}, s{sC}, s{sB}")
e(f"s_add_u32 s{sB}, s{sB}, {WKB}")
e(f"v_mov_b32 v53, {SCR+128}")
e("v_mov_b32 v19, 0")
e("ds_write_b32 v53, v19 offset:4")
if cfg.cpf:
    e("s_getpc_b64 s[64:65]")
    a.label("L_pc")
    e(f"s_lshr_b32 s{sA}, s2, 3")
    e(f"s_lshl_b32 s{sA}, s{sA}, 10")
    e(f"s_min_u32 s{sA}, s{sA}, L_code_end-L_pc-1024")
    e(f"v_add_u32 v9, s{sA}, v{vL16}")
    e(f"s_cmp_eq_u32 s{sW}, 7")
    e("s_cbranch_scc0 L_nocpf")
    e("global_load_dwordx4 v[48:51], v9, s[64:65]")
    a.label("L_nocpf")
e(f"s_mov_b32 m0, s{sU}")
e("s_waitcnt lgkmcnt(0)")
stamp("entry")
e(f"s_mov_b32 s{rX}, s{pX}")
e(f"s_mov_b32 s{rX+1}, s{pX+1}")
e(f"s_mov_b32 s{rWQ}, s{pWQ}")
e(f"s_mov_b32 s{rWQ+1}, s{pWQ+1}")
e(f"s_cmp_ge_u32 s{sHG}, 4")
e(f"s_cselect_b32 s{rT2}, s{pWV}, s{pWK}")
e(f"s_cselect_b32 s{rT2+1}, s{pWV+1}, s{pWK+1}")
e(f"s_cmp_ge_u32 s{sW}, 4")
e("s_cbranch_scc1 L_p1hi")
for i in range(4): dma(12 + i, rX, f"s{sF}", 1024 * i)
e(f"s_mov_b32 m0, s{sB}")
e(f"s_load_dword s{sT}, s[{pWS}:{pWS+1}], {WS_EP}")
for i in range(4): dma(21, rT2, f"s{sC}", 1024 * i)
e(f"s_cmp_ge_u32 s{sW}, 2")
e("s_cbranch_scc1 L_p1end")
e(f"s_lshl_b32 s{sA}, s{sW}, 10")
e(f"s_add_u32 m0, s{sA}, {RGB}")
e(f"s_cmp_eq_u32 s{sW}, 1")
e(f"s_cselect_b32 s{rT1}, s{pGW}, s{pWR}")
e(f"s_cselect_b32 s{rT1+1}, s{pGW+1}, s{pWR+1}")
dma(11, rT1, "0")
a.label("L_p1end")
e("s_barrier")
e("s_branch L_setup")
a.label("L_p1hi")
e("s_barrier")
wq_steps(0, cfg.whi)
def x_dma(lo=0, hi=16):
    for i in range(lo, hi):
        if i % 4 == 0 or i == lo:
            e(f"s_add_u32 m0, s{sXL}, {XB_ + (i>>2)*4096}")
            e(f"s_add_u32 s{sF}, s{sXG}, m0")
        e(f"v_xor_b32 v7, {i<<4}, v11")
        dma(7, rX, f"s{sF}", (i & 3) * 1024)
a.label("L_setup")
xstamp(5, 5)
e(f"s_lshl_b32 s{sTG}, s{sGR}, 1")
e(f"s_add_u32 s{sTG}, s{sTG}, s{sOH}")
e(f"s_lshl_b32 s{sID}, s{sGR}, 3")
e(f"s_add_u32 s{sID}, s{sID}, s{sHG}")
e(f"s_mov_b32 s{sFB}, 0")
srd(rWS, pWS, WS_BYTES)
e(f"v_lshlrev_b32 v8, 2, v{vTK}")
e(f"v_add_u32 v8, {SCR}, v8")
e("ds_write_b32 v8, v19")
e("ds_write_b32 v8, v19 offset:1024")
e("ds_write_b32 v8, v19 offset:1088")
zero_slots(22)
srd(rWO, pWO, 524288)
srd(rOUT, pOUT, 2097152)
e(f"v_and_b32 v6, 11, v{vTK}")
e("v_cmp_eq_u32 vcc, 0, v6")
e("v_mov_b32 v7, 0x3f803f80")
e(f"v_cndmask_b32 v{V1}, 0, v7, vcc")
for i in range(1, 32): e(f"v_mov_b32 v{V1+i}, v{V1}")
xstamp(6, 5)
e(f"s_and_b32 s{sA}, s{sW}, 3")
e(f"s_lshr_b32 s{sB}, s{sW}, 2")
e(f"v_lshlrev_b32 v6, 3, v{vL}")
for k in range(5):
    if k < 4:
        e(f"s_add_u32 s{sC}, s{sA}, {k}")
        e(f"s_and_b32 s{sC}, s{sC}, 3")
        e(f"s_lshl_b32 s{sD}, s{sB}, 2")
    else:
        e(f"s_add_u32 s{sC}, s{sA}, 2")
        e(f"s_and_b32 s{sC}, s{sC}, 3")
        e(f"s_xor_b32 s{sD}, s{sB}, 1")
        e(f"s_lshl_b32 s{sD}, s{sD}, 2")
    e(f"s_add_u32 s{sC}, s{sC}, s{sD}")
    e(f"s_lshl_b32 s{sD}, s{sC}, 11")
    e(f"s_add_u32 s{sD}, s{sD}, {SLD}")
    e(f"v_add_u32 v{vAd+k}, s{sD}, v{vL16}")
    e(f"s_lshl_b32 s{sD}, s{sC}, 9")
    e(f"s_add_u32 s{sD}, s{sD}, {SLT}")
    e(f"v_add_u32 v{vAt+k}, s{sD}, v6")
e(f"s_lshl_b32 s{sA}, s{sA}, 1")
for k in range(4):
    e(f"s_xor_b32 s{sC}, s{sB}, {k}")
    e(f"s_add_u32 s{sC}, s{sC}, s{sA}")
    e(f"s_and_b32 s{sC}, s{sC}, 7")
    e(f"s_lshl_b32 s{sC}, s{sC}, 10")
    e(f"s_add_u32 s{sC}, s{sC}, {QB}")
    e(f"v_add_u32 v{vNq+k}, s{sC}, v{vL16}")
e(f"s_xor_b32 s{sC}, s{sB}, 7")
e(f"s_add_u32 s{sC}, s{sC}, s{sA}")
e(f"s_and_b32 s{sU}, s{sC}, 7")
xstamp(7, 5)
e(f"s_lshl_b32 s{sB}, s{sPB}, 14")
e(f"s_lshl_b32 s{sC}, s{sTH}, 15")
e(f"s_add_u32 s{sB}, s{sB}, s{sC}")
for q in range(4):
    e(f"v_add_u32 v6, {4*q}, v{vG}")
    e(f"v_xor_b32 v6, v6, v{vTK}")
    e("v_lshlrev_b32 v6, 4, v6")
    e(f"v_lshl_add_u32 v6, v{vTK}, 10, v6")
    e(f"v_add_u32 v{12+q}, s{sB}, v6")
e(f"v_lshrrev_b32 v8, 2, v{vTK}")
e(f"v_and_b32 v9, 3, v{vTK}")
e(f"v_and_b32 v6, 1, v{vG}")
e("v_lshlrev_b32 v6, 7, v6")
e(f"v_lshl_add_u32 v6, v{vG}, 8, v6")
e("v_lshl_add_u32 v6, v8, 5, v6")
e("v_lshl_add_u32 v6, v9, 3, v6")
e(f"v_add_u32 v16, {WKB}, v6")
e("v_xor_b32 v17, 128, v16")
e(f"v_and_b32 v6, 1, v{vTK}")
e("v_lshlrev_b32 v6, 10, v6")
e(f"v_lshl_add_u32 v6, v{vG}, 4, v6")
e(f"v_add_u32 v18, {RGB}, v6")
e(f"v_and_b32 v6, 1, v{vG}")
e("v_lshrrev_b32 v7, 1, v8")
e("v_lshl_or_b32 v6, v6, 1, v7")
e(f"s_and_b32 s{sA}, s{sW}, 3")
e(f"v_xor_b32 v6, s{sA}, v6")
e("v_lshlrev_b32 v6, 5, v6")
e("v_lshl_add_u32 v6, v9, 3, v6")
e(f"v_lshl_add_u32 v7, v{vG}, 3, v8")
e("v_lshl_add_u32 v6, v7, 7, v6")
e(f"v_add_u32 v26, {WB}, v6")
e(f"s_lshl_b32 s{sA}, s{sPB}, 4")
e(f"v_add_u32 v30, s{sA}, v{vTK}")
e("v_mov_b32 v27, v30")
e(f"v_lshrrev_b32 v6, 1, v{vG}")
e("v_lshlrev_b32 v6, 9, v6")
e(f"v_and_b32 v7, 1, v{vG}")
e("v_lshl_add_u32 v6, v7, 3, v6")
e(f"s_and_b32 s{sA}, s{sW}, 3")
e(f"s_lshl_b32 s{sA}, s{sA}, 1")
e(f"s_add_u32 s{sA}, s{sA}, s{sTH}")
e(f"s_lshl_b32 s{sA}, s{sA}, 10")
e(f"s_add_u32 s{sA}, s{sA}, {QB}")
e(f"v_add_u32 v6, s{sA}, v6")
e("v_lshl_add_u32 v28, v30, 4, v6")
e("v_xor_b32 v29, 256, v28")
e("v_lshlrev_b32 v30, 2, v30")
e(f"v_add_u32 v30, {QN2}, v30")
e("v_xor_b32 v31, 64, v30")
e(f"v_and_b32 v6, 31, v{vL}")
e(f"v_lshrrev_b32 v7, 5, v{vL}")
e(f"v_lshlrev_b32 v{PP}, 5, v6")
e(f"v_lshl_add_u32 v{PP}, v7, 4, v{PP}")
e(f"v_lshlrev_b32 v{PP+2}, 2, v6")
e(f"v_add_u32 v{PP+2}, {QN2}, v{PP+2}")
e(f"v_lshlrev_b32 v{PP+3}, 7, v6")
e("v_mov_b32 v52, 1")
def x_read(dst, S): e(f"ds_read_b128 {v(dst,4)}, v{12+(S&3)} offset:{(S>>2)*256}")
def xb_flip():
    for q in range(4): e(f"v_xor_b32 v{12+q}, 0x4000, v{12+q}")
ACC0 = QF; ACC1 = PP + 4
def rg_chain(X, acc):
    for S in range(5): e(f"ds_read_b128 {v(32+4*(S%5),4)}, v18 offset:{S*64}")
    for S in range(16):
        left = min(S + 5, 16) - (S + 1)
        e(f"s_waitcnt lgkmcnt({left})")
        mf16(acc, 32 + 4 * (S % 5), X + 4 * S, "0" if S == 0 else v(acc, 4))
        if S + 5 < 16: e(f"ds_read_b128 {v(32+4*(S%5),4)}, v18 offset:{(S+5)*64}")
def g_store(acc, flip):
    e("v_lshlrev_b32 v6, 2, v27")
    if flip: e("v_xor_b32 v6, 64, v6")
    e(f"v_add_u32 v6, {GB_}, v6")
    round_bf16(acc + 1)
    sigmoid(acc + 1)
    round_bf16(acc + 1)
    e(f"ds_write_b32 v6, v{acc+1}")
def side_addr(ffn):
    e(f"s_and_b32 s{sA}, s{sW}, 1")
    e(f"s_lshl_b32 s{sA}, s{sA}, 3")
    e(f"v_lshlrev_b32 v10, 1, v{vG}")
    e(f"v_or_b32 v10, s{sA}, v10")
    e(f"v_xor_b32 v10, v10, v{vTK}")
    e("v_lshlrev_b32 v10, 4, v10")
    e(f"v_lshl_add_u32 v10, v{vG}, 10, v10")
    e(f"s_lshr_b32 s{sA}, s{sHG}, 1")
    e(f"s_lshl_b32 s{sA}, s{sA}, 8")
    e(f"v_add_u32 v10, s{sA}, v10")
    if not ffn: return
    e(f"s_movk_i32 s{sA}, 3584")
    e(f"v_mul_lo_u32 v11, v{vL}, s{sA}")
    e(f"s_lshl_b32 s{sA}, s{sF0}, 1")
    e(f"v_add_u32 v11, s{sA}, v11")
    e("v_mul_u32_u24 v16, 1088, v8")
    e(f"v_lshl_add_u32 v16, v{vG}, 5, v16")
    e("v_lshl_add_u32 v16, v9, 3, v16")
    e(f"v_add_u32 v16, {FB}, v16")
    e(f"v_cmp_eq_u32 vcc, v8, v{vG}")
    e(f"v_mov_b32 v6, {ZV}")
    e(f"v_mov_b32 v7, {HV}")
    e("v_cndmask_b32 v17, v6, v7, vcc")
    e(f"v_lshl_add_u32 v0, v{vG}, 2, v{vTK}")
    e("v_lshl_add_u32 v0, v0, 1, v7")
    e("v_lshrrev_b32 v6, 1, v9")
    e(f"v_mul_u32_u24 v6, {F_U-F_G}, v6")
    e("v_and_b32 v7, 1, v9")
    e("v_lshl_add_u32 v6, v7, 3, v6")
    e(f"v_lshl_add_u32 v7, v{vG}, 3, v8")
    e("v_lshl_add_u32 v8, v7, 4, v6")
    e(f"v_add_u32 v8, {FB}, v8")
    e(f"v_lshlrev_b32 v9, 4, v{vG}")
    e(f"v_add_u32 v9, {FB}, v9")
def p1_arrive():
    e("s_mov_b64 exec, 1")
    e("ds_add_u32 v53, v52 offset:4")
    e("s_mov_b64 exec, -1")
def p1_wait():
    Lw = L("p1w")
    a.label(Lw)
    e("ds_read_b32 v7, v53 offset:4")
    e("s_waitcnt lgkmcnt(0)")
    e("v_cmp_ne_u32 vcc, 4, v7")
    e("s_nop 1")
    e(f"s_cbranch_vccnz {Lw}")
WR = (32, 36, 40, 44, 48)
PR = XBr; P0 = CM + 8
def poll_load(): e(f"buffer_load_dwordx4 {v(PR,4)}, v{PP+3}, {s(rWS,4)}, s{sD} offen sc1")
def q_loop(both):
    n = 4 if both else 3
    D = 3 if both else 4
    def qrd(S):
        w = WR[S % 5]
        if both: e(f"ds_read_b128 {v(XA+4*S,4)}, v{20+(S&3)} offset:{(S>>2)*256}")
        x_read(XBr + 4 * S, S)
        e(f"ds_read_b64_tr_b16 {v(w,2)}, v26 offset:{S*4096}")
        e(f"ds_read_b64_tr_b16 {v(w+2,2)}, v26 offset:{S*4096+512}")
    e("ds_read_b32 v52, v53")
    for S in range(D): qrd(S)
    e(f"s_lshl_b32 s{sD}, s{sW}, 12")
    e(f"s_add_u32 s{sD}, s{sD}, {WS_REC}")
    for S in range(16):
        if S + D == cfg.chunk:
            if both: vmw(0)
            e("s_barrier")
        if S + D < 16: qrd(S + D)
        left = min(S + D + 1, 16) - (S + 1)
        e(f"s_waitcnt lgkmcnt({n*left})")
        w = WR[S % 5]
        mf16(ACC0, w, XA + 4 * S, "0" if S == 0 else v(ACC0, 4))
        mf16(ACC1, w, XBr + 4 * S, "0" if S == 0 else v(ACC1, 4))
        if S == cfg.pollat: poll_load()
        if S == cfg.pollat0: e(f"buffer_load_dwordx4 {v(P0,4)}, v{PP+3}, {s(rWS,4)}, s{sD} offen sc1")
xstamp(8, 5)
e(f"s_cmp_ge_u32 s{sW}, 4")
e("s_cbranch_scc1 L_2hi")
e(f"s_cmp_eq_u32 s{sW}, 0")
e("s_cbranch_scc0 L_2lo")
e(f"s_lshl_b32 s{sB}, s{sID}, 8")
e(f"s_add_u32 s{sB}, s{sB}, {WS_Y}")
e(f"buffer_store_dword v19, v{vL4}, {s(rWS,4)}, s{sB} offen sc1")
e("v_lshlrev_b32 v6, 5, v27")
e(f"v_lshl_add_u32 v6, v{vG}, 3, v6")
e(f"v_and_b32 v20, 1, v{vG}")
e("v_lshlrev_b32 v20, 9, v20")
e(f"v_lshl_add_u32 v20, v{vTK}, 4, v20")
e(f"v_lshrrev_b32 v7, 1, v{vG}")
e("v_lshl_add_u32 v20, v7, 3, v20")
e(f"s_lshl_b32 s{sB}, s{sPB}, 8")
e(f"s_add_u32 s{sB}, s{sB}, {WS_V}")
e(f"v_add_u32 v20, s{sB}, v20")
e(f"s_lshl_b32 s{sA}, s{sTG}, 10")
e(f"s_cmp_ge_u32 s{sHG}, 4")
e("s_cselect_b64 s[22:23], -1, 0")
e("v_cndmask_b32 v6, v6, v20, s[22:23]")
def kv_reads(S):
    x_read(XA + 4 * S, S)
    w = 32 + 4 * (S % 5)
    e(f"ds_read_b64_tr_b16 {v(w,2)}, v16 offset:{S*1024}")
    e(f"ds_read_b64_tr_b16 {v(w+2,2)}, v17 offset:{S*1024}")
vmw(1)
xstamp(9, 5)
p1_arrive()
p1_wait()
xstamp(12); xstamp(10, 5)
for S in range(4): kv_reads(S)
for S in range(16):
    if S + 4 < 16: kv_reads(S + 4)
    left = min(S + 5, 16) - (S + 1)
    e(f"s_waitcnt lgkmcnt({3*left})")
    w = 32 + 4 * (S % 5)
    mf16(ACC0, w, XA + 4 * S, "0" if S == 0 else v(ACC0, 4))
    mf16(ACC1, XA + 4 * S, w, "0" if S == 0 else v(ACC1, 4))
xb_flip()
for i in range(4): e(f"v_cndmask_b32 v{ACC1+i}, v{ACC0+i}, v{ACC1+i}, s[22:23]")
e(f"v_cvt_pk_bf16_f32 v20, v{ACC1}, v{ACC1+1}")
e(f"v_cvt_pk_bf16_f32 v21, v{ACC1+2}, v{ACC1+3}")
e(f"buffer_store_dwordx2 v[20:21], v6, {s(rWS,4)}, s{sA} offen sc1")
xstamp(13)
rg_chain(XA, ACC1)
e(f"v_mul_f32 v23, v{ACC0}, v{ACC0}")
for i in range(1, 4): e(f"v_fmac_f32 v23, v{ACC0+i}, v{ACC0+i}")
sum_over_g(23, 22)
row_max(23)
e("v_cndmask_b32 v23, v23, v19, s[22:23]")
e(f"s_lshl_b32 s{sA}, s{sTG}, 5")
e(f"v_add_u32 v6, s{sA}, v27")
e(f"s_mul_i32 s{sT}, s{sT}, 0x9e3779b9")
e(f"s_add_u32 s{sT}, s{sT}, 0x7f4a7c15")
e(f"v_mov_b32 v22, s{sT}")
e(f"v_mov_b32 v24, s{sT}")
e("ds_write_b32 v53, v22")
e(f"s_lshl_b32 s{sB}, s{sID}, 7")
e(f"s_add_u32 s{sB}, s{sB}, {WS_REC}")
round_bf16(ACC1)
e(f"v_ashrrev_i32 v25, 31, v{ACC1}")
e("v_or_b32 v25, 0x80000000, v25")
e(f"v_xor_b32 v25, v25, v{ACC1}")
e("v_and_b32 v25, 0xffff0000, v25")
e("v_or_b32 v25, v25, v6")
row_max(25)
e("s_mov_b64 exec, 1")
vmw(0)
e(f"buffer_store_dwordx4 v[22:25], v19, {s(rWS,4)}, s{sB} offen sc1")
e("s_mov_b64 exec, -1")
xstamp(14)
round_bf16(ACC1 + 1)
sigmoid(ACC1 + 1)
round_bf16(ACC1 + 1)
e("v_lshlrev_b32 v6, 2, v6")
e(f"s_mov_b32 s{sB}, {WS_G}")
e("s_mov_b64 exec, 0xffff")
e(f"buffer_store_dword v{ACC1+1}, v6, {s(rWS,4)}, s{sB} offen sc1")
e("s_mov_b64 exec, -1")
side_addr(False)
e("s_waitcnt lgkmcnt(0)")
e("s_branch L_B1lo")
a.label("L_2hi")
xstamp(12)
wq_steps(cfg.whi, 16)
for q in range(4): e(f"v_mov_b32 v{20+q}, v{12+q}")
xb_flip()
xstamp(13); xstamp(9, 5)
e(f"s_waitcnt vmcnt({16-cfg.chunk}) lgkmcnt(0)")
xstamp(14); xstamp(10, 5)
e("s_branch L_qhi")
a.label("L_2lo")
x_dma(0, cfg.narr)
vmw(cfg.narr)
xstamp(12); xstamp(9, 5)
p1_arrive()
x_dma(cfg.narr, 16)
p1_wait()
for S in range(16): x_read(XA + 4 * S, S)
xb_flip()
side_addr(True)
xstamp(13)
vmw(0)
xstamp(14); xstamp(10, 5)
a.label("L_B1lo")
e("s_barrier")
stamp("B1a")
q_loop(False)
e("s_branch L_qend")
a.label("L_qhi")
if cfg.stamps in (1, 3): STAMPS.pop()
e("s_barrier")
stamp("B1a")
q_loop(True)
a.label("L_qend")
e(f"s_lshl_b32 s{sA}, s{sW}, 13")
e(f"s_add_u32 s{sB}, s{sA}, {WS_V}")
e(f"s_add_u32 s{sE}, s{sA}, 4096")
e(f"s_add_u32 s{sF}, s{sB}, 4096")
e(f"s_mov_b32 s{sSPIN}, 0")
e(f"v_readfirstlane_b32 s{sT}, v52")
stamp("qdone")
if cfg.pollat0 >= 0:
    vmw(1)
    e(f"v_xor_b32 v6, s{sT}, v{P0}")
    e(f"v_xor_b32 v7, s{sT}, v{P0+2}")
    e("v_or_b32 v6, v6, v7")
    e("v_cmp_ne_u32 vcc, 0, v6")
    e("s_nop 1")
    e("s_cbranch_vccz L_pollok")
a.label("L_poll")
e("s_waitcnt vmcnt(0)")
e(f"v_xor_b32 v6, s{sT}, v{PR}")
e(f"v_xor_b32 v7, s{sT}, v{PR+2}")
e("v_or_b32 v6, v6, v7")
e("v_cmp_ne_u32 vcc, 0, v6")
e(f"s_add_u32 s{sSPIN}, s{sSPIN}, 1")
e(f"s_cmp_gt_u32 s{sSPIN}, {cfg.spin}")
e("s_cbranch_scc1 L_pollout")
e("s_cbranch_vccz L_pollout")
if cfg.psleep: e(f"s_sleep {cfg.psleep}")
poll_load()
e("s_branch L_poll")
a.label("L_pollout")
if cfg.pollat0 >= 0:
    e(f"v_mov_b32 v{P0+1}, v{PR+1}")
    e(f"v_mov_b32 v{P0+3}, v{PR+3}")
    a.label("L_pollok")
    PR = P0
stamp("polled")
def kv_load(j):
    e(f"buffer_load_dwordx4 {v(KF+4*j,4)}, v{PP}, {s(rWS,4)}, s{sA if j<4 else sE} offen offset:{(j&3)*1024} sc1")
    e(f"buffer_load_dwordx4 {v(V0+4*j,4)}, v{vL16}, {s(rWS,4)}, s{sB if j<4 else sF} offen offset:{(j&3)*1024} sc1")
e(f"s_cmp_ge_u32 s{sW}, 4")
e("s_cbranch_scc1 L_kvl1")
for j in range(cfg.kv1): kv_load(j)
a.label("L_kvl1")
e(f"s_mov_b32 s{sC}, 0x{f2u(CSCALE):08x}")
for hf, acc in ((0, ACC0), (1, ACC1)):
    for i in range(4): e(f"v_mul_f32 v{acc+i}, s{sC}, v{acc+i}")
    e(f"v_cvt_pk_bf16_f32 v{20+2*hf}, v{acc}, v{acc+1}")
    e(f"v_cvt_pk_bf16_f32 v{21+2*hf}, v{acc+2}, v{acc+3}")
    e(f"ds_write_b64 v{28+hf}, {v(20+2*hf,2)}")
    e(f"v_mul_f32 v{24+hf}, v{acc}, v{acc}")
    for i in range(1, 4): e(f"v_fmac_f32 v{24+hf}, v{acc+i}, v{acc+i}")
e("v_mov_b32 v6, v24")
e("v_mov_b32 v7, v25")
e(f"v_max_u32_dpp v{PR+1}, v{PR+1}, v{PR+1} row_ror:8 row_mask:0xf bank_mask:0xf")
e(f"v_max_u32_dpp v{PR+3}, v{PR+3}, v{PR+3} row_ror:8 row_mask:0xf bank_mask:0xf")
e("v_permlane32_swap_b32 v24, v6")
e("v_permlane32_swap_b32 v25, v7")
e(f"v_max_u32_dpp v{PR+1}, v{PR+1}, v{PR+1} row_ror:4 row_mask:0xf bank_mask:0xf")
e(f"v_max_u32_dpp v{PR+3}, v{PR+3}, v{PR+3} row_ror:4 row_mask:0xf bank_mask:0xf")
e("v_add_f32 v24, v24, v6")
e("v_add_f32 v25, v25, v7")
e(f"v_max_u32_dpp v{PR+1}, v{PR+1}, v{PR+1} row_ror:2 row_mask:0xf bank_mask:0xf")
e(f"v_max_u32_dpp v{PR+3}, v{PR+3}, v{PR+3} row_ror:2 row_mask:0xf bank_mask:0xf")
e("v_mov_b32 v6, v24")
e("v_mov_b32 v7, v25")
e(f"v_max_u32_dpp v{PR+1}, v{PR+1}, v{PR+1} row_ror:1 row_mask:0xf bank_mask:0xf")
e(f"v_max_u32_dpp v{PR+3}, v{PR+3}, v{PR+3} row_ror:1 row_mask:0xf bank_mask:0xf")
e("v_permlane16_swap_b32 v24, v6")
e("v_permlane16_swap_b32 v25, v7")
e(f"v_mov_b32 v18, {SCR}")
e("v_add_f32 v24, v24, v6")
e("v_add_f32 v25, v25, v7")
e("s_mov_b64 exec, 0xffff")
e("ds_max_u32 v30, v24")
e("ds_max_u32 v31, v25")
e("s_mov_b64 exec, 0x10001")
e(f"ds_max_u32 v18, v{PR+1} offset:8")
e(f"ds_max_u32 v18, v{PR+3} offset:12")
e("s_mov_b64 exec, -1")
e("s_waitcnt lgkmcnt(0)")
stamp("prepoll")
e("s_barrier")
stamp("B6")
e("ds_read_b64 v[6:7], v18 offset:8")
e(f"ds_read_b32 v19, v{PP+2}")
e(f"ds_read_b128 {v(QF,4)}, v{vNq}")
e(f"s_cmp_ge_u32 s{sW}, 4")
e("s_cbranch_scc0 L_kvl2")
for j in range(cfg.kv1): kv_load(j)
a.label("L_kvl2")
for j in range(cfg.kv1, 8): kv_load(j)
e("s_waitcnt lgkmcnt(1)")
e("v_mul_f32 v19, v19, v6")
e("v_sqrt_f32 v19, v19")
e(f"v_readfirstlane_b32 s{sA}, v7")
e(f"v_mul_f32 v{CM}, 0x{f2u(-1.02 * (8.0 if cfg.force_fallback else 1.0)):08x}, v19")
for i in range(1, 16): e(f"v_mov_b32 v{CM+i}, v{CM}")
e(f"s_and_b32 s{sSEL}, s{sA}, 0x7ff")
e(f"s_lshr_b32 s{sC}, s{sSEL}, 5")
e(f"s_cmp_eq_u32 s{sC}, s{sTG}")
e(f"s_cselect_b32 s{sOWN}, 1, 0")
e(f"s_and_b32 s{sR16}, s{sA}, 0xffff0000")
e(f"s_lshl_b32 s{sHK}, s{sOWN}, 7")
e(f"s_cmp_lt_u32 s{sW}, 4")
e(f"s_cselect_b32 s{sC}, 0x22, 0")
e(f"s_or_b32 s{sHK}, s{sHK}, s{sC}")
e(f"s_cmp_eq_u32 s{sW}, 0")
e(f"s_cselect_b32 s{sC}, 0x48, 0")
e(f"s_or_b32 s{sHK}, s{sHK}, s{sC}")
e(f"s_cmp_eq_u32 s{sW}, {FW}")
e(f"s_cselect_b32 s{sC}, 8, 0")
e(f"s_or_b32 s{sHK}, s{sHK}, s{sC}")
stamp("kviss")
e("s_branch L_attn1")

a.label("L_attn")
e(f"ds_read_b128 {v(QF,4)}, v{vNq}")
a.label("L_attn1")
e(f"v_mov_b32 v52, {GOW}")
e(f"s_mov_b32 s{sIT}, 0")
e(f"s_cmp_eq_u32 s{sFB}, 0")
e("s_cbranch_scc0 L_fbc_0")
a.label("L_fbr_0")
if cfg.prio: e("s_setprio 3")
vmw(15)
e("s_waitcnt lgkmcnt(0)")
mf32(S0, KF, QF, v(CM, 16))
stamp("K0")
STUBS = []
a.strict = True
for st in range(8):
    O = (O0, O1)[st & 1]; Op = (O1, O0)[st & 1]
    k = st & 3
    for j in range(8):
        t = st * 8 + j
        Sc = (S0, S1)[t & 1]; Sn = (S1, S0)[t & 1]
        jn = (j + 1) & 7
        def ex(p):
            e(f"v_exp_f32 v{Sc+2*p}, v{Sc+2*p}")
            e(f"v_exp_f32 v{Sc+2*p+1}, v{Sc+2*p+1}")
        def cv(p): e(f"v_cvt_pk_bf16_f32 v{PP+p}, v{Sc+2*p}, v{Sc+2*p+1}")
        def init_reads():
            kk = k if st < 7 else 4
            e(f"ds_read_b64 {v(Op+8,2)}, v{vAt+kk}")
            e(f"ds_read_b128 {v(Op,4)}, v{vAd+kk}")
            e(f"ds_read_b128 {v(Op+4,4)}, v{vAd+kk} offset:1024")
            if st == 7: e("ds_read_b32 v53, v52")
        if j == 7:
            e("s_waitcnt lgkmcnt(0)")
            if st == 7: e(f"v_mul_u32_u24 v{Op+9}, v53, v{Op+9}")
            if st > 0: e(f"v_cmp_ne_u32 vcc, {st}, v{Op+9}")
            if st < 7:
                e(f"s_cmp_eq_u32 s{sFB}, 0")
                e(f"s_cbranch_scc0 L_fbc_{st+1}")
            else:
                e("s_nop 1")
            a.label(f"L_fbr_{st+1}")
            if st > 0: e(f"s_cbranch_vccnz L_retry_{st}")
            a.label(f"L_ok_{st}")
            stamp(f"st{st}", (2,))
            if st > 0: STUBS.append((st, Op, k if st < 7 else 4))
            if cfg.prio and st in (1, 3, 5): e(f"s_setprio {3 - (st + 1) // 2}")
        def smf():
            if st == 0 and j < 7: vmw(15 - 2 * jn)
            if not (st == 7 and j == 7):
                mf32(Sn, KF + 4 * jn, QF, v(CM, 16))
        def pv1():
            if j == 0:
                if st > 0: mf32(Op, V1 + 4 * 7, PP + 4, v(Op, 16))
            else: mf32(O, V1 + 4 * (j - 1), PP + 4, v(O, 16))
        def side():
            if st == 0:
                if j == 7: vmw(0)
                for i in range(4): e(f"v_permlane16_swap_b32 v{V0+4*j+i}, v{V1+4*j+i}")
            if j == 6 and st < 7:
                kn = (st + 1) & 3
                if st + 1 >= 4: e(f"v_xor_b32 v{vNq+kn}, 4096, v{vNq+kn}")
                e(f"ds_read_b128 {v(QF,4)}, v{vNq+kn}")
            if j == 5 and st > 0: init_reads()
        if t == 0:
            e("s_nop 7"); e("s_nop 3")
        ex(0); pv1(); ex(1); ex(2); cv(0); smf(); ex(3); cv(1); ex(4); cv(2); ex(5); cv(3); side(); ex(6)
        mf32(O, V0 + 4 * j, PP, "0" if (j == 0 and st < 2) else v(O, 16))
        cv(4); ex(7); cv(5); cv(6); cv(7)
        if j == 0 and st > 0:
            kp = (st - 1) & 3
            e(f"v_mov_b32 v{Op+9}, {st}")
            e(f"ds_write_b128 v{vAd+kp}, {v(Op,4)}")
            e(f"ds_write_b128 v{vAd+kp}, {v(Op+4,4)} offset:1024")
            e(f"ds_write_b64 v{vAt+kp}, {v(Op+8,2)}")
            if st in (1, 3, 5, 6, 7):
                e(f"s_bitcmp1_b32 s{sHK}, {st}")
                e(f"s_cbranch_scc1 L_hook{st}")
                a.label(f"L_hret{st}")
a.strict = False
mf32(O1, V1 + 4 * 7, PP + 4, v(O1, 16))
if cfg.prio: e("s_setprio 3")
e(f"s_and_b32 s{sB}, s{sU}, 1")
e(f"s_lshl_b32 s{sB}, s{sB}, 15")
e(f"s_lshr_b32 s{sC}, s{sU}, 1")
e(f"s_lshl_b32 s{sC}, s{sC}, 10")
e(f"s_add_u32 s{sB}, s{sB}, s{sC}")
e(f"s_lshl_b32 s{sA}, s{sGR}, 16")
e(f"s_add_u32 s{sB}, s{sB}, s{sA}")
e(f"s_lshl_b32 s{sC}, s{sHG}, 12")
e(f"s_add_u32 s{sB}, s{sB}, s{sC}")
e(f"s_add_u32 s{sB}, s{sB}, {WS_O}")
stamp("loopend")
e(f"v_add_f32 v{O1+8}, v{O1+8}, v{O0+8}")
for r in range(8): e(f"v_add_f32 v{O1+r}, v{O1+r}, v{O0+r}")
e(f"v_rcp_f32 v51, v{O1+8}")
e(f"v_cmp_gt_f32 vcc, 0x{f2u(2.0**-80):08x}, v{O1+8}")
for r in range(8): e(f"v_mul_f32 v{O1+r}, v{O1+r}, v51")
for r in range(4):
    e(f"v_cvt_pk_bf16_f32 v{PP+r}, v{O1+2*r}, v{O1+2*r+1}")
for r in range(4): e(f"v_min_u32 v{PP+r}, -2, v{PP+r}")
e(f"s_cmp_eq_u32 s{sFB}, 0")
e("s_cbranch_scc0 L_pub")
e("s_cbranch_vccz L_pub")
e(f"v_mov_b32 v50, {FBF}")
e("v_mov_b32 v51, 1")
e("ds_write_b32 v50, v51")
e("s_branch L_nopub")
a.label("L_pub")
e(f"buffer_store_dwordx4 {v(PP,4)}, v{vL16}, {s(rWS,4)}, s{sB} offen sc1")
a.label("L_nopub")
stamp("opub")
e(f"s_lshl_b32 s{sF}, s{sTG}, 15")
e(f"s_lshl_b32 s{sD}, s{sW}, 12")
e(f"s_add_u32 s{sA}, s{sF}, s{sD}")
e(f"s_add_u32 s{sA}, s{sA}, {WS_O}")
e(f"s_lshr_b32 s{sB}, s{sHG}, 1")
e(f"s_lshl_b32 s{sB}, s{sB}, 8")
e(f"s_add_u32 s{sF}, s{sF}, s{sB}")
e(f"s_lshl_b32 s{sB}, s{sW}, 5")
e(f"s_add_u32 s{sF}, s{sF}, s{sB}")
e(f"s_add_u32 s{sE}, s{sF}, 16384")
e(f"v_lshlrev_b32 v40, 10, v{vTK}")
e(f"v_lshl_add_u32 v40, v{vG}, 3, v40")
e(f"buffer_load_dwordx2 v[42:43], v40, {s(rX,4)}, s{sF} offen")
e(f"buffer_load_dwordx2 v[44:45], v40, {s(rX,4)}, s{sE} offen")
e(f"v_lshlrev_b32 v41, 2, v{vTK}")
e(f"s_lshl_b32 s{sB}, s{sTG}, 7")
e(f"s_add_u32 s{sB}, s{sB}, {WS_G}")
e(f"buffer_load_dword v48, v41, {s(rWS,4)}, s{sB} offen sc1")
e(f"buffer_load_dword v49, v41, {s(rWS,4)}, s{sB} offen offset:64 sc1")
def gather():
    for k in range(4):
        e(f"buffer_load_dwordx4 {v(S0+4*k,4)}, v{vL16}, {s(rWS,4)}, s{sA} offen offset:{k*1024} sc1")
T = CM
e(f"v_lshrrev_b32 v{T+2}, 2, v{vTK}")
e(f"v_and_b32 v{T+3}, 3, v{vTK}")
e(f"v_and_b32 v{T}, 1, v{vG}")
e(f"v_lshl_or_b32 v{T}, v{T}, 2, v{T+2}")
e(f"v_lshrrev_b32 v{T+1}, 1, v{vG}")
e(f"v_lshl_add_u32 v{T+1}, v{T+1}, 4, v{T}")
e(f"v_xor_b32 v{T}, s{sW}, v{T}")
e(f"v_lshlrev_b32 v{T}, 5, v{T}")
e(f"v_lshl_add_u32 v{T}, v{T+3}, 3, v{T}")
e(f"v_lshl_add_u32 v{T}, v{T+1}, 8, v{T}")
e(f"v_add_u32 v{T+1}, 0x10000, v{T}")
e(f"v_mov_b32 v50, {FBF}")
e(f"v_add_u32 v46, s{sD}, v{vL16}")
e(f"v_lshrrev_b32 v{T+6}, 1, v{vG}")
e(f"v_lshlrev_b32 v{T+6}, 10, v{T+6}")
e(f"v_and_b32 v{T+7}, 1, v{vG}")
e(f"v_lshl_add_u32 v{T+6}, v{T+7}, 9, v{T+6}")
e(f"v_lshl_add_u32 v{T+6}, v{vTK}, 4, v{T+6}")
e("s_waitcnt vmcnt(5) lgkmcnt(0)")
e("s_barrier")
stamp("B8")
e("ds_read_b32 v51, v50")
if cfg.gearly: gather()
e("s_waitcnt lgkmcnt(0)")
e(f"v_readfirstlane_b32 s{sC}, v51")
e(f"s_cmp_gt_u32 s{sC}, s{sFB}")
e("s_cbranch_scc1 L_fallback")
WF = 64
for S in range(16):
    b = T if S < 8 else T + 1; o = (S & 7) * 8192
    e(f"ds_read_b64_tr_b16 {v(WF+4*S,2)}, v{b} offset:{o}")
    e(f"ds_read_b64_tr_b16 {v(WF+4*S+2,2)}, v{b} offset:{o+2048}")
if not cfg.gearly: gather()
e(f"s_mov_b32 s{sSPIN}, 0")
e("s_waitcnt lgkmcnt(0)")
e("s_barrier")
e(f"s_cmp_eq_u32 s{sOWN}, 1")
e("s_cbranch_scc0 L_noy")
for k in range(1, NREP):
    for i in range(4): e(f"v_add_f32 v{8+i}, v{8+i}, v{8+4*k+i}")
e(f"v_mov_b32 v52, s{sR16}")
e("v_ashrrev_i32 v53, 31, v52")
e("v_not_b32 v53, v53")
e("v_or_b32 v53, 0x80000000, v53")
e("v_xor_b32 v52, v52, v53")
e("v_and_b32 v52, 0xffff0000, v52")
sigmoid(52)
round_bf16(52)
for i in range(4):
    round_bf16(8 + i)
    e(f"v_mul_f32 v{8+i}, v{8+i}, v52")
    round_bf16(8 + i)
a.label("L_noy")
e(f"s_and_b32 s{sC}, s{sSEL}, 31")
e(f"s_cmp_eq_u32 s{sOWN}, 1")
e(f"s_cselect_b32 s{sC}, s{sC}, 64")
vmw(4)
for th in range(2):
    xr = 42 + 2 * th; gt = 48 + th; X = V1 + 4 * th
    e(f"v_add_u32 v51, {16*th}, v{vTK}")
    e(f"v_cmp_eq_u32 vcc, s{sC}, v51")
    e(f"v_lshlrev_b32 v{X}, 16, v{xr}")
    e(f"v_and_b32 v{X+1}, 0xffff0000, v{xr}")
    e(f"v_lshlrev_b32 v{X+2}, 16, v{xr+1}")
    e(f"v_and_b32 v{X+3}, 0xffff0000, v{xr+1}")
    e(f"v_sub_f32 v52, 1.0, v{gt}")
    for i in range(4):
        e(f"v_cndmask_b32 v53, 0, v{8+i}, vcc")
        e(f"v_add_f32 v{X+i}, v{X+i}, v53")
        e(f"v_mul_f32 v{X+i}, v{X+i}, v52")
a.label("L_opoll")
e("s_waitcnt vmcnt(0)")
e(f"v_max3_u32 v{T+8}, v{S0}, v{S0+1}, v{S0+2}")
for r in range(3, 15, 2):
    e(f"v_max3_u32 v{T+8}, v{T+8}, v{S0+r}, v{S0+r+1}")
e(f"v_max_u32 v{T+8}, v{T+8}, v{S0+15}")
e(f"v_cmp_eq_u32 vcc, -1, v{T+8}")
e(f"s_add_u32 s{sSPIN}, s{sSPIN}, 1")
e(f"s_cmp_gt_u32 s{sSPIN}, {cfg.spin}")
e("s_cbranch_scc1 L_opollout")
e("s_cbranch_vccz L_opollout")
gather()
e("s_branch L_opoll")
a.label("L_opollout")
for k in range(4):
    e(f"ds_write_b128 v46, {v(S0+4*k,4)} offset:{k*1024}")
if cfg.stamps == 1: e(f"s_mov_b32 s{sST+15}, s{sSPIN}")
e("s_waitcnt lgkmcnt(0)")
e("s_barrier")
stamp("ogath")
OFR = 128
AC = O1
def o_reads(S):
    for th in range(2):
        e(f"ds_read_b128 {v(OFR+8*(S%6)+4*th,4)}, v{T+6} offset:{S*2048+th*256}")
for S in range(5): o_reads(S)
for S in range(16):
    left = min(S + 5, 16) - (S + 1)
    e(f"s_waitcnt lgkmcnt({2*left})")
    for th in range(2):
        mf16(AC + 4 * th, WF + 4 * S, OFR + 8 * (S % 6) + 4 * th, "0" if S == 0 else v(AC + 4 * th, 4))
    if S + 5 < 16: o_reads(S + 5)
for th in range(2):
    acc = AC + 4 * th; gt = 48 + th; X = V1 + 4 * th
    for i in range(4):
        e(f"v_fmac_f32 v{X+i}, v{acc+i}, v{gt}")
    e(f"v_cvt_pk_bf16_f32 v{V1+8+2*th}, v{X}, v{X+1}")
    e(f"v_cvt_pk_bf16_f32 v{V1+9+2*th}, v{X+2}, v{X+3}")
    e(f"buffer_store_dwordx2 {v(V1+8+2*th,2)}, v40, {s(rOUT,4)}, s{(sF,sE)[th]} offen")
e(f"s_or_b32 s{sA}, s2, s{sW}")
e("s_cbranch_scc1 L_nobump")
e("v_mov_b32 v6, 0")
e(f"v_mov_b32 v7, s{sT}")
e(f"s_mov_b32 s{sA}, {WS_EP}")
e(f"buffer_store_dword v7, v6, {s(rWS,4)}, s{sA} offen")
a.label("L_nobump")
if cfg.hold == 1: stamp("end")
if cfg.stamps:
    stamp("stored")
    e("s_waitcnt vmcnt(0)")
    stamp("end")
    if cfg.dbgwg >= 0:
        e(f"s_cmp_eq_u32 s2, {cfg.dbgwg}")
        e("s_cbranch_scc0 L_end")
        e(f"s_cmp_eq_u32 s{sW}, {cfg.dbgwave}")
        e("s_cbranch_scc0 L_end")
        e("v_mov_b32 v6, 0")
        srd(rDBG, pDBG, 256)
        for i in range(1, 16): e(f"s_sub_u32 s{sST+i}, s{sST+i}, s{sST}")
        for q in range(4):
            for i in range(4): e(f"v_mov_b32 v{8+i}, s{sST+4*q+i}")
            e(f"buffer_store_dwordx4 v[8:11], v6, {s(rDBG,4)}, 0 offen offset:{16*q}")
            e("s_nop 1")
    else:
        a.label("L_dump")
        e(f"s_lshl_b32 s{sA}, s2, 3")
        e(f"s_add_u32 s{sA}, s{sA}, s{sW}")
        e(f"s_lshl_b32 s{sA}, s{sA}, 6")
        e(f"s_add_u32 s{sA}, s{sA}, {WS_STAMP}")
        e("v_mov_b32 v6, 0")
        for q in range(4):
            for i in range(4): e(f"v_mov_b32 v{8+i}, s{sST+4*q+i}")
            e(f"buffer_store_dwordx4 v[8:11], v6, {s(rWS,4)}, s{sA} offen offset:{16*q}")
            e("s_nop 1")
a.label("L_end")
e("s_endpgm")

for st, Op, kk in STUBS:
    a.label(f"L_retry_{st}")
    a.hist = []
    e("s_sleep 1")
    e(f"s_add_u32 s{sIT}, s{sIT}, 1")
    e(f"s_cmp_gt_u32 s{sIT}, {cfg.spin*16}")
    e(f"s_cbranch_scc1 L_ok_{st}")
    e(f"ds_read_b64 {v(Op+8,2)}, v{vAt+kk}")
    e(f"ds_read_b128 {v(Op,4)}, v{vAd+kk}")
    e(f"ds_read_b128 {v(Op+4,4)}, v{vAd+kk} offset:1024")
    if st == 7: e("ds_read_b32 v53, v52")
    e("s_waitcnt lgkmcnt(0)")
    if st == 7: e(f"v_mul_u32_u24 v{Op+9}, v53, v{Op+9}")
    e(f"v_cmp_ne_u32 vcc, {st}, v{Op+9}")
    e("s_nop 4")
    e(f"s_cbranch_vccnz L_retry_{st}")
    e(f"s_branch L_ok_{st}")

a.label("L_hook1")
a.hist = []
e(f"s_lshl_b32 s{sA}, s{sW}, 12")
e(f"s_lshl_b32 s{sE}, s{sW}, 10")
for S in range(2 * NWO):
    e(f"s_add_u32 m0, s{sE}, {S*4096}")
    e(f"s_add_u32 s{sB}, s{sA}, {S*16384}")
    dma(10, rWO, f"s{sB}")
e(f"s_cmp_eq_u32 s{sW}, 0")
e("s_cbranch_scc0 L_hook1_f")
for i in range(4): e(f"v_mov_b32 v{20+i}, -1")
e(f"s_lshl_b32 s{sB}, s{sGR}, 16")
e(f"s_lshl_b32 s{sC}, s{sHG}, 12")
e(f"s_add_u32 s{sB}, s{sB}, s{sC}")
e(f"s_add_u32 s{sB}, s{sB}, {WS_O}")
for i in range(8):
    if i == 4: e(f"s_add_u32 s{sB}, s{sB}, 32768")
    e(f"buffer_store_dwordx4 v[20:23], v{vL16}, {s(rWS,4)}, s{sB} offen offset:{(i&3)*1024} sc1")
e("s_branch L_hret1")
a.label("L_hook1_f")
e(f"s_cmp_eq_u32 s{sW}, {FW}")
e("s_cbranch_scc0 L_hret1")
e(f"s_cmp_eq_u32 s{sFV}, 1")
e("s_cbranch_scc0 L_hret1")
srd(rT1, pWD, 1792 * 1024)
e(f"s_lshl_b32 s{sA}, s{sF0}, 10")
for i in range(8):
    e(f"s_mov_b32 m0, {FB+F_D+i*1088}")
    e(f"s_add_u32 s{sB}, s{sA}, {i*1024}")
    dma(vL16, rT1, f"s{sB}")
e(f"s_mov_b32 m0, {FB+F_X}")
e(f"s_lshl_b32 s{sB}, s{sSEL}, 10")
dma(vL16, rX, f"s{sB}")
srd(rT1, pWG, 512 * 3584)
srd(rT2, pWU, 512 * 3584)
for i in range(8):
    e(f"s_xor_b32 s{sA}, s{sHG}, {i}")
    e(f"s_lshl_b32 s{sC}, s{sA}, 10")
    e(f"s_add_u32 m0, s{sC}, {FB+F_G}")
    e(f"s_mul_i32 s{sB}, s{sA}, {64*3584}")
    dma(11, rT1, f"s{sB}")
    e(f"s_add_u32 m0, s{sC}, {FB+F_U}")
    dma(11, rT2, f"s{sB}")
e("s_branch L_hret1")
a.label("L_hook3")
a.hist = []
e("s_waitcnt vmcnt(0)")
e(f"s_cmp_eq_u32 s{sW}, 0")
e("s_cbranch_scc0 L_hook3_f")
e("s_mov_b64 exec, 1")
e(f"v_mov_b32 v7, s{sT}")
e(f"s_lshl_b32 s{sA}, s{sID}, 7")
e(f"s_add_u32 s{sA}, s{sA}, {WS_REC+16}")
e(f"buffer_store_dword v7, v{vL4}, {s(rWS,4)}, s{sA} offen sc1")
e("s_mov_b64 exec, -1")
e("s_branch L_hret3")
a.label("L_hook3_f")
e(f"s_cmp_eq_u32 s{sFV}, 1")
e("s_cbranch_scc0 L_hook3_e")
def f_reads(S):
    w = 20 + 8 * (S % 3)
    e(f"ds_read_b64_tr_b16 {v(w,2)}, v8 offset:{F_G+S*512}")
    e(f"ds_read_b64_tr_b16 {v(w+2,2)}, v8 offset:{F_G+S*512+64}")
    e(f"ds_read_b128 {v(w+4,4)}, v9 offset:{F_X+S*64}")
for S in range(3): f_reads(S)
e("s_mov_b32 s18, 0x22222222")
e("s_mov_b32 s19, 0x22222222")
e("s_mov_b32 s20, 0x44444444")
e("s_mov_b32 s21, 0x44444444")
e("s_mov_b32 s22, 0x88888888")
e("s_mov_b32 s23, 0x88888888")
for S in range(16):
    left = min(S + 3, 16) - (S + 1)
    e(f"s_waitcnt lgkmcnt({3*left})")
    w = 20 + 8 * (S % 3)
    mf16(44, w, w + 4, "0" if S == 0 else v(44, 4))
    if S + 3 < 16: f_reads(S + 3)
def d_reads(J0):
    for J in range(J0, J0 + 4):
        e(f"ds_read_b64_tr_b16 {v(20+4*(J&3),2)}, v16 offset:{F_D+J*128}")
        e(f"ds_read_b64_tr_b16 {v(22+4*(J&3),2)}, v16 offset:{F_D+J*128+4*1088}")
d_reads(0)
e("v_cndmask_b32 v44, v44, v45, s[18:19]")
e("v_cndmask_b32 v44, v44, v46, s[20:21]")
e("v_cndmask_b32 v44, v44, v47, s[22:23]")
round_bf16(44)
e("v_mov_b32 v45, v44")
e("v_permlane32_swap_b32 v44, v45")
e(f"v_mul_f32 v46, 0x{f2u(-1.4426950408889634):08x}, v44")
e("v_exp_f32 v46, v46")
e("v_add_f32 v46, 1.0, v46")
e("v_rcp_f32 v46, v46")
e("v_mul_f32 v44, v44, v46")
round_bf16(44)
e("v_mul_f32 v44, v44, v45")
e("v_cvt_pk_bf16_f32 v44, v44, v44")
e("s_mov_b64 exec, 0xf000f")
e("ds_write_b16 v0, v44")
e("s_mov_b64 exec, -1")
e("ds_read_b128 v[48:51], v17")
e(f"s_and_b32 s{sA}, s2, {NREP-1}")
e(f"s_lshl_b32 s{sA}, s{sA}, 11")
e(f"s_add_u32 s{sA}, s{sA}, {WS_Y}")
for J0 in (0, 4):
    e("s_waitcnt lgkmcnt(0)")
    DR = (36, 40, 44, 12)
    for J in range(J0, J0 + 4):
        mf16(DR[J & 3], 48, 20 + 4 * (J & 3), "0")
    if J0 == 0: d_reads(4)
    for J in range(J0, J0 + 4):
        e(f"buffer_atomic_add_f32 v{DR[J&3]}, v{vL4}, {s(rWS,4)}, s{sA} offen offset:{J*256}")
a.label("L_hook3_e")
e("v_mov_b32 v7, 1")
e(f"ds_write_b32 v52, v7 offset:{FDN-GOW}")
e("s_branch L_hret3")
a.label("L_hook5")
a.hist = []
e(f"s_cmp_eq_u32 s{sW}, {FW}")
e("s_cbranch_scc0 L_hook5_w")
e("s_waitcnt vmcnt(0)")
e("s_mov_b64 exec, 1")
e(f"v_mov_b32 v7, s{sFV}")
e(f"s_mov_b32 s{sA}, {WS_CNT}")
e(f"buffer_atomic_add v7, v{vL4}, {s(rWS,4)}, s{sA} offen sc1")
e("s_mov_b64 exec, -1")
a.label("L_hook5_w")
e(f"ds_read_b32 v7, v52 offset:{FDN-GOW}")
e("s_waitcnt lgkmcnt(0)")
e("v_cmp_ne_u32 vcc, 1, v7")
e("s_nop 1")
e("s_cbranch_vccnz L_hook5_w")
e(f"s_lshl_b32 s{sA}, s{sW}, 12")
e(f"s_lshl_b32 s{sE}, s{sW}, 10")
for S in range(2 * NWO, 32):
    e(f"s_add_u32 m0, s{sE}, {S*4096}")
    e(f"s_add_u32 s{sB}, s{sA}, {S*16384}")
    dma(10, rWO, f"s{sB}")
e("s_branch L_hret5")
a.label("L_hook6")
e(f"v_and_b32 v6, 7, v{vL}")
e("v_lshlrev_b32 v6, 7, v6")
e(f"s_lshl_b32 s{sA}, s{sGR}, 10")
e(f"s_add_u32 s{sA}, s{sA}, {WS_REC+16}")
e(f"s_mov_b32 s{sSPIN}, 0")
a.label("L_gpoll")
e(f"buffer_load_dword v7, v6, {s(rWS,4)}, s{sA} offen sc1")
e(f"s_add_u32 s{sSPIN}, s{sSPIN}, 1")
e("s_waitcnt vmcnt(0)")
e(f"v_cmp_ne_u32 vcc, s{sT}, v7")
e(f"s_cmp_gt_u32 s{sSPIN}, {cfg.spin}")
e("s_cbranch_scc1 L_gpollout")
e("s_cbranch_vccnz L_gpoll")
a.label("L_gpollout")
e("v_mov_b32 v7, 1")
e("ds_write_b32 v52, v7")
e("s_branch L_hret6")
a.label("L_hook7")
e("v_mov_b32 v6, 0")
e(f"s_mov_b32 s{sA}, {WS_CNT}")
e(f"s_mov_b32 s{sSPIN}, 0")
a.label("L_ypoll")
e(f"buffer_load_dword v7, v6, {s(rWS,4)}, s{sA} offen sc1")
e(f"s_add_u32 s{sSPIN}, s{sSPIN}, 1")
e("s_waitcnt vmcnt(0)")
e(f"v_readfirstlane_b32 s{sB}, v7")
e(f"s_cmp_gt_u32 s{sSPIN}, {cfg.spin}")
e("s_cbranch_scc1 L_ypollout")
e(f"s_cmp_eq_u32 s{sB}, {0 if cfg.noffn else 224}")
e("s_cbranch_scc0 L_ypoll")
a.label("L_ypollout")
e(f"s_lshr_b32 s{sA}, s{sHG}, 1")
e(f"s_lshl_b32 s{sA}, s{sA}, 9")
e(f"s_lshl_b32 s{sB}, s{sW}, 6")
e(f"s_add_u32 s{sA}, s{sA}, s{sB}")
e(f"s_add_u32 s{sA}, s{sA}, {WS_Y}")
e(f"v_lshlrev_b32 v6, 4, v{vG}")
for k in range(NREP):
    e(f"s_add_u32 s{sB}, s{sA}, {k*2048}")
    e(f"buffer_load_dwordx4 {v(8+4*k,4)}, v6, {s(rWS,4)}, s{sB} offen sc1")
e("s_branch L_hret7")
for st in range(8):
    a.label(f"L_fbc_{st}")
    a.hist = []
    e(f"v_subrev_u32 v40, {QB}, v{vNq+(st&3)}")
    e("v_lshrrev_b32 v40, 10, v40")
    e(f"v_and_b32 v41, 31, v{vL}")
    e("v_lshl_add_u32 v40, v40, 5, v41")
    e("v_lshlrev_b32 v40, 2, v40")
    e(f"v_add_u32 v40, {FMX}, v40")
    e("ds_read_b32 v41, v40")
    e("s_waitcnt lgkmcnt(0)")
    for i in range(16): e(f"v_sub_f32 v{CM+i}, 0, v41")
    e("s_nop 1")
    e(f"s_branch L_fbr_{st}")
a.label("L_fallback")
a.hist = []
e("s_waitcnt vmcnt(0)")
e(f"s_mov_b32 s{sFB}, 1")
e(f"s_mov_b32 s{sHK}, 0")
for i in range(32): e(f"v_permlane16_swap_b32 v{V0+i}, v{V1+i}")
e(f"v_lshl_or_b32 v40, s{sW}, 6, v{vL}")
e("v_and_b32 v40, 255, v40")
e("v_lshlrev_b32 v40, 2, v40")
e(f"v_add_u32 v40, {FMX}, v40")
e("v_mov_b32 v41, 0xff800000")
e("ds_write_b32 v40, v41")
zero_slots(44)
for k in range(4): e(f"v_xor_b32 v{vNq+k}, 4096, v{vNq+k}")
e(f"v_add_u32 v42, {QB}, v{vL16}")
e(f"v_and_b32 v43, 31, v{vL}")
e("v_lshlrev_b32 v43, 2, v43")
e(f"v_add_u32 v43, {FMX}, v43")
e(f"s_mov_b32 s{sIT}, 0")
e("s_waitcnt lgkmcnt(0)")
e("s_barrier")
a.label("L_fb_loop")
e(f"ds_read_b128 {v(QF,4)}, v42")
e("v_mov_b32 v41, 0xff800000")
e("s_waitcnt lgkmcnt(0)")
for j in range(8):
    mf32(S0, KF + 4 * j, QF, "0")
    for r in range(0, 16, 2):
        e(f"v_max3_f32 v41, v41, v{S0+r}, v{S0+r+1}")
e("ds_max_f32 v43, v41")
e("v_add_u32 v42, 1024, v42")
e("v_add_u32 v43, 128, v43")
e(f"s_add_u32 s{sIT}, s{sIT}, 1")
e(f"s_cmp_lt_u32 s{sIT}, 8")
e("s_cbranch_scc1 L_fb_loop")
e("s_waitcnt lgkmcnt(0)")
e("s_barrier")
e("s_branch L_attn")
a.label("L_code_end")

a.raw(f""".section .rodata,"a"
.p2align 6
.amdhsa_kernel {NAME}_kernel
  .amdhsa_next_free_vgpr 256
  .amdhsa_next_free_sgpr 102
  .amdhsa_accum_offset 256
  .amdhsa_group_segment_fixed_size 0
  .amdhsa_kernarg_size 112
  .amdhsa_user_sgpr_count 2
  .amdhsa_user_sgpr_kernarg_segment_ptr 1
  .amdhsa_system_sgpr_workgroup_id_x 1
.end_amdhsa_kernel""")
open(sys.argv[1], "w").write(a.text())
print("nops added:", a.nops_added, "stamps:", STAMPS)
```

```python
import subprocess, json, sys
from mbgen import meta
S0, S1, O, CM, PP, QF, KF, VF = 16, 32, 48, 64, 80, 88, 96, 128
def mf(d, a, b, c): return f"    v_mfma_f32_32x32x16_bf16 v[{d}:{d+15}], v[{a}:{a+3}], v[{b}:{b+3}], v[{c}:{c+15}]"
def m16(d, a, b, c): return f"    v_mfma_f32_16x16x32_bf16 v[{d}:{d+3}], v[{a}:{a+3}], v[{b}:{b+3}], v[{c}:{c+3}]"
def m1616(d, a, b, c): return f"    v_mfma_f32_16x16x16_bf16 v[{d}:{d+3}], v[{a}:{a+1}], v[{b}:{b+1}], v[{c}:{c+3}]"
def m8(d, a, b, c): return f"    v_mfma_f32_32x32x8_bf16 v[{d}:{d+15}], v[{a}:{a+1}], v[{b}:{b+1}], v[{c}:{c+15}]"
def m4(d, a, b, c): return f"    v_mfma_f32_4x4x4_16b_bf16 v[{d}:{d+3}], v[{a}:{a+1}], v[{b}:{b+1}], v[{c}:{c+3}]"
def tile(j, Sc, Sn, opt):
    qk, pv, ll = opt[0], opt[1], opt[2]
    jn = (j + 1) & 7; jp = (j - 1) & 7
    slot = [[] for _ in range(8)]
    if qk == "q32": slot[2].append(mf(Sn, KF+4*jn, QF, CM))
    if qk == "q32c0": slot[2].append(f"    v_mfma_f32_32x32x16_bf16 v[{Sn}:{Sn+15}], v[{KF+4*jn}:{KF+4*jn+3}], v[{QF}:{QF+3}], 0")
    if qk == "q32sw": slot[2].append(mf(Sn, QF, KF+4*jn, CM))
    if qk == "q1616":
        for i, sl in enumerate((1, 2, 3, 4)): slot[sl].append(m1616(Sn+4*i, KF+4*jn+2*(i&1), QF+2*(i>>1), CM))
    if qk == "q16":
        for i, sl in enumerate((1, 2, 3, 4)): slot[sl].append(m16(Sn+4*i, KF+4*((jn+i)&7), QF, CM))
    if qk == "q8":
        slot[2].append(m8(Sn, KF+4*jn, QF, CM)); slot[4].append(m8(Sn, KF+4*jn+2, QF+2, Sn))
    if pv == "p32":
        slot[0].append(mf(O, VF+8*jp+4, PP+4, O)); slot[6].append(mf(O, VF+8*j, PP, O))
    if pv == "p32sw":
        slot[0].append(mf(O, PP+4, VF+8*jp+4, O)); slot[6].append(mf(O, PP, VF+8*j, O))
    if pv == "p32b2b":
        slot[0].append(mf(O, VF+8*jp, PP, O)); slot[0].append(mf(O, VF+8*jp+4, PP+4, O))
    if pv == "p16":
        slot[0].append(m16(O+4, VF+8*jp+4, PP+4, O+4)); slot[6].append(m16(O, VF+8*j, PP, O))
    if pv == "smf":
        slot[0].append(f"    v_smfmac_f32_32x32x32_bf16 v[{O}:{O+15}], v[{VF+8*jp}:{VF+8*jp+3}], v[{PP}:{PP+7}], v12")
    if ll == "lsm":
        slot[1].append(f"    v_smfmac_f32_16x16x64_bf16 v[8:11], v[92:95], v[{PP}:{PP+7}], v12")
    if ll == "l16":
        slot[1].append(m16(8, 92, PP+4, 8)); slot[7].append(m16(8, 92, PP, 8))
    if ll == "l4":
        slot[1].append(m4(8, 92, PP+4, 8)); slot[1].append(m4(192, 92, PP+6, 192)); slot[5].append(m4(8, 92, PP, 8)); slot[7].append(m4(192, 92, PP+2, 192))
    if ll == "lpk":
        for i in range(8): slot[i].append(f"    v_pk_add_f32 v[8:9], v[8:9], v[{Sc+2*((i+6)&7)}:{Sc+2*((i+6)&7)+1}]")
    L = []
    cvafter = {2: [0], 3: [1], 4: [2], 5: [3], 6: [4], 7: [5, 6, 7]}
    for p in range(8):
        L.append(f"    v_exp_f32 v{Sc+2*p}, v{Sc+2*p}\n    v_exp_f32 v{Sc+2*p+1}, v{Sc+2*p+1}")
        if p in (0, 1, 6): L += slot[p]
        for c in cvafter.get(p, []):
            if "perm" in opt: L.append(f"    v_perm_b32 v{PP+c}, v{Sc+2*c+1}, v{Sc+2*c}, v13")
            else: L.append(f"    v_cvt_pk_bf16_f32 v{PP+c}, v{Sc+2*c}, v{Sc+2*c+1}")
            if p == 7 and c == 5: L += slot[p]
        if p in (2, 3, 4, 5): L += slot[p]
    return "\n".join(L)
def kern(name, opt, iters):
    init = ""
    for r in list(range(QF, QF+4)) + list(range(KF, KF+32)) + list(range(VF, VF+64)):
        init += f"    v_mul_lo_u32 v3, v3, s6\n    v_add_u32 v3, {12345+r*977}, v3\n    v_lshrrev_b32 v{r}, 7, v3\n    v_xor_b32 v{r}, v{r}, v3\n    v_and_b32 v{r}, 0x807f807f, v{r}\n    v_or_b32 v{r}, 0x3f803f80, v{r}\n"
        if r >= VF and "vall0" in opt:
            init += f"    v_mov_b32 v{r}, 0\n"
        if r >= VF and opt[1].startswith("p32"):
            if "vfull" not in opt:
                init += f"    v_cndmask_b32 v{r}, v{r}, v4, vcc\n"
    body = "\n".join(tile(j, (S0,S1)[j&1], (S1,S0)[j&1], opt) for j in range(8))
    fill = "0x3f803f80"
    return f"""
.text
.globl {name}
.p2align 8
.type {name},@function
{name}:
    s_load_dwordx2 s[4:5], s[0:1], 0
    v_lshrrev_b32 v1, 6, v0
    s_lshl_b32 s3, s2, 4
    v_add_u32 v1, s3, v1
    v_lshlrev_b32 v1, 4, v1
    s_mov_b32 s6, 1664525
    v_add_u32 v3, s3, v0
    v_and_b32 v5, 31, v0
    v_mov_b32 v4, {fill}
    v_mov_b32 v12, 0x44444444
    v_mov_b32 v13, 0x07060302
    v_cmp_eq_u32 vcc, 16, v5
    s_nop 2
    {"v_cndmask_b32 v4, 0, v4, vcc" if "vzero" in opt else "s_nop 0"}
    v_and_b32 v6, 15, v0
    v_cmp_gt_u32 vcc, 2, v6
    s_nop 2
    v_mov_b32 v92, {fill}
    v_cndmask_b32 v92, 0, v92, vcc
    v_mov_b32 v93, v92
    v_mov_b32 v94, v92
    v_mov_b32 v95, v92
    v_cmp_lt_u32 vcc, 15, v5
    s_nop 2
{init}
""" + "".join(f"    v_mov_b32 v{r}, 0\n" for r in list(range(8,12))+list(range(16, 64))+list(range(80,88))+list(range(192,196))) + "".join(f"    v_mov_b32 v{r}, 0xc2200000\n" for r in range(CM, CM+16)) + f"""
    s_waitcnt lgkmcnt(0)
    s_barrier
    s_memtime s[8:9]
    s_memrealtime s[16:17]
    s_waitcnt lgkmcnt(0)
    s_mov_b32 s10, {iters}
.p2align 6
L_{name}:
{body}
    s_sub_u32 s10, s10, 1
    s_cmp_lg_u32 s10, 0
    s_cbranch_scc1 L_{name}
    s_memtime s[12:13]
    s_memrealtime s[18:19]
    s_waitcnt lgkmcnt(0)
    s_sub_u32 s12, s12, s8
    s_sub_u32 s18, s18, s16
    v_mov_b32 v4, s12
    v_mov_b32 v5, s18
    v_mov_b32 v6, v48
    v_mov_b32 v7, v8
    global_store_dwordx4 v1, v[4:7], s[4:5]
    s_waitcnt vmcnt(0)
    s_endpgm
.section .rodata,"a"
.p2align 6
.amdhsa_kernel {name}
  .amdhsa_next_free_vgpr 256
  .amdhsa_next_free_sgpr 32
  .amdhsa_accum_offset 256
  .amdhsa_group_segment_fixed_size 0
  .amdhsa_kernarg_size 8
  .amdhsa_user_sgpr_count 2
  .amdhsa_user_sgpr_kernarg_segment_ptr 1
  .amdhsa_system_sgpr_workgroup_id_x 1
.end_amdhsa_kernel
"""
s = '.amdgcn_target "amdgcn-amd-amdhsa--gfx950"\n'
names = []
V = []
B = ("q32","p32","-","vzero")
for o in (B, B, ("q32c0","p32","-","vzero"), B, ("q32","p32sw","-","vzero"), B, ("q32","p32","-","vzero","perm"), B, ("q32","p32b2b","-","vzero"), B, ("q32sw","p32","-","vzero"), B,
          ("q32","smf","lsm"), B, ("q32c0","smf","lsm"), B):
    V.append(("_".join(o).replace("-", "x") + "_%d" % len(V), list(o)))
for nm, opt in V:
    for it in (8,):
        n = f"pw_{nm}_{it}_kernel"; names.append(n); s += kern(n, opt, it)
s += meta(names, 256)
open("pw3.s", "w").write(s)
r = subprocess.run(["clang", "-x", "assembler", "-target", "amdgcn-amd-amdhsa", "-mcpu=gfx950", "pw3.s", "-o", "pw3.co"], capture_output=True, text=True)
print(r.stderr[:3000])
json.dump(names, open("pw3.json", "w"))
```

```python
import sys, struct
from asmlib import Asm, v, s

NAME = "gated_mix__grouped_kv_mqa__moe_arch_mod__prompt"
def f2u(x): return struct.unpack("<I", struct.pack("<f", x))[0]

class Cfg:
    stamps = 0
    clk = 0
    force_fallback = 0
    spin = 0x40000
    prio = 1
    psleep = 2
    noffn = 0
    xloc = 1
    narr = 4
    whi = 0
    chunk = 8
    pollat = 10
    pollat0 = 5
    kv1 = 4
    cpf = 1
    nfirst = 4
    probe = 0
    hold = 0
    holdus = 60
    dbgwg = -1
    dbgwave = 7
    gearly = 0
    nup = 0
    xoe = 0
cfg = Cfg()
for a_ in sys.argv[2:]:
    k_, val_ = a_.split("=")
    assert hasattr(cfg, k_), k_
    setattr(cfg, k_, int(val_))

WS_K = 0; WS_V = 65536; WS_Y = 131072; WS_CNT = WS_Y + 32768; WS_REC = 256 * 1024; WS_EP = 320 * 1024; WS_G = 384 * 1024; WS_O = 1 << 20; WS_STAMP = 4 << 20
WS_BYTES = 8 << 20
NREP = 8
KB = 1024
XB_ = 0; WB = 64 * KB; WKB = 128 * KB; QB = 128 * KB; SLD = 136 * KB; SLT = 152 * KB
RGB = 156 * KB; FMX = 156 * KB; SCR = 158 * KB
QN2 = SCR + 1024
FBF = SCR + 16
GOW = SCR + 20
FDN = SCR + 24
HV = SCR + 256; ZV = SCR + 32
YB = SCR + 512
FW = 3
FB = 96 * KB
F_G = 0; F_U = 8192 + 64; F_D = 16384 + 128; F_X = F_D + 8 * 1088
NWO = 12
CSCALE = 0.25 * 1.4426950408889634

sW = 3; sGR = 4; sHG = 5; sA = 6; sB = 7; sC = 8; sD = 9; sE = 10; sF = 11; sIT = 12; sFB = 13; sSEL = 14; sR16 = 15
pX, pWQ, pWK, pWV, pWO, pBX, pWR, pWG = 16, 18, 20, 22, 24, 26, 28, 30
pWU, pWD, pGW, pOUT, pDBG, pWS = 32, 34, 36, 38, 40, 42
rX, rWQ, rWO, rT1, rWS, rOUT, rDBG, rT2 = 44, 48, 52, 56, 60, 64, 68, 72
sF0 = 76; sFV = 77; sOWN = 78; sSPIN = 79; sOH = 80; sTH = 81; sTG = 82; sU = 83
sRHO = 14; sXL = 15; sXG = 12; sWX = 78
sT = 68; sPB = 69; sID = 70; sHK = 71; sPO = 26; sPI = 27
sST = 84
vL = 1; vTK = 2; vG = 3; vL4 = 4; vL16 = 5
XA = 64; XBr = 128
KF = 64; V0 = 96; S0 = 128; S1 = 144; O0 = 160; O1 = 176; V1 = 192; CM = 224; PP = 240; QF = 248
vAd = 54; vAt = 59; vNq = 252

a = Asm()
e = a.e
STAMPS = []
uid = [0]
def L(p):
    uid[0] += 1
    return f"L_{p}_{uid[0]}"
HOLD = {1: "end", 2: "B6", 3: "loopend", 4: "B1a", 5: "entry"}
def stamp(name, sets=(1,)):
    if cfg.hold and HOLD[cfg.hold] == name:
        Lh = L("hold")
        a.label(Lh)
        e("s_memrealtime s[100:101]")
        e("s_waitcnt lgkmcnt(0)")
        e("s_sub_u32 s100, s100, s98")
        e(f"s_cmp_lt_u32 s100, {cfg.holdus * 100}")
        e(f"s_cbranch_scc1 {Lh}")
    if not cfg.stamps: return
    if cfg.probe and name != "entry": return
    if cfg.stamps == 3 and name in ("B1a", "polled", "B1b", "qdone", "prepoll", "B6", "kviss"): pass
    elif name not in ("entry", "K0", "loopend", "end") and cfg.stamps not in sets: return
    i = len(STAMPS)
    assert i < 16
    a.c(f"stamp {i}: {name}")
    e("s_memtime s[100:101]" if cfg.clk else "s_memrealtime s[100:101]")
    e("s_waitcnt lgkmcnt(0)")
    e(f"s_mov_b32 s{sST+i}, s100")
    STAMPS.append(name)

def xstamp(i, st_=3):
    if cfg.stamps != st_: return
    a.c(f"stamp {i}: x{i}")
    e("s_memrealtime s[100:101]")
    e("s_waitcnt lgkmcnt(0)")
    e(f"s_mov_b32 s{sST+i}, s100")
def srd(r, p, nbytes):
    e(f"s_mov_b32 s{r}, s{p}")
    e(f"s_mov_b32 s{r+1}, s{p+1}")
    e(f"s_mov_b32 s{r+2}, {nbytes}")
    e(f"s_mov_b32 s{r+3}, 0x20000")
def srd_sel(r, p1, p0, nbytes):
    e(f"s_cselect_b32 s{r}, s{p1}, s{p0}")
    e(f"s_cselect_b32 s{r+1}, s{p1+1}, s{p0+1}")
    e(f"s_mov_b32 s{r+2}, {nbytes}")
    e(f"s_mov_b32 s{r+3}, 0x20000")
def dma(voff, r, soff, off=0):
    o = f" offset:{off}" if off else ""
    e(f"buffer_load_dwordx4 v{voff}, {s(r,4)}, {soff} offen{o} lds")
def mf16(d, A, B, C):
    e(f"v_mfma_f32_16x16x32_bf16 {v(d,4)}, {v(A,4)}, {v(B,4)}, {C}")
def mf32(d, A, B, C):
    e(f"v_mfma_f32_32x32x16_bf16 {v(d,16)}, {v(A,4)}, {v(B,4)}, {C}")
def sum_over_g(x, t):
    e(f"v_mov_b32 v{t}, v{x}")
    e(f"v_permlane32_swap_b32 v{x}, v{t}")
    e(f"v_add_f32 v{x}, v{x}, v{t}")
    e(f"v_mov_b32 v{t}, v{x}")
    e(f"v_permlane16_swap_b32 v{x}, v{t}")
    e(f"v_add_f32 v{x}, v{x}, v{t}")
def round_bf16(x):
    e(f"v_cvt_pk_bf16_f32 v{x}, v{x}, v{x}")
    e(f"v_and_b32 v{x}, 0xffff0000, v{x}")
def sigmoid(x):
    e(f"v_mul_f32 v{x}, 0x{f2u(-1.4426950408889634):08x}, v{x}")
    e(f"v_exp_f32 v{x}, v{x}")
    e(f"v_add_f32 v{x}, 1.0, v{x}")
    e(f"v_rcp_f32 v{x}, v{x}")
def vmw(n): e(f"s_waitcnt vmcnt({n})")

def wq_steps(lo, hi):
    for S in range(lo, hi):
        e(f"s_add_u32 m0, s{sE}, {S*4096}")
        e(f"s_xor_b32 s{sA}, s{sWX}, {S*32768}")
        dma(10, rWQ, f"s{sA}")

def row_max(x):
    for n in (8, 4, 2, 1):
        e(f"v_max_u32_dpp v{x}, v{x}, v{x} row_ror:{n} row_mask:0xf bank_mask:0xf")

def zero_slots(t0):
    e(f"v_lshl_or_b32 v{t0+2}, s{sW}, 6, v{vL}")
    for i in range(2): e(f"v_mov_b32 v{t0+i}, 0")
    e(f"v_lshlrev_b32 v{t0+2}, 3, v{t0+2}")
    e(f"v_add_u32 v{t0+2}, {SLT}, v{t0+2}")
    e(f"ds_write_b64 v{t0+2}, {v(t0,2)}")

a.raw(f"""; fused gated-mix kernel: MQA attention (32 heads, d=16) + top-1 routed SwiGLU + sigmoid gate, one launch
; @launch grid=(256,1,1) block=(512,1,1) lds=163840
.amdgcn_target "amdgcn-amd-amdhsa--gfx950"
.text
.globl {NAME}_kernel
.p2align 12
.fill 832, 4, 0xbf800000
.p2align 8
.type {NAME}_kernel,@function
{NAME}_kernel:""")
e("s_cmp_ge_u32 s2, 256")
e("s_cbranch_scc1 L_end")
if cfg.hold: e("s_memrealtime s[98:99]")
xstamp(4, 5)
e("s_load_dwordx16 s[16:31], s[0:1], 0")
e("s_load_dwordx8 s[32:39], s[0:1], 64")
e("s_load_dwordx4 s[40:43], s[0:1], 96")
e(f"v_and_b32 v{vL}, 63, v0")
e("v_lshrrev_b32 v6, 6, v0")
e(f"v_and_b32 v{vTK}, 15, v0")
e(f"v_readfirstlane_b32 s{sW}, v6")
e(f"v_lshrrev_b32 v{vG}, 4, v{vL}")
e(f"v_lshlrev_b32 v{vL16}, 4, v{vL}")
e(f"v_lshlrev_b32 v{vL4}, 2, v{vL}")
e(f"s_and_b32 s{sA}, s2, 7")
e(f"s_lshr_b32 s{sHG}, s2, 5")
e(f"s_bfe_u32 s{sB}, s2, 0x20003")
e(f"s_lshl_b32 s{sGR}, s{sA}, 2")
e(f"s_add_u32 s{sGR}, s{sGR}, s{sB}")
e(f"s_mov_b32 s{sRHO}, s{sB}")
e(f"s_and_b32 s{sOH}, s{sHG}, 1")
e(f"s_lshr_b32 s{sTH}, s{sW}, 2")
e(f"s_xor_b32 s{sTH}, s{sTH}, s{sOH}")
e(f"s_lshl_b32 s{sC}, s{sB}, 3")
e(f"s_add_u32 s{sC}, s{sC}, s{sA}")
e(f"s_cmp_lt_u32 s{sC}, 28")
e(f"s_cselect_b32 s{sFV}, {0 if cfg.noffn else 1}, 0")
e(f"s_lshl_b32 s{sC}, s{sC}, 6")
e(f"s_lshl_b32 s{sB}, s{sHG}, 3")
e(f"s_add_u32 s{sF0}, s{sC}, s{sB}")
e(f"s_bfe_u32 s{sPB}, s{sHG}, 0x10001")
e(f"s_lshl_b32 s{sXL}, s{sOH}, 1")
e(f"s_add_u32 s{sXL}, s{sXL}, s{sPB}")
e(f"s_xor_b32 s{sXL}, s{sXL}, s{sW}")
e(f"s_lshl_b32 s{sXL}, s{sXL}, 14")
e(f"s_lshl_b32 s{sXG}, s{sGR}, 16")
e(f"s_lshl_b32 s{sB}, s{sRHO}, 8")
e(f"v_xor_b32 v11, s{sB}, v{vL16}")
e(f"s_and_b32 s{sD}, s{sW}, 3")
e(f"s_and_b32 s{sA}, s{sW}, 1")
e(f"s_lshl_b32 s{sC}, s{sD}, 13")
e(f"s_lshl_b32 s{sB}, s{sA}, 2")
e(f"v_and_b32 v6, 1, v{vG}")
e("v_lshlrev_b32 v6, 1, v6")
e(f"v_or_b32 v6, s{sB}, v6")
e(f"v_and_b32 v7, 7, v{vL}")
e("v_xor_b32 v6, v6, v7")
e("v_lshlrev_b32 v6, 4, v6")
e(f"v_lshrrev_b32 v7, 3, v{vL}")
e("v_lshl_add_u32 v6, v7, 10, v6")
e(f"s_lshl_b32 s{sB}, s{sHG}, 7")
e(f"s_add_u32 s{sB}, s{sB}, s{sC}")
e(f"v_add_u32 v10, s{sB}, v6")
e(f"s_lshl_b32 s{sE}, s{sD}, 10")
e(f"s_add_u32 s{sE}, s{sE}, {WB}")
e(f"s_lshl_b32 s{sWX}, s{sRHO}, 17")
e(f"v_and_b32 v6, 16, v{vL}")
e("v_lshlrev_b32 v6, 3, v6")
e(f"v_xor_b32 v21, v6, v{vL16}")
for r_, n_ in ((rX, 2097152), (rWQ, 524288), (rT2, 16384), (rT1, 1024)):
    e(f"s_mov_b32 s{r_+2}, {n_}")
    e(f"s_mov_b32 s{r_+3}, 0x20000")
e(f"s_lshl_b32 s{sA}, s{sW}, 14")
e(f"s_xor_b32 s{sA}, s{sA}, s{sXL}")
e(f"s_lshl_b32 s{sB}, s{sW}, 12")
e(f"s_add_u32 s{sU}, s{sA}, s{sB}")
e(f"s_add_u32 s{sF}, s{sU}, s{sXG}")
e(f"s_lshl_b32 s{sC}, s{sW}, 6")
e(f"v_xor_b32 v12, s{sC}, v11")
for i in range(1, 4): e(f"v_xor_b32 v{12+i}, {16*i}, v12")
e(f"s_lshl_b32 s{sC}, s{sRHO}, 12")
e(f"s_xor_b32 s{sC}, s{sC}, s{sB}")
e(f"s_add_u32 s{sB}, s{sB}, {WKB}")
e(f"v_mov_b32 v53, {SCR+128}")
e("v_mov_b32 v19, 0")
e("ds_write_b32 v53, v19 offset:4")
if cfg.cpf:
    e("s_getpc_b64 s[64:65]")
    a.label("L_pc")
    e(f"s_lshr_b32 s{sA}, s2, 3")
    e(f"s_lshl_b32 s{sA}, s{sA}, 10")
    e(f"s_min_u32 s{sA}, s{sA}, L_code_end-L_pc-1024")
    e(f"v_add_u32 v9, s{sA}, v{vL16}")
    e(f"s_cmp_eq_u32 s{sW}, 7")
    e("s_cbranch_scc0 L_nocpf")
    e("global_load_dwordx4 v[48:51], v9, s[64:65]")
    a.label("L_nocpf")
e(f"s_mov_b32 m0, s{sU}")
e("s_waitcnt lgkmcnt(0)")
stamp("entry")
e(f"s_mov_b32 s{rX}, s{pX}")
e(f"s_mov_b32 s{rX+1}, s{pX+1}")
e(f"s_mov_b32 s{rWQ}, s{pWQ}")
e(f"s_mov_b32 s{rWQ+1}, s{pWQ+1}")
e(f"s_cmp_ge_u32 s{sHG}, 4")
e(f"s_cselect_b32 s{rT2}, s{pWV}, s{pWK}")
e(f"s_cselect_b32 s{rT2+1}, s{pWV+1}, s{pWK+1}")
e(f"s_cmp_ge_u32 s{sW}, 4")
e("s_cbranch_scc1 L_p1hi")
for i in range(4): dma(12 + i, rX, f"s{sF}", 1024 * i)
e(f"s_mov_b32 m0, s{sB}")
e(f"s_load_dword s{sT}, s[{pWS}:{pWS+1}], {WS_EP}")
for i in range(4): dma(21, rT2, f"s{sC}", 1024 * i)
e(f"s_cmp_ge_u32 s{sW}, 2")
e("s_cbranch_scc1 L_p1end")
e(f"s_lshl_b32 s{sA}, s{sW}, 10")
e(f"s_add_u32 m0, s{sA}, {RGB}")
e(f"s_cmp_eq_u32 s{sW}, 1")
e(f"s_cselect_b32 s{rT1}, s{pGW}, s{pWR}")
e(f"s_cselect_b32 s{rT1+1}, s{pGW+1}, s{pWR+1}")
dma(11, rT1, "0")
a.label("L_p1end")
e("s_barrier")
e("s_branch L_setup")
a.label("L_p1hi")
e("s_barrier")
wq_steps(0, cfg.whi)
def x_dma(lo=0, hi=16):
    for i in range(lo, hi):
        if i % 4 == 0 or i == lo:
            e(f"s_add_u32 m0, s{sXL}, {XB_ + (i>>2)*4096}")
            e(f"s_add_u32 s{sF}, s{sXG}, m0")
        e(f"v_xor_b32 v7, {i<<4}, v11")
        dma(7, rX, f"s{sF}", (i & 3) * 1024)
a.label("L_setup")
xstamp(5, 5)
e(f"s_lshl_b32 s{sTG}, s{sGR}, 1")
e(f"s_add_u32 s{sTG}, s{sTG}, s{sOH}")
e(f"s_lshl_b32 s{sID}, s{sGR}, 3")
e(f"s_add_u32 s{sID}, s{sID}, s{sHG}")
e(f"s_mov_b32 s{sFB}, 0")
srd(rWS, pWS, WS_BYTES)
e(f"v_lshlrev_b32 v8, 2, v{vTK}")
e(f"v_add_u32 v8, {SCR}, v8")
e("ds_write_b32 v8, v19")
e("ds_write_b32 v8, v19 offset:1024")
e("ds_write_b32 v8, v19 offset:1088")
zero_slots(22)
srd(rWO, pWO, 524288)
srd(rOUT, pOUT, 2097152)
e(f"v_and_b32 v6, 11, v{vTK}")
e("v_cmp_eq_u32 vcc, 0, v6")
e("v_mov_b32 v7, 0x3f803f80")
e(f"v_cndmask_b32 v{V1}, 0, v7, vcc")
for i in range(1, 32): e(f"v_mov_b32 v{V1+i}, v{V1}")
xstamp(6, 5)
e(f"s_and_b32 s{sA}, s{sW}, 3")
e(f"s_lshr_b32 s{sB}, s{sW}, 2")
e(f"v_lshlrev_b32 v6, 3, v{vL}")
for k in range(5):
    if k < 4:
        e(f"s_add_u32 s{sC}, s{sA}, {k}")
        e(f"s_and_b32 s{sC}, s{sC}, 3")
        e(f"s_lshl_b32 s{sD}, s{sB}, 2")
    else:
        e(f"s_add_u32 s{sC}, s{sA}, 2")
        e(f"s_and_b32 s{sC}, s{sC}, 3")
        e(f"s_xor_b32 s{sD}, s{sB}, 1")
        e(f"s_lshl_b32 s{sD}, s{sD}, 2")
    e(f"s_add_u32 s{sC}, s{sC}, s{sD}")
    e(f"s_lshl_b32 s{sD}, s{sC}, 11")
    e(f"s_add_u32 s{sD}, s{sD}, {SLD}")
    e(f"v_add_u32 v{vAd+k}, s{sD}, v{vL16}")
    e(f"s_lshl_b32 s{sD}, s{sC}, 9")
    e(f"s_add_u32 s{sD}, s{sD}, {SLT}")
    e(f"v_add_u32 v{vAt+k}, s{sD}, v6")
e(f"s_lshl_b32 s{sA}, s{sA}, 1")
for k in range(4):
    e(f"s_xor_b32 s{sC}, s{sB}, {k}")
    e(f"s_add_u32 s{sC}, s{sC}, s{sA}")
    e(f"s_and_b32 s{sC}, s{sC}, 7")
    e(f"s_lshl_b32 s{sC}, s{sC}, 10")
    e(f"s_add_u32 s{sC}, s{sC}, {QB}")
    e(f"v_add_u32 v{vNq+k}, s{sC}, v{vL16}")
e(f"s_xor_b32 s{sC}, s{sB}, 7")
e(f"s_add_u32 s{sC}, s{sC}, s{sA}")
e(f"s_and_b32 s{sU}, s{sC}, 7")
e(f"s_lshr_b32 s{sB}, s{sU}, 2")
e(f"s_lshl_b32 s{sPO}, s{sB}, 15")
e(f"s_and_b32 s{sC}, s{sU}, 3")
e(f"s_lshl_b32 s{sC}, s{sC}, 10")
e(f"s_add_u32 s{sPO}, s{sPO}, s{sC}")
e(f"s_add_u32 s{sPO}, s{sPO}, s{sXG}")
e(f"s_lshl_b32 s{sC}, s{sHG}, 12")
e(f"s_add_u32 s{sPO}, s{sPO}, s{sC}")
e(f"s_add_u32 s{sPO}, s{sPO}, {WS_O}")
e(f"s_lshl_b32 s{sPI}, 1, s{sU}")
xstamp(7, 5)
e(f"s_lshl_b32 s{sB}, s{sPB}, 14")
e(f"s_lshl_b32 s{sC}, s{sTH}, 15")
e(f"s_add_u32 s{sB}, s{sB}, s{sC}")
for q in range(4):
    e(f"v_add_u32 v6, {4*q}, v{vG}")
    e(f"v_xor_b32 v6, v6, v{vTK}")
    e("v_lshlrev_b32 v6, 4, v6")
    e(f"v_lshl_add_u32 v6, v{vTK}, 10, v6")
    e(f"v_add_u32 v{12+q}, s{sB}, v6")
e(f"v_lshrrev_b32 v8, 2, v{vTK}")
e(f"v_and_b32 v9, 3, v{vTK}")
e(f"v_and_b32 v6, 1, v{vG}")
e("v_lshlrev_b32 v6, 7, v6")
e(f"v_lshl_add_u32 v6, v{vG}, 8, v6")
e("v_lshl_add_u32 v6, v8, 5, v6")
e("v_lshl_add_u32 v6, v9, 3, v6")
e(f"v_add_u32 v16, {WKB}, v6")
e("v_xor_b32 v17, 128, v16")
e(f"v_and_b32 v6, 1, v{vTK}")
e("v_lshlrev_b32 v6, 10, v6")
e(f"v_lshl_add_u32 v6, v{vG}, 4, v6")
e(f"v_add_u32 v18, {RGB}, v6")
e(f"v_and_b32 v6, 1, v{vG}")
e("v_lshrrev_b32 v7, 1, v8")
e("v_lshl_or_b32 v6, v6, 1, v7")
e(f"s_and_b32 s{sA}, s{sW}, 3")
e(f"v_xor_b32 v6, s{sA}, v6")
e("v_lshlrev_b32 v6, 5, v6")
e("v_lshl_add_u32 v6, v9, 3, v6")
e(f"v_lshl_add_u32 v7, v{vG}, 3, v8")
e("v_lshl_add_u32 v6, v7, 7, v6")
e(f"v_add_u32 v26, {WB}, v6")
e(f"s_lshl_b32 s{sA}, s{sPB}, 4")
e(f"v_add_u32 v30, s{sA}, v{vTK}")
e("v_mov_b32 v27, v30")
e(f"v_lshrrev_b32 v6, 1, v{vG}")
e("v_lshlrev_b32 v6, 9, v6")
e(f"v_and_b32 v7, 1, v{vG}")
e("v_lshl_add_u32 v6, v7, 3, v6")
e(f"s_and_b32 s{sA}, s{sW}, 3")
e(f"s_lshl_b32 s{sB}, s{sTH}, 2")
e(f"s_add_u32 s{sA}, s{sA}, s{sB}")
e(f"s_lshl_b32 s{sA}, s{sA}, 10")
e(f"s_add_u32 s{sA}, s{sA}, {QB}")
e(f"v_add_u32 v6, s{sA}, v6")
e("v_lshl_add_u32 v28, v30, 4, v6")
e("v_xor_b32 v29, 256, v28")
e("v_lshlrev_b32 v30, 2, v30")
e(f"v_add_u32 v30, {QN2}, v30")
e("v_xor_b32 v31, 64, v30")
e(f"v_and_b32 v6, 31, v{vL}")
e(f"v_lshrrev_b32 v7, 5, v{vL}")
e(f"v_lshlrev_b32 v{PP}, 5, v6")
e(f"v_lshl_add_u32 v{PP}, v7, 4, v{PP}")
e(f"v_lshlrev_b32 v{PP+2}, 2, v6")
e(f"v_add_u32 v{PP+2}, {QN2}, v{PP+2}")
e(f"v_lshlrev_b32 v{PP+3}, 7, v6")
e("v_mov_b32 v52, 1")
def x_read(dst, S): e(f"ds_read_b128 {v(dst,4)}, v{12+(S&3)} offset:{(S>>2)*256}")
def xb_flip():
    for q in range(4): e(f"v_xor_b32 v{12+q}, 0x4000, v{12+q}")
ACC0 = QF; ACC1 = PP + 4
def rg_chain(X, acc):
    for S in range(5): e(f"ds_read_b128 {v(32+4*(S%5),4)}, v18 offset:{S*64}")
    for S in range(16):
        left = min(S + 5, 16) - (S + 1)
        e(f"s_waitcnt lgkmcnt({left})")
        mf16(acc, 32 + 4 * (S % 5), X + 4 * S, "0" if S == 0 else v(acc, 4))
        if S + 5 < 16: e(f"ds_read_b128 {v(32+4*(S%5),4)}, v18 offset:{(S+5)*64}")
def g_store(acc, flip):
    e("v_lshlrev_b32 v6, 2, v27")
    if flip: e("v_xor_b32 v6, 64, v6")
    e(f"v_add_u32 v6, {GB_}, v6")
    round_bf16(acc + 1)
    sigmoid(acc + 1)
    round_bf16(acc + 1)
    e(f"ds_write_b32 v6, v{acc+1}")
def side_addr(ffn):
    e(f"v_lshlrev_b32 v10, 2, v{vG}")
    e(f"v_xor_b32 v10, v10, v{vTK}")
    e("v_lshlrev_b32 v10, 4, v10")
    e(f"v_lshl_add_u32 v10, v{vG}, 10, v10")
    e(f"s_lshr_b32 s{sA}, s{sHG}, 1")
    e(f"s_lshl_b32 s{sA}, s{sA}, 8")
    e(f"v_add_u32 v10, s{sA}, v10")
    if not ffn: return
    e(f"s_movk_i32 s{sA}, 3584")
    e(f"v_mul_lo_u32 v11, v{vL}, s{sA}")
    e(f"s_lshl_b32 s{sA}, s{sF0}, 1")
    e(f"v_add_u32 v11, s{sA}, v11")
    e("v_mul_u32_u24 v16, 1088, v8")
    e(f"v_lshl_add_u32 v16, v{vG}, 5, v16")
    e("v_lshl_add_u32 v16, v9, 3, v16")
    e(f"v_add_u32 v16, {FB}, v16")
    e(f"v_cmp_eq_u32 vcc, v8, v{vG}")
    e(f"v_mov_b32 v6, {ZV}")
    e(f"v_mov_b32 v7, {HV}")
    e("v_cndmask_b32 v17, v6, v7, vcc")
    e(f"v_lshl_add_u32 v0, v{vG}, 2, v{vTK}")
    e("v_lshl_add_u32 v0, v0, 1, v7")
    e("v_lshrrev_b32 v6, 1, v9")
    e(f"v_mul_u32_u24 v6, {F_U-F_G}, v6")
    e("v_and_b32 v7, 1, v9")
    e("v_lshl_add_u32 v6, v7, 3, v6")
    e(f"v_lshl_add_u32 v7, v{vG}, 3, v8")
    e("v_lshl_add_u32 v8, v7, 4, v6")
    e(f"v_add_u32 v8, {FB}, v8")
    e(f"v_lshlrev_b32 v9, 4, v{vG}")
    e(f"v_add_u32 v9, {FB}, v9")
def p1_arrive():
    e("s_mov_b64 exec, 1")
    e("ds_add_u32 v53, v52 offset:4")
    e("s_mov_b64 exec, -1")
def p1_wait():
    Lw = L("p1w")
    a.label(Lw)
    e("ds_read_b32 v7, v53 offset:4")
    e("s_waitcnt lgkmcnt(0)")
    e("v_cmp_ne_u32 vcc, 4, v7")
    e("s_nop 1")
    e(f"s_cbranch_vccnz {Lw}")
WR = (32, 36, 40, 44, 48)
PR = XBr; P0 = CM + 8
def poll_load(): e(f"buffer_load_dwordx4 {v(PR,4)}, v{PP+3}, {s(rWS,4)}, s{sD} offen sc1")
def q_loop(both):
    n = 4 if both else 3
    D = 3 if both else 4
    def qrd(S):
        w = WR[S % 5]
        if both: e(f"ds_read_b128 {v(XA+4*S,4)}, v{20+(S&3)} offset:{(S>>2)*256}")
        x_read(XBr + 4 * S, S)
        e(f"ds_read_b64_tr_b16 {v(w,2)}, v26 offset:{S*4096}")
        e(f"ds_read_b64_tr_b16 {v(w+2,2)}, v26 offset:{S*4096+512}")
    e("ds_read_b32 v52, v53")
    for S in range(D): qrd(S)
    e(f"s_lshl_b32 s{sD}, s{sW}, 12")
    e(f"s_add_u32 s{sD}, s{sD}, {WS_REC}")
    for S in range(16):
        if S + D == cfg.chunk:
            if both: vmw(0)
            e("s_barrier")
        if S + D < 16: qrd(S + D)
        left = min(S + D + 1, 16) - (S + 1)
        e(f"s_waitcnt lgkmcnt({n*left})")
        w = WR[S % 5]
        mf16(ACC0, w, XA + 4 * S, "0" if S == 0 else v(ACC0, 4))
        mf16(ACC1, w, XBr + 4 * S, "0" if S == 0 else v(ACC1, 4))
        if S == cfg.pollat: poll_load()
        if S == cfg.pollat0: e(f"buffer_load_dwordx4 {v(P0,4)}, v{PP+3}, {s(rWS,4)}, s{sD} offen sc1")
xstamp(8, 5)
e(f"s_cmp_ge_u32 s{sW}, 4")
e("s_cbranch_scc1 L_2hi")
e(f"s_cmp_eq_u32 s{sW}, 0")
e("s_cbranch_scc0 L_2lo")
e(f"s_lshl_b32 s{sB}, s{sID}, 8")
e(f"s_add_u32 s{sB}, s{sB}, {WS_Y}")
e(f"buffer_store_dword v19, v{vL4}, {s(rWS,4)}, s{sB} offen sc1")
e("v_lshlrev_b32 v6, 5, v27")
e(f"v_lshl_add_u32 v6, v{vG}, 3, v6")
e(f"v_and_b32 v20, 1, v{vG}")
e("v_lshlrev_b32 v20, 9, v20")
e(f"v_lshl_add_u32 v20, v{vTK}, 4, v20")
e(f"v_lshrrev_b32 v7, 1, v{vG}")
e("v_lshl_add_u32 v20, v7, 3, v20")
e(f"s_lshl_b32 s{sB}, s{sPB}, 8")
e(f"s_add_u32 s{sB}, s{sB}, {WS_V}")
e(f"v_add_u32 v20, s{sB}, v20")
e(f"s_lshl_b32 s{sA}, s{sTG}, 10")
e(f"s_cmp_ge_u32 s{sHG}, 4")
e("s_cselect_b64 s[22:23], -1, 0")
e("v_cndmask_b32 v6, v6, v20, s[22:23]")
def kv_reads(S):
    x_read(XA + 4 * S, S)
    w = 32 + 4 * (S % 5)
    e(f"ds_read_b64_tr_b16 {v(w,2)}, v16 offset:{S*1024}")
    e(f"ds_read_b64_tr_b16 {v(w+2,2)}, v17 offset:{S*1024}")
vmw(1)
xstamp(9, 5)
p1_arrive()
p1_wait()
xstamp(12); xstamp(10, 5)
for S in range(4): kv_reads(S)
for S in range(16):
    if S + 4 < 16: kv_reads(S + 4)
    left = min(S + 5, 16) - (S + 1)
    e(f"s_waitcnt lgkmcnt({3*left})")
    w = 32 + 4 * (S % 5)
    mf16(ACC0, w, XA + 4 * S, "0" if S == 0 else v(ACC0, 4))
    mf16(ACC1, XA + 4 * S, w, "0" if S == 0 else v(ACC1, 4))
xb_flip()
for i in range(4): e(f"v_cndmask_b32 v{ACC1+i}, v{ACC0+i}, v{ACC1+i}, s[22:23]")
e(f"v_cvt_pk_bf16_f32 v20, v{ACC1}, v{ACC1+1}")
e(f"v_cvt_pk_bf16_f32 v21, v{ACC1+2}, v{ACC1+3}")
e(f"buffer_store_dwordx2 v[20:21], v6, {s(rWS,4)}, s{sA} offen sc1")
xstamp(13)
rg_chain(XA, ACC1)
e(f"v_mul_f32 v23, v{ACC0}, v{ACC0}")
for i in range(1, 4): e(f"v_fmac_f32 v23, v{ACC0+i}, v{ACC0+i}")
sum_over_g(23, 22)
row_max(23)
e("v_cndmask_b32 v23, v23, v19, s[22:23]")
e(f"s_lshl_b32 s{sA}, s{sTG}, 5")
e(f"v_add_u32 v6, s{sA}, v27")
e(f"s_mul_i32 s{sT}, s{sT}, 0x9e3779b9")
e(f"s_add_u32 s{sT}, s{sT}, 0x7f4a7c15")
e(f"v_mov_b32 v22, s{sT}")
e(f"v_mov_b32 v24, s{sT}")
e("ds_write_b32 v53, v22")
e(f"s_lshl_b32 s{sB}, s{sID}, 7")
e(f"s_add_u32 s{sB}, s{sB}, {WS_REC}")
round_bf16(ACC1)
e(f"v_ashrrev_i32 v25, 31, v{ACC1}")
e("v_or_b32 v25, 0x80000000, v25")
e(f"v_xor_b32 v25, v25, v{ACC1}")
e("v_and_b32 v25, 0xffff0000, v25")
e("v_or_b32 v25, v25, v6")
row_max(25)
e("s_mov_b64 exec, 1")
vmw(0)
e(f"buffer_store_dwordx4 v[22:25], v19, {s(rWS,4)}, s{sB} offen sc1")
e("s_mov_b64 exec, -1")
xstamp(14)
round_bf16(ACC1 + 1)
sigmoid(ACC1 + 1)
round_bf16(ACC1 + 1)
e("v_lshlrev_b32 v6, 2, v6")
e(f"s_mov_b32 s{sB}, {WS_G}")
e("s_mov_b64 exec, 0xffff")
e(f"buffer_store_dword v{ACC1+1}, v6, {s(rWS,4)}, s{sB} offen sc1")
e("s_mov_b64 exec, -1")
side_addr(False)
e("s_waitcnt lgkmcnt(0)")
e("s_branch L_B1lo")
a.label("L_2hi")
xstamp(12)
wq_steps(cfg.whi, 16)
for q in range(4): e(f"v_mov_b32 v{20+q}, v{12+q}")
xb_flip()
xstamp(13); xstamp(9, 5)
e(f"s_waitcnt vmcnt({16-cfg.chunk}) lgkmcnt(0)")
xstamp(14); xstamp(10, 5)
e("s_branch L_qhi")
a.label("L_2lo")
x_dma(0, cfg.narr)
vmw(cfg.narr)
xstamp(12); xstamp(9, 5)
p1_arrive()
x_dma(cfg.narr, 16)
p1_wait()
for S in range(16): x_read(XA + 4 * S, S)
xb_flip()
side_addr(True)
xstamp(13)
vmw(0)
xstamp(14); xstamp(10, 5)
a.label("L_B1lo")
e("s_barrier")
stamp("B1a")
q_loop(False)
e("s_branch L_qend")
a.label("L_qhi")
if cfg.stamps in (1, 3): STAMPS.pop()
e("s_barrier")
stamp("B1a")
q_loop(True)
a.label("L_qend")
e(f"s_lshl_b32 s{sA}, s{sW}, 13")
e(f"s_add_u32 s{sB}, s{sA}, {WS_V}")
e(f"s_add_u32 s{sE}, s{sA}, 4096")
e(f"s_add_u32 s{sF}, s{sB}, 4096")
e(f"s_mov_b32 s{sSPIN}, 0")
e(f"v_readfirstlane_b32 s{sT}, v52")
stamp("qdone")
if cfg.pollat0 >= 0:
    vmw(1)
    e(f"v_xor_b32 v6, s{sT}, v{P0}")
    e(f"v_xor_b32 v7, s{sT}, v{P0+2}")
    e("v_or_b32 v6, v6, v7")
    e("v_cmp_ne_u32 vcc, 0, v6")
    e("s_nop 1")
    e("s_cbranch_vccz L_pollok")
a.label("L_poll")
e("s_waitcnt vmcnt(0)")
e(f"v_xor_b32 v6, s{sT}, v{PR}")
e(f"v_xor_b32 v7, s{sT}, v{PR+2}")
e("v_or_b32 v6, v6, v7")
e("v_cmp_ne_u32 vcc, 0, v6")
e(f"s_add_u32 s{sSPIN}, s{sSPIN}, 1")
e(f"s_cmp_gt_u32 s{sSPIN}, {cfg.spin}")
e("s_cbranch_scc1 L_pollout")
e("s_cbranch_vccz L_pollout")
if cfg.psleep: e(f"s_sleep {cfg.psleep}")
poll_load()
e("s_branch L_poll")
a.label("L_pollout")
if cfg.pollat0 >= 0:
    e(f"v_mov_b32 v{P0+1}, v{PR+1}")
    e(f"v_mov_b32 v{P0+3}, v{PR+3}")
    a.label("L_pollok")
    PR = P0
stamp("polled")
def kv_load(j):
    e(f"buffer_load_dwordx4 {v(KF+4*j,4)}, v{PP}, {s(rWS,4)}, s{sA if j<4 else sE} offen offset:{(j&3)*1024} sc1")
    e(f"buffer_load_dwordx4 {v(V0+4*j,4)}, v{vL16}, {s(rWS,4)}, s{sB if j<4 else sF} offen offset:{(j&3)*1024} sc1")
e(f"s_cmp_ge_u32 s{sW}, 4")
e("s_cbranch_scc1 L_kvl1")
for j in range(cfg.kv1): kv_load(j)
a.label("L_kvl1")
e(f"s_mov_b32 s{sC}, 0x{f2u(CSCALE):08x}")
for hf, acc in ((0, ACC0), (1, ACC1)):
    for i in range(4): e(f"v_mul_f32 v{acc+i}, s{sC}, v{acc+i}")
    e(f"v_cvt_pk_bf16_f32 v{20+2*hf}, v{acc}, v{acc+1}")
    e(f"v_cvt_pk_bf16_f32 v{21+2*hf}, v{acc+2}, v{acc+3}")
    e(f"ds_write_b64 v{28+hf}, {v(20+2*hf,2)}")
    e(f"v_mul_f32 v{24+hf}, v{acc}, v{acc}")
    for i in range(1, 4): e(f"v_fmac_f32 v{24+hf}, v{acc+i}, v{acc+i}")
e("v_mov_b32 v6, v24")
e("v_mov_b32 v7, v25")
e(f"v_max_u32_dpp v{PR+1}, v{PR+1}, v{PR+1} row_ror:8 row_mask:0xf bank_mask:0xf")
e(f"v_max_u32_dpp v{PR+3}, v{PR+3}, v{PR+3} row_ror:8 row_mask:0xf bank_mask:0xf")
e("v_permlane32_swap_b32 v24, v6")
e("v_permlane32_swap_b32 v25, v7")
e(f"v_max_u32_dpp v{PR+1}, v{PR+1}, v{PR+1} row_ror:4 row_mask:0xf bank_mask:0xf")
e(f"v_max_u32_dpp v{PR+3}, v{PR+3}, v{PR+3} row_ror:4 row_mask:0xf bank_mask:0xf")
e("v_add_f32 v24, v24, v6")
e("v_add_f32 v25, v25, v7")
e(f"v_max_u32_dpp v{PR+1}, v{PR+1}, v{PR+1} row_ror:2 row_mask:0xf bank_mask:0xf")
e(f"v_max_u32_dpp v{PR+3}, v{PR+3}, v{PR+3} row_ror:2 row_mask:0xf bank_mask:0xf")
e("v_mov_b32 v6, v24")
e("v_mov_b32 v7, v25")
e(f"v_max_u32_dpp v{PR+1}, v{PR+1}, v{PR+1} row_ror:1 row_mask:0xf bank_mask:0xf")
e(f"v_max_u32_dpp v{PR+3}, v{PR+3}, v{PR+3} row_ror:1 row_mask:0xf bank_mask:0xf")
e("v_permlane16_swap_b32 v24, v6")
e("v_permlane16_swap_b32 v25, v7")
e(f"v_mov_b32 v18, {SCR}")
e("v_add_f32 v24, v24, v6")
e("v_add_f32 v25, v25, v7")
e("s_mov_b64 exec, 0xffff")
e("ds_max_u32 v30, v24")
e("ds_max_u32 v31, v25")
e("s_mov_b64 exec, 0x10001")
e(f"ds_max_u32 v18, v{PR+1} offset:8")
e(f"ds_max_u32 v18, v{PR+3} offset:12")
e("s_mov_b64 exec, -1")
e("s_waitcnt lgkmcnt(0)")
stamp("prepoll")
e("s_barrier")
stamp("B6")
e("ds_read_b64 v[6:7], v18 offset:8")
e(f"ds_read_b32 v19, v{PP+2}")
e(f"ds_read_b128 {v(QF,4)}, v{vNq}")
e(f"s_cmp_ge_u32 s{sW}, 4")
e("s_cbranch_scc0 L_kvl2")
for j in range(cfg.kv1): kv_load(j)
a.label("L_kvl2")
for j in range(cfg.kv1, 8): kv_load(j)
e("s_waitcnt lgkmcnt(1)")
e("v_mul_f32 v19, v19, v6")
e("v_sqrt_f32 v19, v19")
e(f"v_readfirstlane_b32 s{sA}, v7")
e(f"v_mul_f32 v{CM}, 0x{f2u(-1.02 * (8.0 if cfg.force_fallback else 1.0)):08x}, v19")
for i in range(1, 16): e(f"v_mov_b32 v{CM+i}, v{CM}")
e(f"s_and_b32 s{sSEL}, s{sA}, 0x7ff")
e(f"s_lshr_b32 s{sC}, s{sSEL}, 5")
e(f"s_cmp_eq_u32 s{sC}, s{sTG}")
e(f"s_cselect_b32 s{sOWN}, 1, 0")
e(f"s_and_b32 s{sR16}, s{sA}, 0xffff0000")
e(f"s_lshl_b32 s{sHK}, s{sOWN}, 7")
e(f"s_or_b32 s{sHK}, s{sHK}, 0x62")
e(f"s_cmp_lt_u32 s{sW}, 4")
e(f"s_cselect_b32 s{sHK}, s{sHK}, 0")
e(f"s_cmp_eq_u32 s{sW}, 0")
e(f"s_cselect_b32 s{sC}, 0x28, 0")
e(f"s_xor_b32 s{sHK}, s{sHK}, s{sC}")
e(f"s_cmp_eq_u32 s{sW}, {FW}")
e(f"s_cselect_b32 s{sC}, 8, 0")
e(f"s_or_b32 s{sHK}, s{sHK}, s{sC}")
stamp("kviss")
e("s_branch L_attn1")

a.label("L_attn")
e(f"ds_read_b128 {v(QF,4)}, v{vNq}")
a.label("L_attn1")
e(f"v_mov_b32 v52, {GOW}")
e(f"s_mov_b32 s{sIT}, 0")
e(f"s_cmp_eq_u32 s{sFB}, 0")
e("s_cbranch_scc0 L_fbc_0")
a.label("L_fbr_0")
if cfg.prio: e("s_setprio 3")
vmw(15)
e("s_waitcnt lgkmcnt(0)")
mf32(S0, KF, QF, v(CM, 16))
stamp("K0")
STUBS = []
a.strict = True
for st in range(8):
    O = (O0, O1)[st & 1]; Op = (O1, O0)[st & 1]
    k = st & 3
    for j in range(8):
        t = st * 8 + j
        Sc = (S0, S1)[t & 1]; Sn = (S1, S0)[t & 1]
        jn = (j + 1) & 7
        def ex(p):
            e(f"v_exp_f32 v{Sc+2*p}, v{Sc+2*p}")
            e(f"v_exp_f32 v{Sc+2*p+1}, v{Sc+2*p+1}")
        def cv(p): e(f"v_cvt_pk_bf16_f32 v{PP+p}, v{Sc+2*p}, v{Sc+2*p+1}")
        def init_reads():
            kk = k if st < 7 else 4
            e(f"ds_read_b64 {v(Op+8,2)}, v{vAt+kk}")
            e(f"ds_read_b128 {v(Op,4)}, v{vAd+kk}")
            e(f"ds_read_b128 {v(Op+4,4)}, v{vAd+kk} offset:1024")
            if st == 7: e("ds_read_b32 v53, v52")
        if j == 7 and st < 7:
            e("s_waitcnt lgkmcnt(0)")
            if st == 7: e(f"v_mul_u32_u24 v{Op+9}, v53, v{Op+9}")
            if st > 0: e(f"v_cmp_ne_u32 vcc, {st if st < 7 else 28}, v{Op+9}")
            if st < 7:
                e(f"s_cmp_eq_u32 s{sFB}, 0")
                e(f"s_cbranch_scc0 L_fbc_{st+1}")
            else:
                e("s_nop 1")
            a.label(f"L_fbr_{st+1}")
            if st > 0: e(f"s_cbranch_vccnz L_retry_{st}")
            a.label(f"L_ok_{st}")
            stamp(f"st{st}", (2,))
            if st > 0: STUBS.append((st, Op, k if st < 7 else 4))
            if cfg.prio and st in (1, 3, 5): e(f"s_setprio {3 - (st + 1) // 2}")
        def smf():
            if st == 0 and j < 7: vmw(15 - 2 * jn)
            if not (st == 7 and j == 7):
                mf32(Sn, KF + 4 * jn, QF, v(CM, 16))
        def pv1():
            if j == 0:
                if st > 0: mf32(Op, V1 + 4 * 7, PP + 4, v(Op, 16))
            else: mf32(O, V1 + 4 * (j - 1), PP + 4, v(O, 16))
        def side():
            if st == 0:
                if j == 7: vmw(0)
                for i in range(4): e(f"v_permlane16_swap_b32 v{V0+4*j+i}, v{V1+4*j+i}")
            if j == 6 and st < 7:
                kn = (st + 1) & 3
                if st + 1 >= 4: e(f"v_xor_b32 v{vNq+kn}, 4096, v{vNq+kn}")
                e(f"ds_read_b128 {v(QF,4)}, v{vNq+kn}")
            if j == (5 if st < 7 else 6) and st > 0: init_reads()
        if t == 0:
            e("s_nop 7"); e("s_nop 3")
        ex(0); pv1(); ex(1); ex(2); cv(0); smf(); ex(3); cv(1); ex(4); cv(2); ex(5); cv(3); side(); ex(6)
        mf32(O, V0 + 4 * j, PP, "0" if (j == 0 and st < 2) else v(O, 16))
        cv(4); ex(7); cv(5); cv(6); cv(7)
        if j == 0 and st > 0:
            kp = (st - 1) & 3
            e(f"v_mov_b32 v{Op+9}, {st}")
            e(f"ds_write_b128 v{vAd+kp}, {v(Op,4)}")
            e(f"ds_write_b128 v{vAd+kp}, {v(Op+4,4)} offset:1024")
            e(f"ds_write_b64 v{vAt+kp}, {v(Op+8,2)}")
            if st in (1, 3, 5, 6, 7):
                e(f"s_bitcmp1_b32 s{sHK}, {st}")
                e(f"s_cbranch_scc1 L_hook{st}")
                a.label(f"L_hret{st}")
a.strict = False
e(f"v_mov_b32 v50, {FBF}")
e(f"s_cmp_ge_u32 s{sW}, 4")
mf32(O1, V1 + 4 * 7, PP + 4, v(O1, 16))
if cfg.prio: e("s_setprio 3")
e("s_cbranch_scc1 L_tfin")
WF = 64; OF = 128; AC = V1; RES = 24; T = CM
sCT = 18; sOA = 19; sOB = 20; sMA = 21; sMB = 22; sMX = 23; sXO = 24
e(f"s_and_b32 s{sC}, s{sW}, 1")
e(f"s_lshr_b32 s{sD}, s{sW}, 1")
e(f"s_lshl_b32 s{sCT}, s{sC}, 1")
e(f"s_add_u32 s{sCT}, s{sCT}, s{sD}")
e(f"s_lshl_b32 s{sF}, s{sTG}, 15")
e(f"s_add_u32 s{sA}, s{sF}, {WS_O}")
e(f"s_lshr_b32 s{sB}, s{sHG}, 1")
e(f"s_lshl_b32 s{sB}, s{sB}, 8")
e(f"s_add_u32 s{sF}, s{sF}, s{sB}")
e(f"s_lshl_b32 s{sB}, s{sCT}, 6")
e(f"s_add_u32 s{sF}, s{sF}, s{sB}")
e(f"v_and_b32 v{T+4}, 31, v{vL}")
e(f"v_lshrrev_b32 v{T+5}, 5, v{vL}")
e(f"v_lshlrev_b32 v{T+6}, 10, v{T+4}")
e(f"v_lshl_add_u32 v{T+7}, v{T+5}, 4, v{T+6}")
e(f"v_lshl_add_u32 v{T+6}, v{T+5}, 3, v{T+6}")
for q in range(4):
    e(f"buffer_load_dwordx2 {v(40+2*q,2)}, v{T+6}, {s(rX,4)}, s{sF} offen offset:{16*q}")
e(f"s_lshl_b32 s{sD}, s{sD}, 1")
e(f"s_sub_u32 s{sE}, 3, s{sD}")
e(f"s_lshl_b32 s{sB}, s{sE}, 10")
e(f"s_add_u32 s{sOA}, s{sA}, s{sB}")
e(f"s_lshl_b32 s{sB}, s{sD}, 10")
e(f"s_add_u32 s{sOB}, s{sA}, s{sB}")
e(f"s_lshl_b32 s{sB}, s{sOH}, 2")
e(f"s_add_u32 s{sC}, s{sB}, s{sE}")
e(f"s_lshl_b32 s{sMA}, 1, s{sC}")
e(f"s_add_u32 s{sC}, s{sB}, s{sD}")
e(f"s_lshl_b32 s{sMB}, 1, s{sC}")
e(f"s_or_b32 s{sMB}, s{sMB}, 0xaa")
e(f"s_xor_b32 s{sC}, s{sW}, 2")
e(f"s_lshl_b32 s{sMX}, 0x100, s{sC}")
e(f"s_lshl_b32 s{sXO}, 0x100, s{sW}")
e(f"v_lshrrev_b32 v{T+2}, 2, v{vTK}")
e(f"v_and_b32 v{T+3}, 3, v{vTK}")
e(f"v_and_b32 v{T}, 1, v{vG}")
e(f"s_lshl_b32 s{sB}, s{sCT}, 1")
e(f"v_or_b32 v{T}, s{sB}, v{T}")
e(f"v_lshlrev_b32 v{T+1}, 1, v{T+2}")
e(f"v_xor_b32 v{T}, v{T}, v{T+1}")
e(f"v_lshlrev_b32 v{T}, 5, v{T}")
e(f"v_lshl_add_u32 v{T}, v{T+3}, 3, v{T}")
e(f"v_lshl_add_u32 v{T+1}, v{T+5}, 2, v{T+2}")
e(f"v_lshl_add_u32 v{T}, v{T+1}, 8, v{T}")
e(f"s_lshl_b32 s{sB}, s{sE}, 12")
e(f"v_add_u32 v{T}, s{sB}, v{T}")
e(f"v_xor_b32 v{T+1}, 64, v{T}")
e(f"v_add_u32 v{T+2}, 0x10000, v{T}")
e(f"v_add_u32 v{T+3}, 0x10000, v{T+1}")
e(f"v_lshlrev_b32 v{T+6}, 2, v{T+4}")
e(f"s_lshl_b32 s{sB}, s{sW}, 13")
e(f"s_add_u32 s{sB}, s{sB}, 4096")
e(f"v_add_u32 v{T+9}, s{sB}, v{vL16}")
e(f"v_xor_b32 v{T+10}, 0x4000, v{T+9}")
e(f"v_mov_b32 v{T+11}, s{sXO}")
a.label("L_gow")
e("ds_read_b32 v51, v52")
e("s_waitcnt lgkmcnt(0)")
e(f"v_readfirstlane_b32 s{sC}, v51")
e(f"s_and_b32 s{sC}, s{sC}, 7")
e(f"s_cmp_eq_u32 s{sC}, 4")
e("s_cbranch_scc0 L_gow")
e(f"s_lshl_b32 s{sB}, s{sTG}, 7")
e(f"s_add_u32 s{sB}, s{sB}, {WS_G}")
e(f"buffer_load_dword v48, v{T+6}, {s(rWS,4)}, s{sB} offen sc1")
def wo_reads(lo=0, hi=8):
    for i in range(lo, hi):
        for c in range(2):
            b = T + c + (2 if i >= 4 else 0); o = (i & 3) * 16384
            e(f"ds_read_b64_tr_b16 {v(WF+8*i+4*c,2)}, v{b} offset:{o}")
            e(f"ds_read_b64_tr_b16 {v(WF+8*i+4*c+2,2)}, v{b} offset:{o+2048}")
def o_loads(par, lo, hi):
    for i in range(lo, hi):
        e(f"s_add_u32 s{sB}, s{sOA if par else sOB}, {i*4096}")
        e(f"buffer_load_dwordx4 {v(OF+4*i,4)}, v{vL16}, {s(rWS,4)}, s{sB} offen sc1")
GSTUB = []
def pub_wait(m):
    Lw = L("pw")
    a.label(Lw)
    e("ds_read_b32 v51, v50")
    e("s_waitcnt lgkmcnt(0)")
    e(f"v_readfirstlane_b32 s{sC}, v51")
    e(f"s_and_b32 s{sC}, s{sC}, s{m}")
    e(f"s_cmp_eq_u32 s{sC}, s{m}")
    e(f"s_cbranch_scc0 {Lw}")
def o_half(par):
    for gq in range(4):
        a.label(f"L_oc{par}{gq}")
        vmw(6 - 2 * gq)
        R = OF + 8 * gq
        e(f"v_max3_u32 v{T+8}, v{R}, v{R+1}, v{R+2}")
        e(f"v_max3_u32 v{T+8}, v{T+8}, v{R+3}, v{R+4}")
        e(f"v_max3_u32 v{T+8}, v{T+8}, v{R+5}, v{R+6}")
        e(f"v_max_u32 v{T+8}, v{T+8}, v{R+7}")
        e(f"v_cmp_eq_u32 vcc, -1, v{T+8}")
        e("s_nop 0")
        e(f"s_cbranch_vccnz L_or{par}{gq}")
        a.label(f"L_og{par}{gq}")
        order = [(i, c) for i in range(2 * gq, 2 * gq + 2) for c in (1, 0)]
        if par == 0 and gq == 3: order = [(6, 1), (7, 1), (6, 0), (7, 0)]
        for i, c in order:
            mf32(AC + 16 * c, WF + 8 * i + 4 * c, OF + 4 * i, "0" if (par == 1 and i == 0) else v(AC + 16 * c, 16))
            if par == 1 and c == 0: wo_reads(i, i + 1)
        GSTUB.append((par, gq))
wo_reads()
e(f"s_mov_b32 s{sSPIN}, 0")
e(f"s_sub_u32 s{sB}, s{sOB}, s{sOA}")
e(f"s_lshl_b32 s{sB}, s{sB}, 2")
for i in range(4): e(f"v_add_u32 v{T+i}, s{sB}, v{T+i}")
xstamp(5, 6)
e("s_branch L_retry_7b")
a.label("L_tfin")
e("s_waitcnt lgkmcnt(0)")
e(f"v_mul_u32_u24 v{O0+9}, v53, v{O0+9}")
e(f"v_cmp_ne_u32 vcc, 28, v{O0+9}")
e("s_nop 4")
e("s_cbranch_vccnz L_retry_7")
a.label("L_ok_7")
STUBS.append((7, O0, 4))
e(f"v_readfirstlane_b32 s{sD}, v53")
e(f"v_mov_b32 v7, s{sPI}")
e(f"v_add_f32 v{O1+8}, v{O1+8}, v{O0+8}")
stamp("loopend")
for r in range(4): e(f"v_add_f32 v{O1+r}, v{O1+r}, v{O0+r}")
e(f"v_rcp_f32 v51, v{O1+8}")
for r in range(4, 8): e(f"v_add_f32 v{O1+r}, v{O1+r}, v{O0+r}")
e(f"v_cmp_gt_f32 vcc, 0x{f2u(2.0**-80):08x}, v{O1+8}")
for r in range(8): e(f"v_mul_f32 v{O1+r}, v{O1+r}, v51")
for r in range(4):
    e(f"v_cvt_pk_bf16_f32 v{PP+r}, v{O1+2*r}, v{O1+2*r+1}")
e(f"s_cmp_eq_u32 s{sD}, 4")
for r in range(4): e(f"v_min_u32 v{PP+r}, -2, v{PP+r}")
e("s_cbranch_vccnz L_bad")
e("s_cbranch_scc1 L_pubx")
e(f"buffer_store_dwordx4 {v(PP,4)}, v{vL16}, {s(rWS,4)}, s{sPO} offen")
a.label("L_nopub")
e("s_mov_b64 exec, 1")
e("ds_add_u32 v50, v7")
e("s_mov_b64 exec, -1")
stamp("opub"); xstamp(4, 6)
e(f"s_cmp_ge_u32 s{sW}, 4")
e("s_cbranch_scc1 L_tbar")
pub_wait(sMA)
xstamp(6, 6)
o_loads(1, 0, 8)
xstamp(7, 6)
o_half(1)
xstamp(9, 6)
if cfg.stamps == 6: e(f"s_mov_b32 s{sST+15}, s{sSPIN}")
stamp("half1")
pub_wait(sMB)
stamp("B8"); xstamp(11, 6)
o_loads(0, 0, 8)
xstamp(12, 6)
e("v_sub_f32 v49, 1.0, v48")
for q in range(4):
    e(f"v_lshlrev_b32 v{RES+4*q}, 16, v{40+2*q}")
    e(f"v_and_b32 v{RES+4*q+1}, 0xffff0000, v{40+2*q}")
    e(f"v_lshlrev_b32 v{RES+4*q+2}, 16, v{41+2*q}")
    e(f"v_and_b32 v{RES+4*q+3}, 0xffff0000, v{41+2*q}")
e(f"s_cmp_eq_u32 s{sOWN}, 1")
e("s_cbranch_scc1 L_y")
a.label("L_noy")
for i in range(16): e(f"v_mul_f32 v{RES+i}, v{RES+i}, v49")
o_half(0)
for q in range(4): e(f"ds_write_b128 v{T+9}, {v(AC+16+4*q,4)} offset:{1024*q}")
e("s_mov_b64 exec, 1")
e(f"ds_add_u32 v50, v{T+11}")
e("s_mov_b64 exec, -1")
stamp("ogath"); xstamp(13, 6)
for i in range(16): e(f"v_fmac_f32 v{RES+i}, v{AC+i}, v48")
a.label("L_xw")
e("ds_read_b32 v51, v50")
for q in range(4): e(f"ds_read_b128 {v(OF+4*q,4)}, v{T+10} offset:{1024*q}")
e("s_waitcnt lgkmcnt(4)")
e(f"v_readfirstlane_b32 s{sC}, v51")
e(f"s_and_b32 s{sB}, s{sC}, s{sMX}")
e("s_cbranch_scc0 L_xr")
e("s_waitcnt lgkmcnt(0)")
for i in range(16): e(f"v_fmac_f32 v{RES+i}, v{OF+i}, v48")
xstamp(10, 6)
for i in range(8): e(f"v_cvt_pk_bf16_f32 v{PP+i}, v{RES+2*i}, v{RES+2*i+1}")
for k in (0, 4):
    e(f"v_permlane32_swap_b32 v{PP+k}, v{PP+k+2}")
    e(f"v_permlane32_swap_b32 v{PP+k+1}, v{PP+k+3}")
for k in (0, 4):
    e(f"buffer_store_dwordx4 {v(PP+k,4)}, v{T+7}, {s(rOUT,4)}, s{sF} offen offset:{8*k}")
if cfg.stamps == 1: e(f"s_mov_b32 s{sST+15}, s{sSPIN}")
e(f"s_or_b32 s{sA}, s2, s{sW}")
e("s_cbranch_scc1 L_nobump")
e("v_mov_b32 v6, 0")
e(f"v_mov_b32 v7, s{sT}")
e(f"s_mov_b32 s{sA}, {WS_EP}")
e(f"buffer_store_dword v7, v6, {s(rWS,4)}, s{sA} offen")
a.label("L_nobump")
a.label("L_tbar")
e("s_waitcnt lgkmcnt(0)")
e("s_barrier")
e("ds_read_b32 v51, v50")
e("s_waitcnt lgkmcnt(0)")
e(f"v_readfirstlane_b32 s{sC}, v51")
e(f"s_cmp_ge_u32 s{sC}, 0x10000")
e("s_cbranch_scc1 L_fallback")
if cfg.hold == 1: stamp("end")
if cfg.stamps:
    stamp("stored")
    e("s_waitcnt vmcnt(0)")
    stamp("end")
    if cfg.dbgwg >= 0:
        e(f"s_cmp_eq_u32 s2, {cfg.dbgwg}")
        e("s_cbranch_scc0 L_end")
        e(f"s_cmp_eq_u32 s{sW}, {cfg.dbgwave}")
        e("s_cbranch_scc0 L_end")
        e("v_mov_b32 v6, 0")
        srd(rDBG, pDBG, 256)
        for i in range(1, 16): e(f"s_sub_u32 s{sST+i}, s{sST+i}, s{sST}")
        for q in range(4):
            for i in range(4): e(f"v_mov_b32 v{8+i}, s{sST+4*q+i}")
            e(f"buffer_store_dwordx4 v[8:11], v6, {s(rDBG,4)}, 0 offen offset:{16*q}")
            e("s_nop 1")
    else:
        a.label("L_dump")
        e(f"s_lshl_b32 s{sA}, s2, 3")
        e(f"s_add_u32 s{sA}, s{sA}, s{sW}")
        e(f"s_lshl_b32 s{sA}, s{sA}, 6")
        e(f"s_add_u32 s{sA}, s{sA}, {WS_STAMP}")
        e("v_mov_b32 v6, 0")
        for q in range(4):
            for i in range(4): e(f"v_mov_b32 v{8+i}, s{sST+4*q+i}")
            e(f"buffer_store_dwordx4 v[8:11], v6, {s(rWS,4)}, s{sA} offen offset:{16*q}")
            e("s_nop 1")
a.label("L_end")
e("s_endpgm")

for st, Op, kk in STUBS:
    a.label(f"L_retry_{st}")
    a.hist = []
    e("s_sleep 1")
    e(f"s_add_u32 s{sIT}, s{sIT}, 1")
    e(f"s_cmp_gt_u32 s{sIT}, {cfg.spin*16}")
    e(f"s_cbranch_scc1 L_ok_{st}")
    if st == 7: a.label("L_retry_7b")
    e(f"ds_read_b64 {v(Op+8,2)}, v{vAt+kk}")
    e(f"ds_read_b128 {v(Op,4)}, v{vAd+kk}")
    e(f"ds_read_b128 {v(Op+4,4)}, v{vAd+kk} offset:1024")
    if st == 7: e("ds_read_b32 v53, v52")
    e("s_waitcnt lgkmcnt(0)")
    if st == 7: e(f"v_mul_u32_u24 v{Op+9}, v53, v{Op+9}")
    e(f"v_cmp_ne_u32 vcc, {st if st < 7 else 28}, v{Op+9}")
    e("s_nop 4")
    e(f"s_cbranch_vccnz L_retry_{st}")
    e(f"s_branch L_ok_{st}")

a.label("L_pubx")
e(f"buffer_store_dwordx4 {v(PP,4)}, v{vL16}, {s(rWS,4)}, s{sPO} offen sc1")
e("s_branch L_nopub")
a.label("L_bad")
e(f"s_cmp_eq_u32 s{sFB}, 0")
e("s_cbranch_scc0 L_pubx")
e("v_add_u32 v7, 0x10000, v7")
e("s_branch L_nopub")
a.label("L_xr")
e(f"s_cmp_ge_u32 s{sC}, 0x10000")
e("s_cbranch_scc1 L_tbar")
e("s_branch L_xw")
a.label("L_y")
a.hist = []
for i in range(4): e(f"v_add_f32_dpp v{12+i}, v{8+i}, v{8+i} row_ror:8 row_mask:0xf bank_mask:0xf")
sum4 = [(12 + i, 16 + i) for i in range(4)]
for x_, t_ in sum4: e(f"v_mov_b32 v{t_}, v{x_}")
for x_, t_ in sum4: e(f"v_permlane32_swap_b32 v{x_}, v{t_}")
for x_, t_ in sum4: e(f"v_add_f32 v{x_}, v{x_}, v{t_}")
for x_, t_ in sum4: e(f"v_mov_b32 v{t_}, v{x_}")
for x_, t_ in sum4: e(f"v_permlane16_swap_b32 v{x_}, v{t_}")
for x_, t_ in sum4: e(f"v_add_f32 v{x_}, v{x_}, v{t_}")
e(f"v_mov_b32 v16, s{sR16}")
e("v_ashrrev_i32 v17, 31, v16")
e("v_not_b32 v17, v17")
e("v_or_b32 v17, 0x80000000, v17")
e("v_xor_b32 v16, v16, v17")
e("v_and_b32 v16, 0xffff0000, v16")
sigmoid(16)
round_bf16(16)
for i in range(4):
    round_bf16(12 + i)
    e(f"v_mul_f32 v{12+i}, v{12+i}, v16")
    round_bf16(12 + i)
e(f"s_lshl_b32 s{sB}, s{sW}, 7")
e(f"s_add_u32 s{sB}, s{sB}, {YB}")
e(f"v_add_u32 v17, s{sB}, v{vL16}")
e("s_mov_b64 exec, 0xff")
e("ds_write_b128 v17, v[12:15]")
e("s_mov_b64 exec, -1")
e(f"v_lshl_add_u32 v17, v{T+5}, 4, s{sB}")
for q in range(4): e(f"ds_read_b128 {v(O0+4*q,4)}, v17 offset:{32*q}")
e(f"s_and_b32 s{sC}, s{sSEL}, 31")
e(f"v_cmp_eq_u32 vcc, s{sC}, v{T+4}")
e("s_waitcnt lgkmcnt(0)")
e("s_mov_b64 exec, vcc")
for i in range(16): e(f"v_add_f32 v{RES+i}, v{RES+i}, v{O0+i}")
e("s_mov_b64 exec, -1")
e("s_branch L_noy")
for par, gq in GSTUB:
    a.label(f"L_or{par}{gq}")
    a.hist = []
    e(f"s_add_u32 s{sSPIN}, s{sSPIN}, 1")
    e(f"s_cmp_gt_u32 s{sSPIN}, {cfg.spin}")
    e(f"s_cbranch_scc1 L_og{par}{gq}")
    e("ds_read_b32 v51, v50")
    o_loads(par, 2 * gq, 8)
    e("s_waitcnt lgkmcnt(0)")
    e(f"v_readfirstlane_b32 s{sC}, v51")
    e(f"s_cmp_ge_u32 s{sC}, 0x10000")
    e("s_cbranch_scc1 L_tbar")
    e(f"s_branch L_oc{par}{gq}")
a.label("L_hook1")
a.hist = []
e(f"s_cmp_eq_u32 s{sW}, {FW}")
e("s_cbranch_scc1 L_hook1_f")
e(f"s_lshl_b32 s{sA}, s{sW}, 17")
e(f"s_lshl_b32 s{sE}, s{sW}, 15")
for S in range(32):
    e(f"s_add_u32 m0, s{sE}, {S*1024}")
    e(f"s_add_u32 s{sB}, s{sA}, {S*4096}")
    dma(10, rWO, f"s{sB}")
e(f"s_cmp_eq_u32 s{sW}, 0")
e("s_cbranch_scc0 L_hret1")
for i in range(4): e(f"v_mov_b32 v{20+i}, -1")
e(f"s_lshl_b32 s{sB}, s{sGR}, 16")
e(f"s_lshl_b32 s{sC}, s{sHG}, 12")
e(f"s_add_u32 s{sB}, s{sB}, s{sC}")
e(f"s_add_u32 s{sB}, s{sB}, {WS_O}")
for i in range(8):
    if i == 4: e(f"s_add_u32 s{sB}, s{sB}, 32768")
    e(f"buffer_store_dwordx4 v[20:23], v{vL16}, {s(rWS,4)}, s{sB} offen offset:{(i&3)*1024} sc1")
e("s_branch L_hret1")
a.label("L_hook1_f")
e(f"s_cmp_eq_u32 s{sFV}, 1")
e("s_cbranch_scc0 L_hret1")
srd(rT1, pWD, 1792 * 1024)
e(f"s_lshl_b32 s{sA}, s{sF0}, 10")
for i in range(8):
    e(f"s_mov_b32 m0, {FB+F_D+i*1088}")
    e(f"s_add_u32 s{sB}, s{sA}, {i*1024}")
    dma(vL16, rT1, f"s{sB}")
e(f"s_mov_b32 m0, {FB+F_X}")
e(f"s_lshl_b32 s{sB}, s{sSEL}, 10")
dma(vL16, rX, f"s{sB}")
srd(rT1, pWG, 512 * 3584)
srd(rT2, pWU, 512 * 3584)
for i in range(8):
    e(f"s_xor_b32 s{sA}, s{sHG}, {i}")
    e(f"s_lshl_b32 s{sC}, s{sA}, 10")
    e(f"s_add_u32 m0, s{sC}, {FB+F_G}")
    e(f"s_mul_i32 s{sB}, s{sA}, {64*3584}")
    dma(11, rT1, f"s{sB}")
    e(f"s_add_u32 m0, s{sC}, {FB+F_U}")
    dma(11, rT2, f"s{sB}")
e("s_branch L_hret1")
a.label("L_hook3")
a.hist = []
e("s_waitcnt vmcnt(0)")
e(f"s_cmp_eq_u32 s{sW}, 0")
e("s_cbranch_scc0 L_hook3_f")
e("s_mov_b64 exec, 1")
e(f"s_getreg_b32 s{sB}, hwreg(HW_REG_XCC_ID, 0, 4)")
e(f"v_mov_b32 v6, s{sT}")
e(f"v_mov_b32 v7, s{sB}")
e(f"s_lshl_b32 s{sA}, s{sID}, 7")
e(f"s_add_u32 s{sA}, s{sA}, {WS_REC+16}")
e(f"buffer_store_dwordx2 v[6:7], v{vL4}, {s(rWS,4)}, s{sA} offen sc1")
e("s_mov_b64 exec, -1")
e("s_branch L_hret3")
a.label("L_hook3_f")
e(f"s_cmp_eq_u32 s{sFV}, 1")
e("s_cbranch_scc0 L_hook3_e")
def f_reads(S):
    w = 20 + 8 * (S % 3)
    e(f"ds_read_b64_tr_b16 {v(w,2)}, v8 offset:{F_G+S*512}")
    e(f"ds_read_b64_tr_b16 {v(w+2,2)}, v8 offset:{F_G+S*512+64}")
    e(f"ds_read_b128 {v(w+4,4)}, v9 offset:{F_X+S*64}")
for S in range(3): f_reads(S)
e("s_mov_b32 s18, 0x22222222")
e("s_mov_b32 s19, 0x22222222")
e("s_mov_b32 s20, 0x44444444")
e("s_mov_b32 s21, 0x44444444")
e("s_mov_b32 s22, 0x88888888")
e("s_mov_b32 s23, 0x88888888")
for S in range(16):
    left = min(S + 3, 16) - (S + 1)
    e(f"s_waitcnt lgkmcnt({3*left})")
    w = 20 + 8 * (S % 3)
    mf16(44, w, w + 4, "0" if S == 0 else v(44, 4))
    if S + 3 < 16: f_reads(S + 3)
def d_reads(J0):
    for J in range(J0, J0 + 4):
        e(f"ds_read_b64_tr_b16 {v(20+4*(J&3),2)}, v16 offset:{F_D+J*128}")
        e(f"ds_read_b64_tr_b16 {v(22+4*(J&3),2)}, v16 offset:{F_D+J*128+4*1088}")
d_reads(0)
e("v_cndmask_b32 v44, v44, v45, s[18:19]")
e("v_cndmask_b32 v44, v44, v46, s[20:21]")
e("v_cndmask_b32 v44, v44, v47, s[22:23]")
round_bf16(44)
e("v_mov_b32 v45, v44")
e("v_permlane32_swap_b32 v44, v45")
e(f"v_mul_f32 v46, 0x{f2u(-1.4426950408889634):08x}, v44")
e("v_exp_f32 v46, v46")
e("v_add_f32 v46, 1.0, v46")
e("v_rcp_f32 v46, v46")
e("v_mul_f32 v44, v44, v46")
round_bf16(44)
e("v_mul_f32 v44, v44, v45")
e("v_cvt_pk_bf16_f32 v44, v44, v44")
e("s_mov_b64 exec, 0xf000f")
e("ds_write_b16 v0, v44")
e("s_mov_b64 exec, -1")
e("ds_read_b128 v[48:51], v17")
e(f"s_and_b32 s{sA}, s2, {NREP-1}")
e(f"s_lshl_b32 s{sA}, s{sA}, 11")
e(f"s_add_u32 s{sA}, s{sA}, {WS_Y}")
for J0 in (0, 4):
    e("s_waitcnt lgkmcnt(0)")
    DR = (36, 40, 44, 12)
    for J in range(J0, J0 + 4):
        mf16(DR[J & 3], 48, 20 + 4 * (J & 3), "0")
    if J0 == 0: d_reads(4)
    for J in range(J0, J0 + 4):
        e(f"buffer_atomic_add_f32 v{DR[J&3]}, v{vL4}, {s(rWS,4)}, s{sA} offen offset:{J*256}")
a.label("L_hook3_e")
e("v_mov_b32 v7, 1")
e(f"ds_write_b32 v52, v7 offset:{FDN-GOW}")
e("s_branch L_hret3")
a.label("L_hook5")
a.hist = []
e(f"s_cmp_eq_u32 s{sW}, {FW}")
e("s_cbranch_scc0 L_hook5_w")
e("s_waitcnt vmcnt(0)")
e("s_mov_b64 exec, 1")
e(f"v_mov_b32 v7, s{sFV}")
e(f"s_mov_b32 s{sA}, {WS_CNT}")
e(f"buffer_atomic_add v7, v{vL4}, {s(rWS,4)}, s{sA} offen sc1")
e("s_mov_b64 exec, -1")
e("s_branch L_hret5")
a.label("L_hook5_w")
e(f"ds_read_b32 v7, v52 offset:{FDN-GOW}")
e("s_waitcnt lgkmcnt(0)")
e("v_cmp_ne_u32 vcc, 1, v7")
e("s_nop 1")
e("s_cbranch_vccnz L_hook5_w")
e(f"s_lshl_b32 s{sA}, s{sW}, 16")
e(f"s_lshl_b32 s{sE}, s{sW}, 14")
for S in range(16):
    e(f"s_add_u32 m0, s{sE}, {(80+S)*1024}")
    e(f"s_add_u32 s{sB}, s{sA}, {(80+S)*4096}")
    dma(10, rWO, f"s{sB}")
e("s_branch L_hret5")
a.label("L_hook6")
e(f"s_mov_b32 s{sB}, 1")
e(f"s_cmp_eq_u32 s{sW}, 0")
e("s_cbranch_scc0 L_hook6_a")
e(f"v_and_b32 v6, 7, v{vL}")
e("v_lshlrev_b32 v6, 7, v6")
e(f"s_lshl_b32 s{sA}, s{sGR}, 10")
e(f"s_add_u32 s{sA}, s{sA}, {WS_REC+16}")
e(f"s_mov_b32 s{sSPIN}, 0")
a.label("L_gpoll")
e(f"buffer_load_dwordx2 v[20:21], v6, {s(rWS,4)}, s{sA} offen sc1")
e(f"s_add_u32 s{sSPIN}, s{sSPIN}, 1")
e("s_waitcnt vmcnt(0)")
e(f"v_cmp_ne_u32 vcc, s{sT}, v20")
e(f"s_cmp_gt_u32 s{sSPIN}, {cfg.spin}")
e("s_cbranch_scc1 L_gpollout")
e("s_cbranch_vccnz L_gpoll")
a.label("L_gpollout")
e(f"s_getreg_b32 s{sB}, hwreg(HW_REG_XCC_ID, 0, 4)")
e(f"v_cmp_ne_u32 vcc, s{sB}, v21")
e("s_cmp_eq_u64 vcc, 0")
e(f"s_cselect_b32 s{sB}, {0x1000001 if cfg.xloc else 1}, 1")
a.label("L_hook6_a")
e(f"v_mov_b32 v7, s{sB}")
e("s_waitcnt vmcnt(0)")
e("s_mov_b64 exec, 1")
e("ds_add_u32 v52, v7")
e("s_mov_b64 exec, -1")
e("s_branch L_hret6")
a.label("L_hook7")
e("v_mov_b32 v6, 0")
e(f"s_mov_b32 s{sA}, {WS_CNT}")
e(f"s_mov_b32 s{sSPIN}, 0")
a.label("L_ypoll")
e(f"buffer_load_dword v7, v6, {s(rWS,4)}, s{sA} offen sc1")
e(f"s_add_u32 s{sSPIN}, s{sSPIN}, 1")
e("s_waitcnt vmcnt(0)")
e(f"v_readfirstlane_b32 s{sB}, v7")
e(f"s_cmp_gt_u32 s{sSPIN}, {cfg.spin}")
e("s_cbranch_scc1 L_ypollout")
e(f"s_cmp_eq_u32 s{sB}, {0 if cfg.noffn else 224}")
e("s_cbranch_scc0 L_ypoll")
a.label("L_ypollout")
e(f"s_lshr_b32 s{sA}, s{sHG}, 1")
e(f"s_lshl_b32 s{sA}, s{sA}, 9")
e(f"s_and_b32 s{sB}, s{sW}, 1")
e(f"s_lshl_b32 s{sB}, s{sB}, 8")
e(f"s_add_u32 s{sA}, s{sA}, s{sB}")
e(f"s_lshr_b32 s{sB}, s{sW}, 1")
e(f"s_lshl_b32 s{sB}, s{sB}, 7")
e(f"s_add_u32 s{sA}, s{sA}, s{sB}")
e(f"s_add_u32 s{sA}, s{sA}, {WS_Y}")
e(f"v_lshrrev_b32 v6, 3, v{vL}")
e(f"v_and_b32 v7, 7, v{vL}")
e("v_lshlrev_b32 v7, 4, v7")
e("v_lshl_add_u32 v6, v6, 11, v7")
assert NREP == 8
e(f"buffer_load_dwordx4 v[8:11], v6, {s(rWS,4)}, s{sA} offen sc1")
e("s_branch L_hret7")
for st in range(8):
    a.label(f"L_fbc_{st}")
    a.hist = []
    e(f"v_subrev_u32 v40, {QB}, v{vNq+(st&3)}")
    e("v_lshrrev_b32 v40, 10, v40")
    e(f"v_and_b32 v41, 31, v{vL}")
    e("v_lshl_add_u32 v40, v40, 5, v41")
    e("v_lshlrev_b32 v40, 2, v40")
    e(f"v_add_u32 v40, {FMX}, v40")
    e("ds_read_b32 v41, v40")
    e("s_waitcnt lgkmcnt(0)")
    for i in range(16): e(f"v_sub_f32 v{CM+i}, 0, v41")
    e("s_nop 1")
    e(f"s_branch L_fbr_{st}")
a.label("L_fallback")
a.hist = []
e("s_waitcnt vmcnt(0)")
e(f"s_mov_b32 s{sFB}, 1")
e(f"s_mov_b32 s{sHK}, 0")
e(f"v_and_b32 v40, 31, v{vL}")
e(f"v_lshrrev_b32 v41, 5, v{vL}")
e(f"v_lshlrev_b32 v{PP}, 5, v40")
e(f"v_lshl_add_u32 v{PP}, v41, 4, v{PP}")
e(f"s_lshl_b32 s{sA}, s{sW}, 13")
e(f"s_add_u32 s{sB}, s{sA}, {WS_V}")
e(f"s_add_u32 s{sE}, s{sA}, 4096")
e(f"s_add_u32 s{sF}, s{sB}, 4096")
for j in range(8): kv_load(j)
e(f"v_lshlrev_b32 v47, 2, v{vG}")
e(f"v_xor_b32 v47, v47, v{vTK}")
e("v_lshlrev_b32 v47, 4, v47")
e(f"v_lshl_add_u32 v47, v{vG}, 10, v47")
e(f"s_lshr_b32 s{sA}, s{sHG}, 1")
e(f"s_lshl_b32 s{sA}, s{sA}, 8")
e(f"v_add_u32 v47, s{sA}, v47")
e(f"s_lshl_b32 s{sA}, s{sW}, 14")
e(f"s_lshl_b32 s{sE}, s{sW}, 12")
for i in range(4):
    e(f"s_add_u32 m0, s{sE}, {i*1024}")
    e(f"s_add_u32 s{sB}, s{sA}, {i*4096}")
    dma(47, rWO, f"s{sB}")
e(f"v_and_b32 v40, 11, v{vTK}")
e("v_cmp_eq_u32 vcc, 0, v40")
e("v_mov_b32 v41, 0x3f803f80")
e("s_nop 7")
e(f"v_cndmask_b32 v{V1}, 0, v41, vcc")
for i in range(1, 32): e(f"v_mov_b32 v{V1+i}, v{V1}")
e(f"v_lshl_or_b32 v40, s{sW}, 6, v{vL}")
e("v_and_b32 v40, 255, v40")
e("v_lshlrev_b32 v40, 2, v40")
e(f"v_add_u32 v40, {FMX}, v40")
e("v_mov_b32 v41, 0xff800000")
e("ds_write_b32 v40, v41")
zero_slots(44)
for k in range(4): e(f"v_xor_b32 v{vNq+k}, 4096, v{vNq+k}")
e(f"v_add_u32 v42, {QB}, v{vL16}")
e(f"v_and_b32 v43, 31, v{vL}")
e("v_lshlrev_b32 v43, 2, v43")
e(f"v_add_u32 v43, {FMX}, v43")
e(f"s_mov_b32 s{sIT}, 0")
e("s_waitcnt vmcnt(0) lgkmcnt(0)")
e("s_barrier")
e("ds_write_b32 v50, v44")
a.label("L_fb_loop")
e(f"ds_read_b128 {v(QF,4)}, v42")
e("v_mov_b32 v41, 0xff800000")
e("s_waitcnt lgkmcnt(0)")
for j in range(8):
    mf32(S0, KF + 4 * j, QF, "0")
    for r in range(0, 16, 2):
        e(f"v_max3_f32 v41, v41, v{S0+r}, v{S0+r+1}")
e("ds_max_f32 v43, v41")
e("v_add_u32 v42, 1024, v42")
e("v_add_u32 v43, 128, v43")
e(f"s_add_u32 s{sIT}, s{sIT}, 1")
e(f"s_cmp_lt_u32 s{sIT}, 8")
e("s_cbranch_scc1 L_fb_loop")
e("s_waitcnt lgkmcnt(0)")
e("s_barrier")
e("s_branch L_attn")
a.label("L_code_end")

a.raw(f""".section .rodata,"a"
.p2align 6
.amdhsa_kernel {NAME}_kernel
  .amdhsa_next_free_vgpr 256
  .amdhsa_next_free_sgpr 102
  .amdhsa_accum_offset 256
  .amdhsa_group_segment_fixed_size 0
  .amdhsa_kernarg_size 112
  .amdhsa_user_sgpr_count 2
  .amdhsa_user_sgpr_kernarg_segment_ptr 1
  .amdhsa_system_sgpr_workgroup_id_x 1
.end_amdhsa_kernel""")
open(sys.argv[1], "w").write(a.text())
print("nops added:", a.nops_added, "stamps:", STAMPS)
```

```python
import sys, struct
from asmlib import Asm, v, s

NAME = "gated_mix__grouped_kv_mqa__moe_arch_mod__prompt"
def f2u(x): return struct.unpack("<I", struct.pack("<f", x))[0]

class Cfg:
    stamps = 0
    clk = 0
    force_fallback = 0
    spin = 0x40000
    prio = 1
    psleep = 2
    noffn = 0
    perm = 0
    ylate = 1
    otouch = 0
    xloc = 1
    narr = 4
    whi = 0
    chunk = 8
    pollat = 10
    pollat0 = 5
    kv0 = 2
    kv1 = 5
    cpf = 1
    nfirst = 4
    probe = 0
    hold = 0
    holdus = 60
    dbgwg = -1
    dbgwave = 7
    gearly = 0
    nup = 0
    xoe = 0
cfg = Cfg()
for a_ in sys.argv[2:]:
    k_, val_ = a_.split("=")
    assert hasattr(cfg, k_), k_
    setattr(cfg, k_, int(val_))

WS_K = 0; WS_V = 65536; WS_Y = 131072; WS_CNT = WS_Y + 32768; WS_REC = 256 * 1024; WS_EP = 320 * 1024; WS_G = 384 * 1024; WS_O = 1 << 20; WS_STAMP = 4 << 20
WS_BYTES = 8 << 20
NREP = 8
KB = 1024
XB_ = 0; WB = 64 * KB; WKB = 128 * KB; QB = 128 * KB; SLD = 136 * KB; SLT = 152 * KB
RGB = 156 * KB; FMX = 156 * KB; SCR = 158 * KB
QN2 = SCR + 1024
FBF = SCR + 16
GOW = SCR + 20
FDN = SCR + 24
HV = SCR + 256; ZV = SCR + 32
YB = SCR + 512
FW = 3
FB = 96 * KB
F_G = 0; F_U = 8192 + 64; F_D = 16384 + 128; F_X = F_D + 8 * 1088
NWO = 12
CSCALE = 0.25 * 1.4426950408889634

sW = 3; sGR = 4; sHG = 5; sA = 6; sB = 7; sC = 8; sD = 9; sE = 10; sF = 11; sIT = 12; sFB = 13; sSEL = 14; sR16 = 15
pX, pWQ, pWK, pWV, pWO, pBX, pWR, pWG = 16, 18, 20, 22, 24, 26, 28, 30
pWU, pWD, pGW, pOUT, pDBG, pWS = 32, 34, 36, 38, 40, 42
rX, rWQ, rWO, rT1, rWS, rOUT, rDBG, rT2 = 44, 48, 52, 56, 60, 64, 68, 72
sF0 = 76; sFV = 77; sOWN = 78; sSPIN = 79; sOH = 80; sTH = 81; sTG = 82; sU = 83
sRHO = 14; sXL = 15; sXG = 12; sWX = 78
sT = 68; sPB = 69; sID = 70; sHK = 71; sPO = 26; sPI = 27
sST = 84
vL = 1; vTK = 2; vG = 3; vL4 = 4; vL16 = 5
XA = 64; XBr = 128
KF = 64; V0 = 96; S0 = 128; S1 = 144; O0 = 160; O1 = 176; V1 = 192; CM = 224; PP = 240; QF = 248
vAd = 54; vAt = 59; vNq = 252

JOBS = {
    2: {FW: "scat0", 0: "sent", 4: "wo0"},
    3: {FW: "scat1"},
    4: {FW: "scat2", 6: "wo2"},
    5: {FW: "scat3"},
    6: {0: "rec", 1: "wo1", FW: "dstage", 4: "go"},
    8: {FW: "ffn", 5: "wo3", 6: "go"},
    10: {1: "go"},
    11: {FW: "count", 5: "go"},
    12: {0: "gpoll"},
    14: {"own": "y"},
}
NGO = 5
a = Asm()
e = a.e
STAMPS = []
uid = [0]
def L(p):
    uid[0] += 1
    return f"L_{p}_{uid[0]}"
HOLD = {1: "end", 2: "B6", 3: "loopend", 4: "B1a", 5: "entry"}
def stamp(name, sets=(1,)):
    if cfg.hold and HOLD[cfg.hold] == name:
        Lh = L("hold")
        a.label(Lh)
        e("s_memrealtime s[100:101]")
        e("s_waitcnt lgkmcnt(0)")
        e("s_sub_u32 s100, s100, s98")
        e(f"s_cmp_lt_u32 s100, {cfg.holdus * 100}")
        e(f"s_cbranch_scc1 {Lh}")
    if not cfg.stamps: return
    if cfg.probe and name != "entry": return
    if cfg.stamps == 3 and name in ("B1a", "polled", "B1b", "qdone", "prepoll", "B6", "kviss"): pass
    elif name not in ("entry", "K0", "loopend", "end") and cfg.stamps not in sets: return
    i = len(STAMPS)
    assert i < 16
    a.c(f"stamp {i}: {name}")
    e("s_memtime s[100:101]" if cfg.clk else "s_memrealtime s[100:101]")
    e("s_waitcnt lgkmcnt(0)")
    e(f"s_mov_b32 s{sST+i}, s100")
    STAMPS.append(name)

def xstamp(i, st_=3):
    if cfg.stamps != st_: return
    a.c(f"stamp {i}: x{i}")
    e("s_memrealtime s[100:101]")
    e("s_waitcnt lgkmcnt(0)")
    e(f"s_mov_b32 s{sST+i}, s100")
def srd(r, p, nbytes):
    e(f"s_mov_b32 s{r}, s{p}")
    e(f"s_mov_b32 s{r+1}, s{p+1}")
    e(f"s_mov_b32 s{r+2}, {nbytes}")
    e(f"s_mov_b32 s{r+3}, 0x20000")
def srd_sel(r, p1, p0, nbytes):
    e(f"s_cselect_b32 s{r}, s{p1}, s{p0}")
    e(f"s_cselect_b32 s{r+1}, s{p1+1}, s{p0+1}")
    e(f"s_mov_b32 s{r+2}, {nbytes}")
    e(f"s_mov_b32 s{r+3}, 0x20000")
def dma(voff, r, soff, off=0):
    o = f" offset:{off}" if off else ""
    e(f"buffer_load_dwordx4 v{voff}, {s(r,4)}, {soff} offen{o} lds")
def mf16(d, A, B, C):
    e(f"v_mfma_f32_16x16x32_bf16 {v(d,4)}, {v(A,4)}, {v(B,4)}, {C}")
def mf32(d, A, B, C):
    e(f"v_mfma_f32_32x32x16_bf16 {v(d,16)}, {v(A,4)}, {v(B,4)}, {C}")
def sum_over_g(x, t):
    e(f"v_mov_b32 v{t}, v{x}")
    e(f"v_permlane32_swap_b32 v{x}, v{t}")
    e(f"v_add_f32 v{x}, v{x}, v{t}")
    e(f"v_mov_b32 v{t}, v{x}")
    e(f"v_permlane16_swap_b32 v{x}, v{t}")
    e(f"v_add_f32 v{x}, v{x}, v{t}")
def round_bf16(x):
    e(f"v_cvt_pk_bf16_f32 v{x}, v{x}, v{x}")
    e(f"v_and_b32 v{x}, 0xffff0000, v{x}")
def sigmoid(x):
    e(f"v_mul_f32 v{x}, 0x{f2u(-1.4426950408889634):08x}, v{x}")
    e(f"v_exp_f32 v{x}, v{x}")
    e(f"v_add_f32 v{x}, 1.0, v{x}")
    e(f"v_rcp_f32 v{x}, v{x}")
def vmw(n): e(f"s_waitcnt vmcnt({n})")

def wq_steps(lo, hi):
    for S in range(lo, hi):
        e(f"s_add_u32 m0, s{sE}, {S*4096}")
        e(f"s_xor_b32 s{sA}, s{sWX}, {S*32768}")
        dma(10, rWQ, f"s{sA}")

def row_max(x):
    for n in (8, 4, 2, 1):
        e(f"v_max_u32_dpp v{x}, v{x}, v{x} row_ror:{n} row_mask:0xf bank_mask:0xf")

def zero_slots(t0):
    e(f"v_lshl_or_b32 v{t0+2}, s{sW}, 6, v{vL}")
    for i in range(2): e(f"v_mov_b32 v{t0+i}, 0")
    e(f"v_lshlrev_b32 v{t0+2}, 3, v{t0+2}")
    e(f"v_add_u32 v{t0+2}, {SLT}, v{t0+2}")
    e(f"ds_write_b64 v{t0+2}, {v(t0,2)}")

a.raw(f"""; fused gated-mix kernel: MQA attention (32 heads, d=16) + top-1 routed SwiGLU + sigmoid gate, one launch
; @launch grid=(256,1,1) block=(512,1,1) lds=163840
.amdgcn_target "amdgcn-amd-amdhsa--gfx950"
.text
.globl {NAME}_kernel
.p2align 12
.fill 832, 4, 0xbf800000
.p2align 8
.type {NAME}_kernel,@function
{NAME}_kernel:""")
e("s_cmp_ge_u32 s2, 256")
e("s_cbranch_scc1 L_end")
if cfg.hold: e("s_memrealtime s[98:99]")
xstamp(4, 5)
e("s_load_dwordx16 s[16:31], s[0:1], 0")
e("s_load_dwordx8 s[32:39], s[0:1], 64")
e("s_load_dwordx4 s[40:43], s[0:1], 96")
e(f"v_and_b32 v{vL}, 63, v0")
e("v_lshrrev_b32 v6, 6, v0")
e(f"v_and_b32 v{vTK}, 15, v0")
e(f"v_readfirstlane_b32 s{sW}, v6")
e(f"v_lshrrev_b32 v{vG}, 4, v{vL}")
e(f"v_lshlrev_b32 v{vL16}, 4, v{vL}")
e(f"v_lshlrev_b32 v{vL4}, 2, v{vL}")
e(f"s_and_b32 s{sA}, s2, 7")
e(f"s_lshr_b32 s{sHG}, s2, 5")
e(f"s_bfe_u32 s{sB}, s2, 0x20003")
e(f"s_lshl_b32 s{sGR}, s{sA}, 2")
e(f"s_add_u32 s{sGR}, s{sGR}, s{sB}")
e(f"s_mov_b32 s{sRHO}, s{sB}")
e(f"s_and_b32 s{sOH}, s{sHG}, 1")
e(f"s_lshr_b32 s{sTH}, s{sW}, 2")
e(f"s_xor_b32 s{sTH}, s{sTH}, s{sOH}")
e(f"s_lshl_b32 s{sC}, s{sB}, 3")
e(f"s_add_u32 s{sC}, s{sC}, s{sA}")
e(f"s_cmp_lt_u32 s{sC}, 28")
e(f"s_cselect_b32 s{sFV}, {0 if cfg.noffn else 1}, 0")
e(f"s_lshl_b32 s{sC}, s{sC}, 6")
e(f"s_lshl_b32 s{sB}, s{sHG}, 3")
e(f"s_add_u32 s{sF0}, s{sC}, s{sB}")
e(f"s_bfe_u32 s{sPB}, s{sHG}, 0x10001")
e(f"s_lshl_b32 s{sXL}, s{sOH}, 1")
e(f"s_add_u32 s{sXL}, s{sXL}, s{sPB}")
e(f"s_xor_b32 s{sXL}, s{sXL}, s{sW}")
e(f"s_lshl_b32 s{sXL}, s{sXL}, 14")
e(f"s_lshl_b32 s{sXG}, s{sGR}, 16")
e(f"s_lshl_b32 s{sB}, s{sRHO}, 8")
e(f"v_xor_b32 v11, s{sB}, v{vL16}")
e(f"s_and_b32 s{sD}, s{sW}, 3")
e(f"s_and_b32 s{sA}, s{sW}, 1")
e(f"s_lshl_b32 s{sC}, s{sD}, 13")
e(f"s_lshl_b32 s{sB}, s{sA}, 2")
e(f"v_and_b32 v6, 1, v{vG}")
e("v_lshlrev_b32 v6, 1, v6")
e(f"v_or_b32 v6, s{sB}, v6")
e(f"v_and_b32 v7, 7, v{vL}")
e("v_xor_b32 v6, v6, v7")
e("v_lshlrev_b32 v6, 4, v6")
e(f"v_lshrrev_b32 v7, 3, v{vL}")
e("v_lshl_add_u32 v6, v7, 10, v6")
e(f"s_lshl_b32 s{sB}, s{sHG}, 7")
e(f"s_add_u32 s{sB}, s{sB}, s{sC}")
e(f"v_add_u32 v10, s{sB}, v6")
e(f"s_lshl_b32 s{sE}, s{sD}, 10")
e(f"s_add_u32 s{sE}, s{sE}, {WB}")
e(f"s_lshl_b32 s{sWX}, s{sRHO}, 17")
e(f"v_and_b32 v6, 16, v{vL}")
e("v_lshlrev_b32 v6, 3, v6")
e(f"v_xor_b32 v21, v6, v{vL16}")
for r_, n_ in ((rX, 2097152), (rWQ, 524288), (rT2, 16384), (rT1, 1024)):
    e(f"s_mov_b32 s{r_+2}, {n_}")
    e(f"s_mov_b32 s{r_+3}, 0x20000")
e(f"s_lshl_b32 s{sA}, s{sW}, 14")
e(f"s_xor_b32 s{sA}, s{sA}, s{sXL}")
e(f"s_lshl_b32 s{sB}, s{sW}, 12")
e(f"s_add_u32 s{sU}, s{sA}, s{sB}")
e(f"s_add_u32 s{sF}, s{sU}, s{sXG}")
e(f"s_lshl_b32 s{sC}, s{sW}, 6")
e(f"v_xor_b32 v12, s{sC}, v11")
for i in range(1, 4): e(f"v_xor_b32 v{12+i}, {16*i}, v12")
e(f"s_lshl_b32 s{sC}, s{sRHO}, 12")
e(f"s_xor_b32 s{sC}, s{sC}, s{sB}")
e(f"s_add_u32 s{sB}, s{sB}, {WKB}")
e(f"v_mov_b32 v53, {SCR+128}")
e("v_mov_b32 v19, 0")
e("ds_write_b32 v53, v19 offset:4")
if cfg.cpf:
    e("s_getpc_b64 s[64:65]")
    a.label("L_pc")
    e(f"s_lshr_b32 s{sA}, s2, 3")
    e(f"s_lshl_b32 s{sA}, s{sA}, 10")
    e(f"s_min_u32 s{sA}, s{sA}, L_code_end-L_pc-1024")
    e(f"v_add_u32 v9, s{sA}, v{vL16}")
    e(f"s_cmp_eq_u32 s{sW}, 7")
    e("s_cbranch_scc0 L_nocpf")
    e("global_load_dwordx4 v[48:51], v9, s[64:65]")
    a.label("L_nocpf")
e(f"s_mov_b32 m0, s{sU}")
e("s_waitcnt lgkmcnt(0)")
stamp("entry")
e(f"s_mov_b32 s{rX}, s{pX}")
e(f"s_mov_b32 s{rX+1}, s{pX+1}")
e(f"s_mov_b32 s{rWQ}, s{pWQ}")
e(f"s_mov_b32 s{rWQ+1}, s{pWQ+1}")
e(f"s_cmp_ge_u32 s{sHG}, 4")
e(f"s_cselect_b32 s{rT2}, s{pWV}, s{pWK}")
e(f"s_cselect_b32 s{rT2+1}, s{pWV+1}, s{pWK+1}")
e(f"s_cmp_ge_u32 s{sW}, 4")
e("s_cbranch_scc1 L_p1hi")
for i in range(4): dma(12 + i, rX, f"s{sF}", 1024 * i)
e(f"s_mov_b32 m0, s{sB}")
e(f"s_load_dword s{sT}, s[{pWS}:{pWS+1}], {WS_EP}")
for i in range(4): dma(21, rT2, f"s{sC}", 1024 * i)
e(f"s_cmp_ge_u32 s{sW}, 2")
e("s_cbranch_scc1 L_p1end")
e(f"s_lshl_b32 s{sA}, s{sW}, 10")
e(f"s_add_u32 m0, s{sA}, {RGB}")
e(f"s_cmp_eq_u32 s{sW}, 1")
e(f"s_cselect_b32 s{rT1}, s{pGW}, s{pWR}")
e(f"s_cselect_b32 s{rT1+1}, s{pGW+1}, s{pWR+1}")
dma(11, rT1, "0")
a.label("L_p1end")
e("s_barrier")
e("s_branch L_setup")
a.label("L_p1hi")
e("s_barrier")
wq_steps(0, cfg.whi)
def x_dma(lo=0, hi=16):
    for i in range(lo, hi):
        if i % 4 == 0 or i == lo:
            e(f"s_add_u32 m0, s{sXL}, {XB_ + (i>>2)*4096}")
            e(f"s_add_u32 s{sF}, s{sXG}, m0")
        e(f"v_xor_b32 v7, {i<<4}, v11")
        dma(7, rX, f"s{sF}", (i & 3) * 1024)
a.label("L_setup")
xstamp(5, 5)
e(f"s_lshl_b32 s{sTG}, s{sGR}, 1")
e(f"s_add_u32 s{sTG}, s{sTG}, s{sOH}")
e(f"s_lshl_b32 s{sID}, s{sGR}, 3")
e(f"s_add_u32 s{sID}, s{sID}, s{sHG}")
e(f"s_mov_b32 s{sFB}, 0")
srd(rWS, pWS, WS_BYTES)
e(f"v_lshlrev_b32 v8, 2, v{vTK}")
e(f"v_add_u32 v8, {SCR}, v8")
e("ds_write_b32 v8, v19")
e("ds_write_b32 v8, v19 offset:1024")
e("ds_write_b32 v8, v19 offset:1088")
zero_slots(22)
srd(rWO, pWO, 524288)
srd(rOUT, pOUT, 2097152)
e(f"v_and_b32 v6, 11, v{vTK}")
e("v_cmp_eq_u32 vcc, 0, v6")
e("v_mov_b32 v7, 0x3f803f80")
e(f"v_cndmask_b32 v{V1}, 0, v7, vcc")
for i in range(1, 32): e(f"v_mov_b32 v{V1+i}, v{V1}")
xstamp(6, 5)
e(f"s_and_b32 s{sA}, s{sW}, 3")
e(f"s_lshr_b32 s{sB}, s{sW}, 2")
e(f"v_lshlrev_b32 v6, 3, v{vL}")
for k in range(5):
    if k < 4:
        e(f"s_add_u32 s{sC}, s{sA}, {k}")
        e(f"s_and_b32 s{sC}, s{sC}, 3")
        e(f"s_lshl_b32 s{sD}, s{sB}, 2")
    else:
        e(f"s_add_u32 s{sC}, s{sA}, 2")
        e(f"s_and_b32 s{sC}, s{sC}, 3")
        e(f"s_xor_b32 s{sD}, s{sB}, 1")
        e(f"s_lshl_b32 s{sD}, s{sD}, 2")
    e(f"s_add_u32 s{sC}, s{sC}, s{sD}")
    e(f"s_lshl_b32 s{sD}, s{sC}, 11")
    e(f"s_add_u32 s{sD}, s{sD}, {SLD}")
    e(f"v_add_u32 v{vAd+k}, s{sD}, v{vL16}")
    e(f"s_lshl_b32 s{sD}, s{sC}, 9")
    e(f"s_add_u32 s{sD}, s{sD}, {SLT}")
    e(f"v_add_u32 v{vAt+k}, s{sD}, v6")
e(f"s_lshl_b32 s{sA}, s{sA}, 1")
for k in range(4):
    e(f"s_xor_b32 s{sC}, s{sB}, {k}")
    e(f"s_add_u32 s{sC}, s{sC}, s{sA}")
    e(f"s_and_b32 s{sC}, s{sC}, 7")
    e(f"s_lshl_b32 s{sC}, s{sC}, 10")
    e(f"s_add_u32 s{sC}, s{sC}, {QB}")
    e(f"v_add_u32 v{vNq+k}, s{sC}, v{vL16}")
e(f"s_xor_b32 s{sC}, s{sB}, 7")
e(f"s_add_u32 s{sC}, s{sC}, s{sA}")
e(f"s_and_b32 s{sU}, s{sC}, 7")
e(f"s_lshr_b32 s{sB}, s{sU}, 2")
e(f"s_lshl_b32 s{sPO}, s{sB}, 15")
e(f"s_and_b32 s{sC}, s{sU}, 3")
e(f"s_lshl_b32 s{sC}, s{sC}, 10")
e(f"s_add_u32 s{sPO}, s{sPO}, s{sC}")
e(f"s_add_u32 s{sPO}, s{sPO}, s{sXG}")
e(f"s_lshl_b32 s{sC}, s{sHG}, 12")
e(f"s_add_u32 s{sPO}, s{sPO}, s{sC}")
e(f"s_add_u32 s{sPO}, s{sPO}, {WS_O}")
e(f"s_lshl_b32 s{sPI}, 1, s{sU}")
e(f"s_mov_b32 s{sHK}, 0")
for w_ in range(8):
    m_ = sum(1 << p for p, d in JOBS.items() if w_ in d)
    if m_:
        e(f"s_cmp_eq_u32 s{sW}, {w_}")
        e(f"s_cselect_b32 s{sHK}, {m_}, s{sHK}")
xstamp(7, 5)
e(f"s_lshl_b32 s{sB}, s{sPB}, 14")
e(f"s_lshl_b32 s{sC}, s{sTH}, 15")
e(f"s_add_u32 s{sB}, s{sB}, s{sC}")
for q in range(4):
    e(f"v_add_u32 v6, {4*q}, v{vG}")
    e(f"v_xor_b32 v6, v6, v{vTK}")
    e("v_lshlrev_b32 v6, 4, v6")
    e(f"v_lshl_add_u32 v6, v{vTK}, 10, v6")
    e(f"v_add_u32 v{12+q}, s{sB}, v6")
e(f"v_lshrrev_b32 v8, 2, v{vTK}")
e(f"v_and_b32 v9, 3, v{vTK}")
e(f"v_and_b32 v6, 1, v{vG}")
e("v_lshlrev_b32 v6, 7, v6")
e(f"v_lshl_add_u32 v6, v{vG}, 8, v6")
e("v_lshl_add_u32 v6, v8, 5, v6")
e("v_lshl_add_u32 v6, v9, 3, v6")
e(f"v_add_u32 v16, {WKB}, v6")
e("v_xor_b32 v17, 128, v16")
e(f"v_and_b32 v6, 1, v{vTK}")
e("v_lshlrev_b32 v6, 10, v6")
e(f"v_lshl_add_u32 v6, v{vG}, 4, v6")
e(f"v_add_u32 v18, {RGB}, v6")
e(f"v_and_b32 v6, 1, v{vG}")
e("v_lshrrev_b32 v7, 1, v8")
e("v_lshl_or_b32 v6, v6, 1, v7")
e(f"s_and_b32 s{sA}, s{sW}, 3")
e(f"v_xor_b32 v6, s{sA}, v6")
e("v_lshlrev_b32 v6, 5, v6")
e("v_lshl_add_u32 v6, v9, 3, v6")
e(f"v_lshl_add_u32 v7, v{vG}, 3, v8")
e("v_lshl_add_u32 v6, v7, 7, v6")
e(f"v_add_u32 v26, {WB}, v6")
e(f"s_lshl_b32 s{sA}, s{sPB}, 4")
e(f"v_add_u32 v30, s{sA}, v{vTK}")
e("v_mov_b32 v27, v30")
e(f"v_lshrrev_b32 v6, 1, v{vG}")
e("v_lshlrev_b32 v6, 9, v6")
e(f"v_and_b32 v7, 1, v{vG}")
e("v_lshl_add_u32 v6, v7, 3, v6")
e(f"s_and_b32 s{sA}, s{sW}, 3")
e(f"s_lshl_b32 s{sB}, s{sTH}, 2")
e(f"s_add_u32 s{sA}, s{sA}, s{sB}")
e(f"s_lshl_b32 s{sA}, s{sA}, 10")
e(f"s_add_u32 s{sA}, s{sA}, {QB}")
e(f"v_add_u32 v6, s{sA}, v6")
e("v_lshl_add_u32 v28, v30, 4, v6")
e("v_xor_b32 v29, 256, v28")
e("v_lshlrev_b32 v30, 2, v30")
e(f"v_add_u32 v30, {QN2}, v30")
e("v_xor_b32 v31, 64, v30")
e(f"v_and_b32 v6, 31, v{vL}")
e(f"v_lshrrev_b32 v7, 5, v{vL}")
e(f"v_lshlrev_b32 v{PP}, 5, v6")
e(f"v_lshl_add_u32 v{PP}, v7, 4, v{PP}")
e(f"v_lshlrev_b32 v{PP+2}, 2, v6")
e(f"v_add_u32 v{PP+2}, {QN2}, v{PP+2}")
e(f"v_lshlrev_b32 v{PP+3}, 7, v6")
e("v_mov_b32 v52, 1")
def x_read(dst, S): e(f"ds_read_b128 {v(dst,4)}, v{12+(S&3)} offset:{(S>>2)*256}")
def xb_flip():
    for q in range(4): e(f"v_xor_b32 v{12+q}, 0x4000, v{12+q}")
ACC0 = QF; ACC1 = PP + 4
def rg_chain(X, acc):
    for S in range(5): e(f"ds_read_b128 {v(32+4*(S%5),4)}, v18 offset:{S*64}")
    for S in range(16):
        left = min(S + 5, 16) - (S + 1)
        e(f"s_waitcnt lgkmcnt({left})")
        mf16(acc, 32 + 4 * (S % 5), X + 4 * S, "0" if S == 0 else v(acc, 4))
        if S + 5 < 16: e(f"ds_read_b128 {v(32+4*(S%5),4)}, v18 offset:{(S+5)*64}")
def g_store(acc, flip):
    e("v_lshlrev_b32 v6, 2, v27")
    if flip: e("v_xor_b32 v6, 64, v6")
    e(f"v_add_u32 v6, {GB_}, v6")
    round_bf16(acc + 1)
    sigmoid(acc + 1)
    round_bf16(acc + 1)
    e(f"ds_write_b32 v6, v{acc+1}")
def side_addr(ffn):
    e(f"v_lshlrev_b32 v10, 2, v{vG}")
    e(f"v_xor_b32 v10, v10, v{vTK}")
    e("v_lshlrev_b32 v10, 4, v10")
    e(f"v_lshl_add_u32 v10, v{vG}, 10, v10")
    e(f"s_lshr_b32 s{sA}, s{sHG}, 1")
    e(f"s_lshl_b32 s{sA}, s{sA}, 8")
    e(f"v_add_u32 v10, s{sA}, v10")
    if not ffn: return
    e(f"s_movk_i32 s{sA}, 3584")
    e(f"v_mul_lo_u32 v11, v{vL}, s{sA}")
    e(f"s_lshl_b32 s{sA}, s{sF0}, 1")
    e(f"v_add_u32 v11, s{sA}, v11")
    e("v_mul_u32_u24 v16, 1088, v8")
    e(f"v_lshl_add_u32 v16, v{vG}, 5, v16")
    e("v_lshl_add_u32 v16, v9, 3, v16")
    e(f"v_add_u32 v16, {FB}, v16")
    e(f"v_cmp_eq_u32 vcc, v8, v{vG}")
    e(f"v_mov_b32 v6, {ZV}")
    e(f"v_mov_b32 v7, {HV}")
    e("v_cndmask_b32 v17, v6, v7, vcc")
    e(f"v_lshl_add_u32 v0, v{vG}, 2, v{vTK}")
    e("v_lshl_add_u32 v0, v0, 1, v7")
    e("v_lshrrev_b32 v6, 1, v9")
    e(f"v_mul_u32_u24 v6, {F_U-F_G}, v6")
    e("v_and_b32 v7, 1, v9")
    e("v_lshl_add_u32 v6, v7, 3, v6")
    e(f"v_lshl_add_u32 v7, v{vG}, 3, v8")
    e("v_lshl_add_u32 v8, v7, 4, v6")
    e(f"v_add_u32 v8, {FB}, v8")
    e(f"v_lshlrev_b32 v9, 4, v{vG}")
    e(f"v_add_u32 v9, {FB}, v9")
def p1_arrive():
    e("s_mov_b64 exec, 1")
    e("ds_add_u32 v53, v52 offset:4")
    e("s_mov_b64 exec, -1")
def p1_wait():
    Lw = L("p1w")
    a.label(Lw)
    e("ds_read_b32 v7, v53 offset:4")
    e("s_waitcnt lgkmcnt(0)")
    e("v_cmp_ne_u32 vcc, 4, v7")
    e("s_nop 1")
    e(f"s_cbranch_vccnz {Lw}")
WR = (32, 36, 40, 44, 48)
PR = XBr; P0 = CM + 8
def poll_load(): e(f"buffer_load_dwordx4 {v(PR,4)}, v{PP+3}, {s(rWS,4)}, s{sD} offen sc1")
def q_loop(both):
    n = 4 if both else 3
    D = 3 if both else 4
    def qrd(S):
        w = WR[S % 5]
        if both: e(f"ds_read_b128 {v(XA+4*S,4)}, v{20+(S&3)} offset:{(S>>2)*256}")
        x_read(XBr + 4 * S, S)
        e(f"ds_read_b64_tr_b16 {v(w,2)}, v26 offset:{S*4096}")
        e(f"ds_read_b64_tr_b16 {v(w+2,2)}, v26 offset:{S*4096+512}")
    e("ds_read_b32 v52, v53")
    for S in range(D): qrd(S)
    e(f"s_lshl_b32 s{sD}, s{sW}, 12")
    e(f"s_add_u32 s{sD}, s{sD}, {WS_REC}")
    for S in range(16):
        if S + D == cfg.chunk:
            if both: vmw(0)
            e("s_barrier")
        if S + D < 16: qrd(S + D)
        left = min(S + D + 1, 16) - (S + 1)
        e(f"s_waitcnt lgkmcnt({n*left})")
        w = WR[S % 5]
        mf16(ACC0, w, XA + 4 * S, "0" if S == 0 else v(ACC0, 4))
        mf16(ACC1, w, XBr + 4 * S, "0" if S == 0 else v(ACC1, 4))
        if S == cfg.pollat: poll_load()
        if S == cfg.pollat0: e(f"buffer_load_dwordx4 {v(P0,4)}, v{PP+3}, {s(rWS,4)}, s{sD} offen sc1")
xstamp(8, 5)
e(f"s_cmp_ge_u32 s{sW}, 4")
e("s_cbranch_scc1 L_2hi")
e(f"s_cmp_eq_u32 s{sW}, 0")
e("s_cbranch_scc0 L_2lo")
e(f"s_lshl_b32 s{sB}, s{sID}, 8")
e(f"s_add_u32 s{sB}, s{sB}, {WS_Y}")
e(f"buffer_store_dword v19, v{vL4}, {s(rWS,4)}, s{sB} offen sc1")
e("v_lshlrev_b32 v6, 5, v27")
e(f"v_lshl_add_u32 v6, v{vG}, 3, v6")
e(f"v_and_b32 v20, 1, v{vG}")
e("v_lshlrev_b32 v20, 9, v20")
e(f"v_lshl_add_u32 v20, v{vTK}, 4, v20")
e(f"v_lshrrev_b32 v7, 1, v{vG}")
e("v_lshl_add_u32 v20, v7, 3, v20")
e(f"s_lshl_b32 s{sB}, s{sPB}, 8")
e(f"s_add_u32 s{sB}, s{sB}, {WS_V}")
e(f"v_add_u32 v20, s{sB}, v20")
e(f"s_lshl_b32 s{sA}, s{sTG}, 10")
e(f"s_cmp_ge_u32 s{sHG}, 4")
e("s_cselect_b64 s[22:23], -1, 0")
e("v_cndmask_b32 v6, v6, v20, s[22:23]")
def kv_reads(S):
    x_read(XA + 4 * S, S)
    w = 32 + 4 * (S % 5)
    e(f"ds_read_b64_tr_b16 {v(w,2)}, v16 offset:{S*1024}")
    e(f"ds_read_b64_tr_b16 {v(w+2,2)}, v17 offset:{S*1024}")
vmw(1)
xstamp(9, 5)
p1_arrive()
p1_wait()
xstamp(12); xstamp(10, 5)
for S in range(4): kv_reads(S)
for S in range(16):
    if S + 4 < 16: kv_reads(S + 4)
    left = min(S + 5, 16) - (S + 1)
    e(f"s_waitcnt lgkmcnt({3*left})")
    w = 32 + 4 * (S % 5)
    mf16(ACC0, w, XA + 4 * S, "0" if S == 0 else v(ACC0, 4))
    mf16(ACC1, XA + 4 * S, w, "0" if S == 0 else v(ACC1, 4))
xb_flip()
for i in range(4): e(f"v_cndmask_b32 v{ACC1+i}, v{ACC0+i}, v{ACC1+i}, s[22:23]")
e(f"v_cvt_pk_bf16_f32 v20, v{ACC1}, v{ACC1+1}")
e(f"v_cvt_pk_bf16_f32 v21, v{ACC1+2}, v{ACC1+3}")
e(f"buffer_store_dwordx2 v[20:21], v6, {s(rWS,4)}, s{sA} offen sc1")
xstamp(13)
rg_chain(XA, ACC1)
e(f"v_mul_f32 v23, v{ACC0}, v{ACC0}")
for i in range(1, 4): e(f"v_fmac_f32 v23, v{ACC0+i}, v{ACC0+i}")
sum_over_g(23, 22)
row_max(23)
e("v_cndmask_b32 v23, v23, v19, s[22:23]")
e(f"s_lshl_b32 s{sA}, s{sTG}, 5")
e(f"v_add_u32 v6, s{sA}, v27")
e(f"s_mul_i32 s{sT}, s{sT}, 0x9e3779b9")
e(f"s_add_u32 s{sT}, s{sT}, 0x7f4a7c15")
e(f"v_mov_b32 v22, s{sT}")
e(f"v_mov_b32 v24, s{sT}")
e("ds_write_b32 v53, v22")
e(f"s_lshl_b32 s{sB}, s{sID}, 7")
e(f"s_add_u32 s{sB}, s{sB}, {WS_REC}")
round_bf16(ACC1)
e(f"v_ashrrev_i32 v25, 31, v{ACC1}")
e("v_or_b32 v25, 0x80000000, v25")
e(f"v_xor_b32 v25, v25, v{ACC1}")
e("v_and_b32 v25, 0xffff0000, v25")
e("v_or_b32 v25, v25, v6")
row_max(25)
e("s_mov_b64 exec, 1")
vmw(0)
e(f"buffer_store_dwordx4 v[22:25], v19, {s(rWS,4)}, s{sB} offen sc1")
e("s_mov_b64 exec, -1")
xstamp(14)
round_bf16(ACC1 + 1)
sigmoid(ACC1 + 1)
round_bf16(ACC1 + 1)
e("v_lshlrev_b32 v6, 2, v6")
e(f"s_mov_b32 s{sB}, {WS_G}")
e("s_mov_b64 exec, 0xffff")
e(f"buffer_store_dword v{ACC1+1}, v6, {s(rWS,4)}, s{sB} offen sc1")
e("s_mov_b64 exec, -1")
side_addr(False)
e("s_waitcnt lgkmcnt(0)")
e("s_branch L_B1lo")
a.label("L_2hi")
xstamp(12)
wq_steps(cfg.whi, 16)
for q in range(4): e(f"v_mov_b32 v{20+q}, v{12+q}")
xb_flip()
side_addr(False)
xstamp(13); xstamp(9, 5)
e(f"s_waitcnt vmcnt({16-cfg.chunk}) lgkmcnt(0)")
xstamp(14); xstamp(10, 5)
e("s_branch L_qhi")
a.label("L_2lo")
x_dma(0, cfg.narr)
vmw(cfg.narr)
xstamp(12); xstamp(9, 5)
p1_arrive()
x_dma(cfg.narr, 16)
p1_wait()
for S in range(16): x_read(XA + 4 * S, S)
xb_flip()
side_addr(True)
xstamp(13)
vmw(0)
xstamp(14); xstamp(10, 5)
a.label("L_B1lo")
e("s_barrier")
stamp("B1a")
q_loop(False)
e("s_branch L_qend")
a.label("L_qhi")
if cfg.stamps in (1, 3): STAMPS.pop()
e("s_barrier")
stamp("B1a")
q_loop(True)
a.label("L_qend")
e(f"v_mov_b32 v26, v{PP}")
e(f"s_lshl_b32 s{sA}, s{sW}, 13")
e(f"s_add_u32 s{sB}, s{sA}, {WS_V}")
e(f"s_add_u32 s{sE}, s{sA}, 4096")
e(f"s_add_u32 s{sF}, s{sB}, 4096")
e(f"s_mov_b32 s{sSPIN}, 0")
e(f"v_readfirstlane_b32 s{sT}, v52")
stamp("qdone")
if cfg.pollat0 >= 0:
    vmw(1)
    e(f"v_xor_b32 v6, s{sT}, v{P0}")
    e(f"v_xor_b32 v7, s{sT}, v{P0+2}")
    e("v_or_b32 v6, v6, v7")
    e("v_cmp_ne_u32 vcc, 0, v6")
    e("s_nop 1")
    e("s_cbranch_vccz L_pollok")
a.label("L_poll")
e("s_waitcnt vmcnt(0)")
e(f"v_xor_b32 v6, s{sT}, v{PR}")
e(f"v_xor_b32 v7, s{sT}, v{PR+2}")
e("v_or_b32 v6, v6, v7")
e("v_cmp_ne_u32 vcc, 0, v6")
e(f"s_add_u32 s{sSPIN}, s{sSPIN}, 1")
e(f"s_cmp_gt_u32 s{sSPIN}, {cfg.spin}")
e("s_cbranch_scc1 L_pollout")
e("s_cbranch_vccz L_pollout")
if cfg.psleep: e(f"s_sleep {cfg.psleep}")
poll_load()
e("s_branch L_poll")
a.label("L_pollout")
if cfg.pollat0 >= 0:
    e(f"v_mov_b32 v{P0+1}, v{PR+1}")
    e(f"v_mov_b32 v{P0+3}, v{PR+3}")
    a.label("L_pollok")
    PR = P0
stamp("polled")
def kv_load(j):
    e(f"buffer_load_dwordx4 {v(KF+4*j,4)}, v26, {s(rWS,4)}, s{sA if j<4 else sE} offen offset:{(j&3)*1024} sc1")
    e(f"buffer_load_dwordx4 {v(V0+4*j,4)}, v{vL16}, {s(rWS,4)}, s{sB if j<4 else sF} offen offset:{(j&3)*1024} sc1")
e(f"s_cmp_ge_u32 s{sW}, 4")
e("s_cbranch_scc1 L_kvl1")
for j in range(cfg.kv0): kv_load(j)
a.label("L_kvl1")
e(f"s_mov_b32 s{sC}, 0x{f2u(CSCALE):08x}")
for hf, acc in ((0, ACC0), (1, ACC1)):
    for i in range(4): e(f"v_mul_f32 v{acc+i}, s{sC}, v{acc+i}")
    e(f"v_cvt_pk_bf16_f32 v{20+2*hf}, v{acc}, v{acc+1}")
    e(f"v_cvt_pk_bf16_f32 v{21+2*hf}, v{acc+2}, v{acc+3}")
    e(f"ds_write_b64 v{28+hf}, {v(20+2*hf,2)}")
    e(f"v_mul_f32 v{24+hf}, v{acc}, v{acc}")
    for i in range(1, 4): e(f"v_fmac_f32 v{24+hf}, v{acc+i}, v{acc+i}")
e("v_mov_b32 v6, v24")
e("v_mov_b32 v7, v25")
e(f"v_max_u32_dpp v{PR+1}, v{PR+1}, v{PR+1} row_ror:8 row_mask:0xf bank_mask:0xf")
e(f"v_max_u32_dpp v{PR+3}, v{PR+3}, v{PR+3} row_ror:8 row_mask:0xf bank_mask:0xf")
e("v_permlane32_swap_b32 v24, v6")
e("v_permlane32_swap_b32 v25, v7")
e(f"v_max_u32_dpp v{PR+1}, v{PR+1}, v{PR+1} row_ror:4 row_mask:0xf bank_mask:0xf")
e(f"v_max_u32_dpp v{PR+3}, v{PR+3}, v{PR+3} row_ror:4 row_mask:0xf bank_mask:0xf")
e("v_add_f32 v24, v24, v6")
e("v_add_f32 v25, v25, v7")
e(f"v_max_u32_dpp v{PR+1}, v{PR+1}, v{PR+1} row_ror:2 row_mask:0xf bank_mask:0xf")
e(f"v_max_u32_dpp v{PR+3}, v{PR+3}, v{PR+3} row_ror:2 row_mask:0xf bank_mask:0xf")
e("v_mov_b32 v6, v24")
e("v_mov_b32 v7, v25")
e(f"v_max_u32_dpp v{PR+1}, v{PR+1}, v{PR+1} row_ror:1 row_mask:0xf bank_mask:0xf")
e(f"v_max_u32_dpp v{PR+3}, v{PR+3}, v{PR+3} row_ror:1 row_mask:0xf bank_mask:0xf")
e("v_permlane16_swap_b32 v24, v6")
e("v_permlane16_swap_b32 v25, v7")
e(f"v_mov_b32 v18, {SCR}")
e("v_add_f32 v24, v24, v6")
e("v_add_f32 v25, v25, v7")
e("s_mov_b64 exec, 0xffff")
e("ds_max_u32 v30, v24")
e("ds_max_u32 v31, v25")
e("s_mov_b64 exec, 0x10001")
e(f"ds_max_u32 v18, v{PR+1} offset:8")
e(f"ds_max_u32 v18, v{PR+3} offset:12")
e("s_mov_b64 exec, -1")
e("s_cbranch_scc1 L_kvl1b")
for j in range(cfg.kv0, cfg.kv1): kv_load(j)
a.label("L_kvl1b")
e("s_waitcnt lgkmcnt(0)")
stamp("prepoll")
e("s_barrier")
stamp("B6")
e("ds_read_b64 v[6:7], v18 offset:8")
e(f"ds_read_b32 v19, v{PP+2}")
e(f"ds_read_b128 {v(QF,4)}, v{vNq}")
def young_loads():
    e(f"s_cmp_ge_u32 s{sW}, 4")
    e("s_cbranch_scc0 L_kvl2")
    for j in range(8): kv_load(j)
    a.label("L_kvl2")
if not cfg.ylate: young_loads()
e("s_waitcnt lgkmcnt(1)")
e("v_mul_f32 v19, v19, v6")
e("v_sqrt_f32 v19, v19")
e(f"v_readfirstlane_b32 s{sR16}, v7")
e(f"v_mul_f32 v{CM}, 0x{f2u(-1.02 * (8.0 if cfg.force_fallback else 1.0)):08x}, v19")
for i in range(1, 16): e(f"v_mov_b32 v{CM+i}, v{CM}")
if cfg.ylate: young_loads()
if cfg.prio: e("s_setprio 3")
e(f"s_waitcnt vmcnt({2*cfg.kv1-1}) lgkmcnt(0)")
mf32(S0, KF, QF, v(CM, 16))
stamp("K0")
e(f"s_and_b32 s{sSEL}, s{sR16}, 0x7ff")
e(f"s_lshr_b32 s{sC}, s{sSEL}, 5")
e(f"s_cmp_eq_u32 s{sC}, s{sTG}")
e(f"s_cselect_b32 s{sOWN}, 1, 0")
e(f"s_and_b32 s{sR16}, s{sR16}, 0xffff0000")
e(f"s_cmp_lt_u32 s{sW}, 4")
e(f"s_cselect_b32 s{sC}, s{sOWN}, 0")
e(f"s_lshl_b32 s{sC}, s{sC}, 14")
e(f"s_or_b32 s{sHK}, s{sHK}, s{sC}")
e("s_nop 3")

a.label("L_attn")
if cfg.perm: e("s_mov_b32 s25, 0x07060302")
e(f"v_mov_b32 v52, {GOW}")
e(f"s_mov_b32 s{sIT}, 0")
STUBS = []
a.strict = True
for st in range(8):
    O = (O0, O1)[st & 1]; Op = (O1, O0)[st & 1]
    k = st & 3
    for j in range(8):
        t = st * 8 + j
        Sc = (S0, S1)[t & 1]; Sn = (S1, S0)[t & 1]
        jn = (j + 1) & 7
        def ex(p):
            e(f"v_exp_f32 v{Sc+2*p}, v{Sc+2*p}")
            e(f"v_exp_f32 v{Sc+2*p+1}, v{Sc+2*p+1}")
        def cv(p):
            if cfg.perm: e(f"v_perm_b32 v{PP+p}, v{Sc+2*p+1}, v{Sc+2*p}, s25")
            else: e(f"v_cvt_pk_bf16_f32 v{PP+p}, v{Sc+2*p}, v{Sc+2*p+1}")
        def init_reads():
            kk = k if st < 7 else 4
            e(f"ds_read_b64 {v(Op+8,2)}, v{vAt+kk}")
            e(f"ds_read_b128 {v(Op,4)}, v{vAd+kk}")
            e(f"ds_read_b128 {v(Op+4,4)}, v{vAd+kk} offset:1024")
            if st == 7: e("ds_read_b32 v53, v52")
        if j == 7 and st < 7:
            e("s_waitcnt lgkmcnt(0)")
            if st == 7: e(f"v_mul_u32_u24 v{Op+9}, v53, v{Op+9}")
            if st > 0: e(f"v_cmp_ne_u32 vcc, {st if st < 7 else 7*NGO}, v{Op+9}")
            if st < 7:
                e(f"s_cmp_eq_u32 s{sFB}, 0")
                e(f"s_cbranch_scc0 L_fbc_{st+1}")
            else:
                e("s_nop 1")
            a.label(f"L_fbr_{st+1}")
            if st > 0: e(f"s_cbranch_vccnz L_retry_{st}")
            a.label(f"L_ok_{st}")
            stamp(f"st{st}", (2,))
            if st > 0: STUBS.append((st, Op, k if st < 7 else 4))
            if cfg.prio and st in (1, 3, 5): e(f"s_setprio {3 - (st + 1) // 2}")
        def smf():
            if st == 0 and j < 7: vmw(15 - 2 * jn)
            if not (st == 7 and j == 7):
                mf32(Sn, KF + 4 * jn, QF, v(CM, 16))
        def pv1():
            if j == 0:
                if st > 0: mf32(Op, V1 + 4 * 7, PP + 4, v(Op, 16))
            else: mf32(O, V1 + 4 * (j - 1), PP + 4, v(O, 16))
        def side():
            if st == 0:
                if j == 7: vmw(0)
                for i in range(4): e(f"v_permlane16_swap_b32 v{V0+4*j+i}, v{V1+4*j+i}")
            if j == 6 and st < 7:
                kn = (st + 1) & 3
                if st + 1 >= 4: e(f"v_xor_b32 v{vNq+kn}, 4096, v{vNq+kn}")
                e(f"ds_read_b128 {v(QF,4)}, v{vNq+kn}")
            if j == (5 if st < 7 else 6) and st > 0: init_reads()
        if st == 0 and j == 0 and cfg.kv1 < 8:
            Lk = L("nokv")
            e(f"s_cmp_ge_u32 s{sW}, 4")
            e(f"s_cbranch_scc1 {Lk}")
            for jj in range(cfg.kv1, 8): kv_load(jj)
            a.label(Lk)
        ex(0); pv1(); ex(1); ex(2); cv(0); smf(); ex(3); cv(1); ex(4); cv(2); ex(5); cv(3); side(); ex(6)
        mf32(O, V0 + 4 * j, PP, "0" if (j == 0 and st < 2) else v(O, 16))
        cv(4); ex(7); cv(5); cv(6); cv(7)
        if j == 0 and st > 0:
            kp = (st - 1) & 3
            e(f"v_mov_b32 v{Op+9}, {st}")
            e(f"ds_write_b128 v{vAd+kp}, {v(Op,4)}")
            e(f"ds_write_b128 v{vAd+kp}, {v(Op+4,4)} offset:1024")
            e(f"ds_write_b64 v{vAt+kp}, {v(Op+8,2)}")
        if j in (0, 4) and (2 * st + j // 4) in JOBS:
            p_ = 2 * st + j // 4
            e(f"s_bitcmp1_b32 s{sHK}, {p_}")
            e(f"s_cbranch_scc1 L_hook{p_}")
            a.label(f"L_hret{p_}")
a.strict = False
e(f"v_mov_b32 v50, {FBF}")
e(f"s_cmp_ge_u32 s{sW}, 4")
mf32(O1, V1 + 4 * 7, PP + 4, v(O1, 16))
if cfg.prio: e("s_setprio 3")
e("s_cbranch_scc1 L_tfin")
WF = 64; OF = 128; AC = V1; RES = 24; T = CM
sCT = 18; sOA = 19; sOB = 20; sMA = 21; sMB = 22; sMX = 23; sXO = 24
e(f"s_and_b32 s{sC}, s{sW}, 1")
e(f"s_lshr_b32 s{sD}, s{sW}, 1")
e(f"s_lshl_b32 s{sCT}, s{sC}, 1")
e(f"s_add_u32 s{sCT}, s{sCT}, s{sD}")
e(f"s_lshl_b32 s{sF}, s{sTG}, 15")
e(f"s_add_u32 s{sA}, s{sF}, {WS_O}")
e(f"s_lshr_b32 s{sB}, s{sHG}, 1")
e(f"s_lshl_b32 s{sB}, s{sB}, 8")
e(f"s_add_u32 s{sF}, s{sF}, s{sB}")
e(f"s_lshl_b32 s{sB}, s{sCT}, 6")
e(f"s_add_u32 s{sF}, s{sF}, s{sB}")
e(f"v_and_b32 v{T+4}, 31, v{vL}")
e(f"v_lshrrev_b32 v{T+5}, 5, v{vL}")
e(f"v_lshlrev_b32 v{T+6}, 10, v{T+4}")
e(f"v_lshl_add_u32 v{T+7}, v{T+5}, 4, v{T+6}")
e(f"v_lshl_add_u32 v{T+6}, v{T+5}, 3, v{T+6}")
for q in range(4):
    e(f"buffer_load_dwordx2 {v(40+2*q,2)}, v{T+6}, {s(rX,4)}, s{sF} offen offset:{16*q}")
e(f"s_lshl_b32 s{sD}, s{sD}, 1")
e(f"s_sub_u32 s{sE}, 3, s{sD}")
e(f"s_lshl_b32 s{sB}, s{sE}, 10")
e(f"s_add_u32 s{sOA}, s{sA}, s{sB}")
e(f"s_lshl_b32 s{sB}, s{sD}, 10")
e(f"s_add_u32 s{sOB}, s{sA}, s{sB}")
e(f"s_lshl_b32 s{sB}, s{sOH}, 2")
e(f"s_add_u32 s{sC}, s{sB}, s{sE}")
e(f"s_lshl_b32 s{sMA}, 1, s{sC}")
e(f"s_add_u32 s{sC}, s{sB}, s{sD}")
e(f"s_lshl_b32 s{sMB}, 1, s{sC}")
e(f"s_or_b32 s{sMB}, s{sMB}, 0xaa")
e(f"s_xor_b32 s{sC}, s{sW}, 2")
e(f"s_lshl_b32 s{sMX}, 0x100, s{sC}")
e(f"s_lshl_b32 s{sXO}, 0x100, s{sW}")
e(f"v_lshrrev_b32 v{T+2}, 2, v{vTK}")
e(f"v_and_b32 v{T+3}, 3, v{vTK}")
e(f"v_and_b32 v{T}, 1, v{vG}")
e(f"s_lshl_b32 s{sB}, s{sCT}, 1")
e(f"v_or_b32 v{T}, s{sB}, v{T}")
e(f"v_lshlrev_b32 v{T+1}, 1, v{T+2}")
e(f"v_xor_b32 v{T}, v{T}, v{T+1}")
e(f"v_lshlrev_b32 v{T}, 5, v{T}")
e(f"v_lshl_add_u32 v{T}, v{T+3}, 3, v{T}")
e(f"v_lshl_add_u32 v{T+1}, v{T+5}, 2, v{T+2}")
e(f"v_lshl_add_u32 v{T}, v{T+1}, 8, v{T}")
e(f"s_lshl_b32 s{sB}, s{sE}, 12")
e(f"v_add_u32 v{T}, s{sB}, v{T}")
e(f"v_xor_b32 v{T+1}, 64, v{T}")
e(f"v_add_u32 v{T+2}, 0x10000, v{T}")
e(f"v_add_u32 v{T+3}, 0x10000, v{T+1}")
e(f"v_lshlrev_b32 v{T+6}, 2, v{T+4}")
e(f"s_lshl_b32 s{sB}, s{sW}, 13")
e(f"s_add_u32 s{sB}, s{sB}, 4096")
e(f"v_add_u32 v{T+9}, s{sB}, v{vL16}")
e(f"v_xor_b32 v{T+10}, 0x4000, v{T+9}")
e(f"v_mov_b32 v{T+11}, s{sXO}")
a.label("L_gow")
e("ds_read_b32 v51, v52")
e("s_waitcnt lgkmcnt(0)")
e(f"v_readfirstlane_b32 s{sC}, v51")
e(f"s_and_b32 s{sC}, s{sC}, 7")
e(f"s_cmp_eq_u32 s{sC}, {NGO}")
e("s_cbranch_scc0 L_gow")
e(f"s_lshl_b32 s{sB}, s{sTG}, 7")
e(f"s_add_u32 s{sB}, s{sB}, {WS_G}")
e(f"buffer_load_dword v48, v{T+6}, {s(rWS,4)}, s{sB} offen sc1")
def wo_reads(lo=0, hi=8):
    for i in range(lo, hi):
        for c in range(2):
            b = T + c + (2 if i >= 4 else 0); o = (i & 3) * 16384
            e(f"ds_read_b64_tr_b16 {v(WF+8*i+4*c,2)}, v{b} offset:{o}")
            e(f"ds_read_b64_tr_b16 {v(WF+8*i+4*c+2,2)}, v{b} offset:{o+2048}")
def o_loads(par, lo, hi):
    for i in range(lo, hi):
        e(f"s_add_u32 s{sB}, s{sOA if par else sOB}, {i*4096}")
        e(f"buffer_load_dwordx4 {v(OF+4*i,4)}, v{vL16}, {s(rWS,4)}, s{sB} offen sc1")
GSTUB = []
def pub_wait(m):
    Lw = L("pw")
    a.label(Lw)
    e("ds_read_b32 v51, v50")
    e("s_waitcnt lgkmcnt(0)")
    e(f"v_readfirstlane_b32 s{sC}, v51")
    e(f"s_and_b32 s{sC}, s{sC}, s{m}")
    e(f"s_cmp_eq_u32 s{sC}, s{m}")
    e(f"s_cbranch_scc0 {Lw}")
def o_half(par):
    for gq in range(4):
        a.label(f"L_oc{par}{gq}")
        vmw(6 - 2 * gq)
        R = OF + 8 * gq
        e(f"v_max3_u32 v{T+8}, v{R}, v{R+1}, v{R+2}")
        e(f"v_max3_u32 v{T+8}, v{T+8}, v{R+3}, v{R+4}")
        e(f"v_max3_u32 v{T+8}, v{T+8}, v{R+5}, v{R+6}")
        e(f"v_max_u32 v{T+8}, v{T+8}, v{R+7}")
        e(f"v_cmp_eq_u32 vcc, -1, v{T+8}")
        e("s_nop 0")
        e(f"s_cbranch_vccnz L_or{par}{gq}")
        a.label(f"L_og{par}{gq}")
        order = [(i, c) for i in range(2 * gq, 2 * gq + 2) for c in (1, 0)]
        if par == 0 and gq == 3: order = [(6, 1), (7, 1), (6, 0), (7, 0)]
        for i, c in order:
            mf32(AC + 16 * c, WF + 8 * i + 4 * c, OF + 4 * i, "0" if (par == 1 and i == 0) else v(AC + 16 * c, 16))
            if par == 1 and c == 0: wo_reads(i, i + 1)
        GSTUB.append((par, gq))
wo_reads()
e(f"s_mov_b32 s{sSPIN}, 0")
e(f"s_sub_u32 s{sB}, s{sOB}, s{sOA}")
e(f"s_lshl_b32 s{sB}, s{sB}, 2")
for i in range(4): e(f"v_add_u32 v{T+i}, s{sB}, v{T+i}")
xstamp(5, 6)
e("s_branch L_retry_7b")
a.label("L_tfin")
e("s_waitcnt lgkmcnt(0)")
e(f"v_mul_u32_u24 v{O0+9}, v53, v{O0+9}")
e(f"v_cmp_ne_u32 vcc, {7*NGO}, v{O0+9}")
e("s_nop 4")
e("s_cbranch_vccnz L_retry_7")
a.label("L_ok_7")
STUBS.append((7, O0, 4))
e(f"v_readfirstlane_b32 s{sD}, v53")
e(f"v_mov_b32 v7, s{sPI}")
e(f"v_add_f32 v{O1+8}, v{O1+8}, v{O0+8}")
stamp("loopend")
for r in range(4): e(f"v_add_f32 v{O1+r}, v{O1+r}, v{O0+r}")
e(f"v_rcp_f32 v51, v{O1+8}")
for r in range(4, 8): e(f"v_add_f32 v{O1+r}, v{O1+r}, v{O0+r}")
e(f"v_cmp_gt_f32 vcc, 0x{f2u(2.0**-80):08x}, v{O1+8}")
for r in range(8): e(f"v_mul_f32 v{O1+r}, v{O1+r}, v51")
for r in range(4):
    e(f"v_cvt_pk_bf16_f32 v{PP+r}, v{O1+2*r}, v{O1+2*r+1}")
e(f"s_cmp_eq_u32 s{sD}, {NGO}")
for r in range(4): e(f"v_min_u32 v{PP+r}, -2, v{PP+r}")
e("s_cbranch_vccnz L_bad")
e("s_cbranch_scc1 L_pubx")
e(f"buffer_store_dwordx4 {v(PP,4)}, v{vL16}, {s(rWS,4)}, s{sPO} offen")
a.label("L_nopub")
e("s_mov_b64 exec, 1")
e("ds_add_u32 v50, v7")
e("s_mov_b64 exec, -1")
stamp("opub"); xstamp(4, 6)
e(f"s_cmp_ge_u32 s{sW}, 4")
e("s_cbranch_scc1 L_tbar")
pub_wait(sMA)
xstamp(6, 6)
o_loads(1, 0, 8)
xstamp(7, 6)
o_half(1)
xstamp(9, 6)
if cfg.stamps == 6: e(f"s_mov_b32 s{sST+15}, s{sSPIN}")
stamp("half1")
pub_wait(sMB)
stamp("B8"); xstamp(11, 6)
o_loads(0, 0, 8)
xstamp(12, 6)
e("v_sub_f32 v49, 1.0, v48")
for q in range(4):
    e(f"v_lshlrev_b32 v{RES+4*q}, 16, v{40+2*q}")
    e(f"v_and_b32 v{RES+4*q+1}, 0xffff0000, v{40+2*q}")
    e(f"v_lshlrev_b32 v{RES+4*q+2}, 16, v{41+2*q}")
    e(f"v_and_b32 v{RES+4*q+3}, 0xffff0000, v{41+2*q}")
e(f"s_cmp_eq_u32 s{sOWN}, 1")
e("s_cbranch_scc1 L_y")
a.label("L_noy")
for i in range(16): e(f"v_mul_f32 v{RES+i}, v{RES+i}, v49")
o_half(0)
for q in range(4): e(f"ds_write_b128 v{T+9}, {v(AC+16+4*q,4)} offset:{1024*q}")
e("s_mov_b64 exec, 1")
e(f"ds_add_u32 v50, v{T+11}")
e("s_mov_b64 exec, -1")
stamp("ogath"); xstamp(13, 6)
for i in range(16): e(f"v_fmac_f32 v{RES+i}, v{AC+i}, v48")
a.label("L_xw")
e("ds_read_b32 v51, v50")
for q in range(4): e(f"ds_read_b128 {v(OF+4*q,4)}, v{T+10} offset:{1024*q}")
e("s_waitcnt lgkmcnt(4)")
e(f"v_readfirstlane_b32 s{sC}, v51")
e(f"s_and_b32 s{sB}, s{sC}, s{sMX}")
e("s_cbranch_scc0 L_xr")
e("s_waitcnt lgkmcnt(0)")
for i in range(16): e(f"v_fmac_f32 v{RES+i}, v{OF+i}, v48")
xstamp(10, 6)
for i in range(8): e(f"v_cvt_pk_bf16_f32 v{PP+i}, v{RES+2*i}, v{RES+2*i+1}")
for k in (0, 4):
    e(f"v_permlane32_swap_b32 v{PP+k}, v{PP+k+2}")
    e(f"v_permlane32_swap_b32 v{PP+k+1}, v{PP+k+3}")
for k in (0, 4):
    e(f"buffer_store_dwordx4 {v(PP+k,4)}, v{T+7}, {s(rOUT,4)}, s{sF} offen offset:{8*k}")
if cfg.stamps == 1: e(f"s_mov_b32 s{sST+15}, s{sSPIN}")
e(f"s_or_b32 s{sA}, s2, s{sW}")
e("s_cbranch_scc1 L_nobump")
e("v_mov_b32 v6, 0")
e(f"v_mov_b32 v7, s{sT}")
e(f"s_mov_b32 s{sA}, {WS_EP}")
e(f"buffer_store_dword v7, v6, {s(rWS,4)}, s{sA} offen")
a.label("L_nobump")
a.label("L_tbar")
e("s_waitcnt lgkmcnt(0)")
e("s_barrier")
e("ds_read_b32 v51, v50")
e("s_waitcnt lgkmcnt(0)")
e(f"v_readfirstlane_b32 s{sC}, v51")
e(f"s_cmp_ge_u32 s{sC}, 0x10000")
e("s_cbranch_scc1 L_fallback")
if cfg.hold == 1: stamp("end")
if cfg.stamps:
    stamp("stored")
    e("s_waitcnt vmcnt(0)")
    stamp("end")
    if cfg.dbgwg >= 0:
        e(f"s_cmp_eq_u32 s2, {cfg.dbgwg}")
        e("s_cbranch_scc0 L_end")
        e(f"s_cmp_eq_u32 s{sW}, {cfg.dbgwave}")
        e("s_cbranch_scc0 L_end")
        e("v_mov_b32 v6, 0")
        srd(rDBG, pDBG, 256)
        for i in range(1, 16): e(f"s_sub_u32 s{sST+i}, s{sST+i}, s{sST}")
        for q in range(4):
            for i in range(4): e(f"v_mov_b32 v{8+i}, s{sST+4*q+i}")
            e(f"buffer_store_dwordx4 v[8:11], v6, {s(rDBG,4)}, 0 offen offset:{16*q}")
            e("s_nop 1")
    else:
        a.label("L_dump")
        e(f"s_lshl_b32 s{sA}, s2, 3")
        e(f"s_add_u32 s{sA}, s{sA}, s{sW}")
        e(f"s_lshl_b32 s{sA}, s{sA}, 6")
        e(f"s_add_u32 s{sA}, s{sA}, {WS_STAMP}")
        e("v_mov_b32 v6, 0")
        for q in range(4):
            for i in range(4): e(f"v_mov_b32 v{8+i}, s{sST+4*q+i}")
            e(f"buffer_store_dwordx4 v[8:11], v6, {s(rWS,4)}, s{sA} offen offset:{16*q}")
            e("s_nop 1")
a.label("L_end")
e("s_endpgm")

for st, Op, kk in STUBS:
    a.label(f"L_retry_{st}")
    a.hist = []
    e("s_sleep 1")
    e(f"s_add_u32 s{sIT}, s{sIT}, 1")
    e(f"s_cmp_gt_u32 s{sIT}, {cfg.spin*16}")
    e(f"s_cbranch_scc1 L_ok_{st}")
    if st == 7: a.label("L_retry_7b")
    e(f"ds_read_b64 {v(Op+8,2)}, v{vAt+kk}")
    e(f"ds_read_b128 {v(Op,4)}, v{vAd+kk}")
    e(f"ds_read_b128 {v(Op+4,4)}, v{vAd+kk} offset:1024")
    if st == 7: e("ds_read_b32 v53, v52")
    e("s_waitcnt lgkmcnt(0)")
    if st == 7: e(f"v_mul_u32_u24 v{Op+9}, v53, v{Op+9}")
    e(f"v_cmp_ne_u32 vcc, {st if st < 7 else 7*NGO}, v{Op+9}")
    e("s_nop 4")
    e(f"s_cbranch_vccnz L_retry_{st}")
    e(f"s_branch L_ok_{st}")

a.label("L_pubx")
e(f"buffer_store_dwordx4 {v(PP,4)}, v{vL16}, {s(rWS,4)}, s{sPO} offen sc1")
e("s_branch L_nopub")
a.label("L_bad")
e(f"s_cmp_eq_u32 s{sFB}, 0")
e("s_cbranch_scc0 L_pubx")
e("v_add_u32 v7, 0x10000, v7")
e("s_branch L_nopub")
a.label("L_xr")
e(f"s_cmp_ge_u32 s{sC}, 0x10000")
e("s_cbranch_scc1 L_tbar")
e("s_branch L_xw")
a.label("L_y")
a.hist = []
for i in range(4): e(f"v_add_f32_dpp v{12+i}, v{8+i}, v{8+i} row_ror:8 row_mask:0xf bank_mask:0xf")
sum4 = [(12 + i, 16 + i) for i in range(4)]
for x_, t_ in sum4: e(f"v_mov_b32 v{t_}, v{x_}")
for x_, t_ in sum4: e(f"v_permlane32_swap_b32 v{x_}, v{t_}")
for x_, t_ in sum4: e(f"v_add_f32 v{x_}, v{x_}, v{t_}")
for x_, t_ in sum4: e(f"v_mov_b32 v{t_}, v{x_}")
for x_, t_ in sum4: e(f"v_permlane16_swap_b32 v{x_}, v{t_}")
for x_, t_ in sum4: e(f"v_add_f32 v{x_}, v{x_}, v{t_}")
e(f"v_mov_b32 v16, s{sR16}")
e("v_ashrrev_i32 v17, 31, v16")
e("v_not_b32 v17, v17")
e("v_or_b32 v17, 0x80000000, v17")
e("v_xor_b32 v16, v16, v17")
e("v_and_b32 v16, 0xffff0000, v16")
sigmoid(16)
round_bf16(16)
for i in range(4):
    round_bf16(12 + i)
    e(f"v_mul_f32 v{12+i}, v{12+i}, v16")
    round_bf16(12 + i)
e(f"s_lshl_b32 s{sB}, s{sW}, 7")
e(f"s_add_u32 s{sB}, s{sB}, {YB}")
e(f"v_add_u32 v17, s{sB}, v{vL16}")
e("s_mov_b64 exec, 0xff")
e("ds_write_b128 v17, v[12:15]")
e("s_mov_b64 exec, -1")
e(f"v_lshl_add_u32 v17, v{T+5}, 4, s{sB}")
for q in range(4): e(f"ds_read_b128 {v(O0+4*q,4)}, v17 offset:{32*q}")
e(f"s_and_b32 s{sC}, s{sSEL}, 31")
e(f"v_cmp_eq_u32 vcc, s{sC}, v{T+4}")
e("s_waitcnt lgkmcnt(0)")
e("s_mov_b64 exec, vcc")
for i in range(16): e(f"v_add_f32 v{RES+i}, v{RES+i}, v{O0+i}")
e("s_mov_b64 exec, -1")
e("s_branch L_noy")
for par, gq in GSTUB:
    a.label(f"L_or{par}{gq}")
    a.hist = []
    e(f"s_add_u32 s{sSPIN}, s{sSPIN}, 1")
    e(f"s_cmp_gt_u32 s{sSPIN}, {cfg.spin}")
    e(f"s_cbranch_scc1 L_og{par}{gq}")
    e("ds_read_b32 v51, v50")
    o_loads(par, 2 * gq, 8)
    e("s_waitcnt lgkmcnt(0)")
    e(f"v_readfirstlane_b32 s{sC}, v51")
    e(f"s_cmp_ge_u32 s{sC}, 0x10000")
    e("s_cbranch_scc1 L_tbar")
    e(f"s_branch L_oc{par}{gq}")
def job_wo(q, ret):
    if q == 3:
        Lw = L("fdn")
        a.label(Lw)
        e(f"ds_read_b32 v7, v52 offset:{FDN-GOW}")
        e("s_waitcnt lgkmcnt(0)")
        e("v_cmp_ne_u32 vcc, 1, v7")
        e("s_nop 1")
        e(f"s_cbranch_vccnz {Lw}")
    for S in range(32 * q, 32 * q + 32):
        e(f"s_mov_b32 m0, {S*1024}")
        e(f"s_mov_b32 s{sB}, {S*4096}")
        dma(10, rWO, f"s{sB}")
def job_sent(ret):
    for i in range(4): e(f"v_mov_b32 v{20+i}, -1")
    e(f"s_lshl_b32 s{sB}, s{sGR}, 16")
    e(f"s_lshl_b32 s{sC}, s{sHG}, 12")
    e(f"s_add_u32 s{sB}, s{sB}, s{sC}")
    e(f"s_add_u32 s{sB}, s{sB}, {WS_O}")
    for i in range(8):
        if i == 4: e(f"s_add_u32 s{sB}, s{sB}, 32768")
        e(f"buffer_store_dwordx4 v[20:23], v{vL16}, {s(rWS,4)}, s{sB} offen offset:{(i&3)*1024} sc1")
def job_scat(q, ret):
    e(f"s_cmp_eq_u32 s{sFV}, 1")
    e(f"s_cbranch_scc0 {ret}")
    srd(rT1, pWG, 512 * 3584)
    srd(rT2, pWU, 512 * 3584)
    for i in range(2 * q, 2 * q + 2):
        e(f"s_xor_b32 s{sA}, s{sHG}, {i}")
        e(f"s_lshl_b32 s{sC}, s{sA}, 10")
        e(f"s_add_u32 m0, s{sC}, {FB+F_G}")
        e(f"s_mul_i32 s{sB}, s{sA}, {64*3584}")
        dma(11, rT1, f"s{sB}")
        e(f"s_add_u32 m0, s{sC}, {FB+F_U}")
        dma(11, rT2, f"s{sB}")
def job_dstage(ret):
    e(f"s_cmp_eq_u32 s{sFV}, 1")
    e(f"s_cbranch_scc0 {ret}")
    srd(rT1, pWD, 1792 * 1024)
    e(f"s_lshl_b32 s{sA}, s{sF0}, 10")
    for i in range(8):
        e(f"s_mov_b32 m0, {FB+F_D+i*1088}")
        e(f"s_add_u32 s{sB}, s{sA}, {i*1024}")
        dma(vL16, rT1, f"s{sB}")
    e(f"s_mov_b32 m0, {FB+F_X}")
    e(f"s_lshl_b32 s{sB}, s{sSEL}, 10")
    dma(vL16, rX, f"s{sB}")
def job_rec(ret):
    e("s_waitcnt vmcnt(0)")
    e("s_mov_b64 exec, 1")
    e(f"s_getreg_b32 s{sB}, hwreg(HW_REG_XCC_ID, 0, 4)")
    e(f"v_mov_b32 v6, s{sT}")
    e(f"v_mov_b32 v7, s{sB}")
    e(f"s_lshl_b32 s{sA}, s{sID}, 7")
    e(f"s_add_u32 s{sA}, s{sA}, {WS_REC+16}")
    e(f"buffer_store_dwordx2 v[6:7], v{vL4}, {s(rWS,4)}, s{sA} offen sc1")
    e("s_mov_b64 exec, -1")
def job_ffn(ret):
    e(f"s_cmp_eq_u32 s{sFV}, 1")
    e("s_cbranch_scc0 L_ffn_e")
    e("s_waitcnt vmcnt(0)")
    def f_reads(S):
        w = 20 + 8 * (S % 3)
        e(f"ds_read_b64_tr_b16 {v(w,2)}, v8 offset:{F_G+S*512}")
        e(f"ds_read_b64_tr_b16 {v(w+2,2)}, v8 offset:{F_G+S*512+64}")
        e(f"ds_read_b128 {v(w+4,4)}, v9 offset:{F_X+S*64}")
    for S in range(3): f_reads(S)
    e("s_mov_b32 s18, 0x22222222")
    e("s_mov_b32 s19, 0x22222222")
    e("s_mov_b32 s20, 0x44444444")
    e("s_mov_b32 s21, 0x44444444")
    e("s_mov_b32 s22, 0x88888888")
    e("s_mov_b32 s23, 0x88888888")
    for S in range(16):
        left = min(S + 3, 16) - (S + 1)
        e(f"s_waitcnt lgkmcnt({3*left})")
        w = 20 + 8 * (S % 3)
        mf16(44, w, w + 4, "0" if S == 0 else v(44, 4))
        if S + 3 < 16: f_reads(S + 3)
    def d_reads(J0):
        for J in range(J0, J0 + 4):
            e(f"ds_read_b64_tr_b16 {v(20+4*(J&3),2)}, v16 offset:{F_D+J*128}")
            e(f"ds_read_b64_tr_b16 {v(22+4*(J&3),2)}, v16 offset:{F_D+J*128+4*1088}")
    d_reads(0)
    e("v_cndmask_b32 v44, v44, v45, s[18:19]")
    e("v_cndmask_b32 v44, v44, v46, s[20:21]")
    e("v_cndmask_b32 v44, v44, v47, s[22:23]")
    round_bf16(44)
    e("v_mov_b32 v45, v44")
    e("v_permlane32_swap_b32 v44, v45")
    e(f"v_mul_f32 v46, 0x{f2u(-1.4426950408889634):08x}, v44")
    e("v_exp_f32 v46, v46")
    e("v_add_f32 v46, 1.0, v46")
    e("v_rcp_f32 v46, v46")
    e("v_mul_f32 v44, v44, v46")
    round_bf16(44)
    e("v_mul_f32 v44, v44, v45")
    e("v_cvt_pk_bf16_f32 v44, v44, v44")
    e("s_mov_b64 exec, 0xf000f")
    e("ds_write_b16 v0, v44")
    e("s_mov_b64 exec, -1")
    e("ds_read_b128 v[48:51], v17")
    e(f"s_and_b32 s{sA}, s2, {NREP-1}")
    e(f"s_lshl_b32 s{sA}, s{sA}, 11")
    e(f"s_add_u32 s{sA}, s{sA}, {WS_Y}")
    for J0 in (0, 4):
        e("s_waitcnt lgkmcnt(0)")
        DR = (36, 40, 44, 12)
        for J in range(J0, J0 + 4):
            mf16(DR[J & 3], 48, 20 + 4 * (J & 3), "0")
        if J0 == 0: d_reads(4)
        for J in range(J0, J0 + 4):
            e(f"buffer_atomic_add_f32 v{DR[J&3]}, v{vL4}, {s(rWS,4)}, s{sA} offen offset:{J*256}")
    a.label("L_ffn_e")
    e("v_mov_b32 v7, 1")
    e(f"ds_write_b32 v52, v7 offset:{FDN-GOW}")
def job_count(ret):
    e("s_waitcnt vmcnt(0)")
    e("s_mov_b64 exec, 1")
    e(f"v_mov_b32 v7, s{sFV}")
    e(f"s_mov_b32 s{sA}, {WS_CNT}")
    e(f"buffer_atomic_add v7, v{vL4}, {s(rWS,4)}, s{sA} offen sc1")
    e("s_mov_b64 exec, -1")
def job_go(ret, val="1"):
    e(f"v_mov_b32 v7, {val}")
    e("s_waitcnt vmcnt(0)")
    e("s_mov_b64 exec, 1")
    e("ds_add_u32 v52, v7")
    e("s_mov_b64 exec, -1")
def job_gpoll(ret):
    e(f"v_and_b32 v6, 7, v{vL}")
    e("v_lshlrev_b32 v6, 7, v6")
    e(f"s_lshl_b32 s{sA}, s{sGR}, 10")
    e(f"s_add_u32 s{sA}, s{sA}, {WS_REC+16}")
    e(f"s_mov_b32 s{sSPIN}, 0")
    a.label("L_gpoll")
    e(f"buffer_load_dwordx2 v[20:21], v6, {s(rWS,4)}, s{sA} offen sc1")
    e(f"s_add_u32 s{sSPIN}, s{sSPIN}, 1")
    e("s_waitcnt vmcnt(0)")
    e(f"v_cmp_ne_u32 vcc, s{sT}, v20")
    e(f"s_cmp_gt_u32 s{sSPIN}, {cfg.spin}")
    e("s_cbranch_scc1 L_gpollout")
    e("s_cbranch_vccnz L_gpoll")
    a.label("L_gpollout")
    e(f"s_getreg_b32 s{sB}, hwreg(HW_REG_XCC_ID, 0, 4)")
    e(f"v_cmp_ne_u32 vcc, s{sB}, v21")
    e("s_cmp_eq_u64 vcc, 0")
    e(f"s_cselect_b32 s{sB}, {0x1000001 if cfg.xloc else 1}, 1")
    job_go(ret, f"s{sB}")
def job_y(ret):
    e("v_mov_b32 v6, 0")
    e(f"s_mov_b32 s{sA}, {WS_CNT}")
    e(f"s_mov_b32 s{sSPIN}, 0")
    a.label("L_ypoll")
    e(f"buffer_load_dword v7, v6, {s(rWS,4)}, s{sA} offen sc1")
    e(f"s_add_u32 s{sSPIN}, s{sSPIN}, 1")
    e("s_waitcnt vmcnt(0)")
    e(f"v_readfirstlane_b32 s{sB}, v7")
    e(f"s_cmp_gt_u32 s{sSPIN}, {cfg.spin}")
    e("s_cbranch_scc1 L_ypollout")
    e(f"s_cmp_eq_u32 s{sB}, {0 if cfg.noffn else 224}")
    e("s_cbranch_scc0 L_ypoll")
    a.label("L_ypollout")
    e(f"s_lshr_b32 s{sA}, s{sHG}, 1")
    e(f"s_lshl_b32 s{sA}, s{sA}, 9")
    e(f"s_and_b32 s{sB}, s{sW}, 1")
    e(f"s_lshl_b32 s{sB}, s{sB}, 8")
    e(f"s_add_u32 s{sA}, s{sA}, s{sB}")
    e(f"s_lshr_b32 s{sB}, s{sW}, 1")
    e(f"s_lshl_b32 s{sB}, s{sB}, 7")
    e(f"s_add_u32 s{sA}, s{sA}, s{sB}")
    e(f"s_add_u32 s{sA}, s{sA}, {WS_Y}")
    e(f"v_lshrrev_b32 v6, 3, v{vL}")
    e(f"v_and_b32 v7, 7, v{vL}")
    e("v_lshlrev_b32 v7, 4, v7")
    e("v_lshl_add_u32 v6, v6, 11, v7")
    assert NREP == 8
    e(f"buffer_load_dwordx4 v[8:11], v6, {s(rWS,4)}, s{sA} offen sc1")
for p_, d_ in sorted(JOBS.items()):
    a.label(f"L_hook{p_}")
    items = list(d_.items())
    for n_, (w_, jb) in enumerate(items):
        a.hist = []
        if n_ + 1 < len(items):
            e(f"s_cmp_eq_u32 s{sW}, {w_}")
            e(f"s_cbranch_scc0 L_hook{p_}_{n_+1}")
        ret = f"L_hret{p_}"
        if jb.startswith("wo"): job_wo(int(jb[2:]), ret)
        elif jb.startswith("scat"): job_scat(int(jb[4:]), ret)
        else: globals()["job_" + jb](ret)
        e(f"s_branch {ret}")
        if n_ + 1 < len(items): a.label(f"L_hook{p_}_{n_+1}")
for st in range(8):
    a.label(f"L_fbc_{st}")
    a.hist = []
    e(f"v_subrev_u32 v40, {QB}, v{vNq+(st&3)}")
    e("v_lshrrev_b32 v40, 10, v40")
    e(f"v_and_b32 v41, 31, v{vL}")
    e("v_lshl_add_u32 v40, v40, 5, v41")
    e("v_lshlrev_b32 v40, 2, v40")
    e(f"v_add_u32 v40, {FMX}, v40")
    e("ds_read_b32 v41, v40")
    e("s_waitcnt lgkmcnt(0)")
    for i in range(16): e(f"v_sub_f32 v{CM+i}, 0, v41")
    e("s_nop 1")
    if st == 0:
        mf32(S0, KF, QF, v(CM, 16))
        e("s_nop 7")
        e("s_nop 3")
        e("s_branch L_attn")
    else:
        e(f"s_branch L_fbr_{st}")
a.label("L_fallback")
a.hist = []
e("s_waitcnt vmcnt(0)")
e(f"s_mov_b32 s{sFB}, 1")
e(f"s_mov_b32 s{sHK}, 0")
e(f"v_and_b32 v40, 31, v{vL}")
e(f"v_lshrrev_b32 v41, 5, v{vL}")
e("v_lshlrev_b32 v26, 5, v40")
e("v_lshl_add_u32 v26, v41, 4, v26")
e(f"s_lshl_b32 s{sA}, s{sW}, 13")
e(f"s_add_u32 s{sB}, s{sA}, {WS_V}")
e(f"s_add_u32 s{sE}, s{sA}, 4096")
e(f"s_add_u32 s{sF}, s{sB}, 4096")
for j in range(8): kv_load(j)
e(f"v_lshlrev_b32 v47, 2, v{vG}")
e(f"v_xor_b32 v47, v47, v{vTK}")
e("v_lshlrev_b32 v47, 4, v47")
e(f"v_lshl_add_u32 v47, v{vG}, 10, v47")
e(f"s_lshr_b32 s{sA}, s{sHG}, 1")
e(f"s_lshl_b32 s{sA}, s{sA}, 8")
e(f"v_add_u32 v47, s{sA}, v47")
e(f"s_lshl_b32 s{sA}, s{sW}, 14")
e(f"s_lshl_b32 s{sE}, s{sW}, 12")
for i in range(4):
    e(f"s_add_u32 m0, s{sE}, {i*1024}")
    e(f"s_add_u32 s{sB}, s{sA}, {i*4096}")
    dma(47, rWO, f"s{sB}")
e(f"v_and_b32 v40, 11, v{vTK}")
e("v_cmp_eq_u32 vcc, 0, v40")
e("v_mov_b32 v41, 0x3f803f80")
e("s_nop 7")
e(f"v_cndmask_b32 v{V1}, 0, v41, vcc")
for i in range(1, 32): e(f"v_mov_b32 v{V1+i}, v{V1}")
e(f"v_lshl_or_b32 v40, s{sW}, 6, v{vL}")
e("v_and_b32 v40, 255, v40")
e("v_lshlrev_b32 v40, 2, v40")
e(f"v_add_u32 v40, {FMX}, v40")
e("v_mov_b32 v41, 0xff800000")
e("ds_write_b32 v40, v41")
zero_slots(44)
for k in range(4): e(f"v_xor_b32 v{vNq+k}, 4096, v{vNq+k}")
e(f"v_add_u32 v42, {QB}, v{vL16}")
e(f"v_and_b32 v43, 31, v{vL}")
e("v_lshlrev_b32 v43, 2, v43")
e(f"v_add_u32 v43, {FMX}, v43")
e(f"s_mov_b32 s{sIT}, 0")
e("s_waitcnt vmcnt(0) lgkmcnt(0)")
e("s_barrier")
e("ds_write_b32 v50, v44")
a.label("L_fb_loop")
e(f"ds_read_b128 {v(QF,4)}, v42")
e("v_mov_b32 v41, 0xff800000")
e("s_waitcnt lgkmcnt(0)")
for j in range(8):
    mf32(S0, KF + 4 * j, QF, "0")
    for r in range(0, 16, 2):
        e(f"v_max3_f32 v41, v41, v{S0+r}, v{S0+r+1}")
e("ds_max_f32 v43, v41")
e("v_add_u32 v42, 1024, v42")
e("v_add_u32 v43, 128, v43")
e(f"s_add_u32 s{sIT}, s{sIT}, 1")
e(f"s_cmp_lt_u32 s{sIT}, 8")
e("s_cbranch_scc1 L_fb_loop")
e("s_waitcnt lgkmcnt(0)")
e("s_barrier")
e(f"ds_read_b128 {v(QF,4)}, v{vNq}")
e(f"s_lshl_b32 s{sA}, s{sW}, 13")
e(f"s_add_u32 s{sB}, s{sA}, {WS_V}")
e(f"s_add_u32 s{sE}, s{sA}, 4096")
e(f"s_add_u32 s{sF}, s{sB}, 4096")
e("s_branch L_fbc_0")
a.label("L_code_end")

a.raw(f""".section .rodata,"a"
.p2align 6
.amdhsa_kernel {NAME}_kernel
  .amdhsa_next_free_vgpr 256
  .amdhsa_next_free_sgpr 102
  .amdhsa_accum_offset 256
  .amdhsa_group_segment_fixed_size 0
  .amdhsa_kernarg_size 112
  .amdhsa_user_sgpr_count 2
  .amdhsa_user_sgpr_kernarg_segment_ptr 1
  .amdhsa_system_sgpr_workgroup_id_x 1
.end_amdhsa_kernel""")
open(sys.argv[1], "w").write(a.text())
print("nops added:", a.nops_added, "stamps:", STAMPS)
```

```python
import sys, struct
from asmlib import Asm, v, s

NAME = "gated_mix__grouped_kv_mqa__moe_arch_mod__prompt"
def f2u(x): return struct.unpack("<I", struct.pack("<f", x))[0]

class Cfg:
    stamps = 0
    clk = 0
    force_fallback = 0
    spin = 0x40000
    prio = 1
    psleep = 2
    noffn = 0
    otlb = 0
    pa = 31
    pb = 47
    pc = 55
    w0prio = 0
    kvrot = 1
    perm = 0
    ylate = 1
    otouch = 0
    xloc = 1
    narr = 4
    whi = 0
    chunk = 8
    pollat = 10
    pollat0 = 5
    kv0 = 2
    kv1 = 5
    cpf = 1
    nfirst = 4
    probe = 0
    hold = 0
    holdus = 60
    dbgwg = -1
    dbgwave = 7
    gearly = 0
    nup = 0
    xoe = 0
cfg = Cfg()
for a_ in sys.argv[2:]:
    k_, val_ = a_.split("=")
    assert hasattr(cfg, k_), k_
    setattr(cfg, k_, int(val_))

WS_K = 0; WS_V = 65536; WS_Y = 131072; WS_CNT = WS_Y + 32768; WS_REC = 256 * 1024; WS_EP = 320 * 1024; WS_G = 384 * 1024; WS_O = 1 << 20; WS_STAMP = 4 << 20
WS_BYTES = 8 << 20
NREP = 8
KB = 1024
XB_ = 0; WB = 64 * KB; WKB = 128 * KB; QB = 128 * KB; SLD = 136 * KB; SLT = 152 * KB
RGB = 156 * KB; FMX = 156 * KB; SCR = 158 * KB
QN2 = SCR + 1024
FBF = SCR + 16
GOW = SCR + 20
FDN = SCR + 24
HV = SCR + 256; ZV = SCR + 32
YB = SCR + 512
FW = 3
FB = 96 * KB
F_G = 0; F_U = 8192 + 64; F_D = 16384 + 128; F_X = F_D + 8 * 1088
NWO = 12
CSCALE = 0.25 * 1.4426950408889634

sW = 3; sGR = 4; sHG = 5; sA = 6; sB = 7; sC = 8; sD = 9; sE = 10; sF = 11; sIT = 12; sFB = 13; sSEL = 14; sR16 = 15
pX, pWQ, pWK, pWV, pWO, pBX, pWR, pWG = 16, 18, 20, 22, 24, 26, 28, 30
pWU, pWD, pGW, pOUT, pDBG, pWS = 32, 34, 36, 38, 40, 42
rX, rWQ, rWO, rT1, rWS, rOUT, rDBG, rT2 = 44, 48, 52, 56, 60, 64, 68, 72
sF0 = 76; sFV = 77; sOWN = 78; sSPIN = 79; sOH = 80; sTH = 81; sTG = 82; sU = 83
sRHO = 14; sXL = 15; sXG = 12; sWX = 78
sT = 68; sPB = 69; sID = 70; sHK = 71; sPO = 26; sPI = 27; sKV = 28
sST = 84
vL = 1; vTK = 2; vG = 3; vL4 = 4; vL16 = 5
XA = 64; XBr = 128
KF = 64; V0 = 96; S0 = 128; S1 = 144; O0 = 160; O1 = 176; V1 = 192; CM = 224; PP = 240; QF = 248
vAd = 54; vAt = 59; vNq = 252

JOBS = {
    2: {FW: "scat0", 0: "sent", 4: "wo0"},
    3: {FW: "scat1"},
    4: {FW: "scat2", 6: "wo2"},
    5: {FW: "scat3"},
    6: {0: "rec", 1: "wo1", FW: "dstage", 4: "go"},
    8: {FW: "ffn", 5: "wo3", 6: "go"},
    10: {1: "go"},
    11: {FW: "count", 5: "go"},
    12: {0: "gpoll"},
    14: {"own": "y"},
}
NGO = 5
a = Asm()
e = a.e
STAMPS = []
uid = [0]
def L(p):
    uid[0] += 1
    return f"L_{p}_{uid[0]}"
HOLD = {1: "end", 2: "B6", 3: "loopend", 4: "B1a", 5: "entry"}
def stamp(name, sets=(1,)):
    if cfg.hold and HOLD[cfg.hold] == name:
        Lh = L("hold")
        a.label(Lh)
        e("s_memrealtime s[100:101]")
        e("s_waitcnt lgkmcnt(0)")
        e("s_sub_u32 s100, s100, s98")
        e(f"s_cmp_lt_u32 s100, {cfg.holdus * 100}")
        e(f"s_cbranch_scc1 {Lh}")
    if not cfg.stamps: return
    if cfg.probe and name != "entry": return
    if cfg.stamps == 3 and name in ("B1a", "polled", "B1b", "qdone", "prepoll", "B6", "kviss"): pass
    elif name not in ("entry", "K0", "loopend", "end") and cfg.stamps not in sets: return
    i = len(STAMPS)
    assert i < 16
    a.c(f"stamp {i}: {name}")
    e("s_memtime s[100:101]" if cfg.clk else "s_memrealtime s[100:101]")
    e("s_waitcnt lgkmcnt(0)")
    e(f"s_mov_b32 s{sST+i}, s100")
    STAMPS.append(name)

def xstamp(i, st_=3):
    if cfg.stamps != st_: return
    a.c(f"stamp {i}: x{i}")
    e("s_memrealtime s[100:101]")
    e("s_waitcnt lgkmcnt(0)")
    e(f"s_mov_b32 s{sST+i}, s100")
def srd(r, p, nbytes):
    e(f"s_mov_b32 s{r}, s{p}")
    e(f"s_mov_b32 s{r+1}, s{p+1}")
    e(f"s_mov_b32 s{r+2}, {nbytes}")
    e(f"s_mov_b32 s{r+3}, 0x20000")
def srd_sel(r, p1, p0, nbytes):
    e(f"s_cselect_b32 s{r}, s{p1}, s{p0}")
    e(f"s_cselect_b32 s{r+1}, s{p1+1}, s{p0+1}")
    e(f"s_mov_b32 s{r+2}, {nbytes}")
    e(f"s_mov_b32 s{r+3}, 0x20000")
def dma(voff, r, soff, off=0):
    o = f" offset:{off}" if off else ""
    e(f"buffer_load_dwordx4 v{voff}, {s(r,4)}, {soff} offen{o} lds")
def mf16(d, A, B, C):
    e(f"v_mfma_f32_16x16x32_bf16 {v(d,4)}, {v(A,4)}, {v(B,4)}, {C}")
def mf32(d, A, B, C):
    e(f"v_mfma_f32_32x32x16_bf16 {v(d,16)}, {v(A,4)}, {v(B,4)}, {C}")
def sum_over_g(x, t):
    e(f"v_mov_b32 v{t}, v{x}")
    e(f"v_permlane32_swap_b32 v{x}, v{t}")
    e(f"v_add_f32 v{x}, v{x}, v{t}")
    e(f"v_mov_b32 v{t}, v{x}")
    e(f"v_permlane16_swap_b32 v{x}, v{t}")
    e(f"v_add_f32 v{x}, v{x}, v{t}")
def round_bf16(x):
    e(f"v_cvt_pk_bf16_f32 v{x}, v{x}, v{x}")
    e(f"v_and_b32 v{x}, 0xffff0000, v{x}")
def sigmoid(x):
    e(f"v_mul_f32 v{x}, 0x{f2u(-1.4426950408889634):08x}, v{x}")
    e(f"v_exp_f32 v{x}, v{x}")
    e(f"v_add_f32 v{x}, 1.0, v{x}")
    e(f"v_rcp_f32 v{x}, v{x}")
def vmw(n): e(f"s_waitcnt vmcnt({n})")

def wq_steps(lo, hi):
    for S in range(lo, hi):
        e(f"s_add_u32 m0, s{sE}, {S*4096}")
        e(f"s_xor_b32 s{sA}, s{sWX}, {S*32768}")
        dma(10, rWQ, f"s{sA}")

def row_max(x):
    for n in (8, 4, 2, 1):
        e(f"v_max_u32_dpp v{x}, v{x}, v{x} row_ror:{n} row_mask:0xf bank_mask:0xf")

def zero_slots(t0):
    e(f"v_lshl_or_b32 v{t0+2}, s{sW}, 6, v{vL}")
    for i in range(2): e(f"v_mov_b32 v{t0+i}, 0")
    e(f"v_lshlrev_b32 v{t0+2}, 3, v{t0+2}")
    e(f"v_add_u32 v{t0+2}, {SLT}, v{t0+2}")
    e(f"ds_write_b64 v{t0+2}, {v(t0,2)}")

a.raw(f"""; fused gated-mix kernel: MQA attention (32 heads, d=16) + top-1 routed SwiGLU + sigmoid gate, one launch
; @launch grid=(256,1,1) block=(512,1,1) lds=163840
.amdgcn_target "amdgcn-amd-amdhsa--gfx950"
.text
.globl {NAME}_kernel
.p2align 12
.fill 832, 4, 0xbf800000
.p2align 8
.type {NAME}_kernel,@function
{NAME}_kernel:""")
e("s_cmp_ge_u32 s2, 256")
e("s_cbranch_scc1 L_end")
if cfg.hold: e("s_memrealtime s[98:99]")
xstamp(4, 5)
e("s_load_dwordx16 s[16:31], s[0:1], 0")
e("s_load_dwordx8 s[32:39], s[0:1], 64")
e("s_load_dwordx4 s[40:43], s[0:1], 96")
e(f"v_and_b32 v{vL}, 63, v0")
e("v_lshrrev_b32 v6, 6, v0")
e(f"v_and_b32 v{vTK}, 15, v0")
e(f"v_readfirstlane_b32 s{sW}, v6")
e(f"v_lshrrev_b32 v{vG}, 4, v{vL}")
e(f"v_lshlrev_b32 v{vL16}, 4, v{vL}")
e(f"v_lshlrev_b32 v{vL4}, 2, v{vL}")
e(f"s_and_b32 s{sA}, s2, 7")
e(f"s_lshr_b32 s{sHG}, s2, 5")
e(f"s_bfe_u32 s{sB}, s2, 0x20003")
e(f"s_lshl_b32 s{sGR}, s{sA}, 2")
e(f"s_add_u32 s{sGR}, s{sGR}, s{sB}")
e(f"s_mov_b32 s{sRHO}, s{sB}")
e(f"s_and_b32 s{sOH}, s{sHG}, 1")
e(f"s_lshr_b32 s{sTH}, s{sW}, 2")
e(f"s_xor_b32 s{sTH}, s{sTH}, s{sOH}")
e(f"s_lshl_b32 s{sC}, s{sB}, 3")
e(f"s_add_u32 s{sC}, s{sC}, s{sA}")
e(f"s_cmp_lt_u32 s{sC}, 28")
e(f"s_cselect_b32 s{sFV}, {0 if cfg.noffn else 1}, 0")
e(f"s_lshl_b32 s{sC}, s{sC}, 6")
e(f"s_lshl_b32 s{sB}, s{sHG}, 3")
e(f"s_add_u32 s{sF0}, s{sC}, s{sB}")
e(f"s_bfe_u32 s{sPB}, s{sHG}, 0x10001")
e(f"s_lshl_b32 s{sXL}, s{sOH}, 1")
e(f"s_add_u32 s{sXL}, s{sXL}, s{sPB}")
e(f"s_xor_b32 s{sXL}, s{sXL}, s{sW}")
e(f"s_lshl_b32 s{sXL}, s{sXL}, 14")
e(f"s_lshl_b32 s{sXG}, s{sGR}, 16")
e(f"s_lshl_b32 s{sB}, s{sRHO}, 8")
e(f"v_xor_b32 v11, s{sB}, v{vL16}")
e(f"s_and_b32 s{sD}, s{sW}, 3")
e(f"s_and_b32 s{sA}, s{sW}, 1")
e(f"s_lshl_b32 s{sC}, s{sD}, 13")
e(f"s_lshl_b32 s{sB}, s{sA}, 2")
e(f"v_and_b32 v6, 1, v{vG}")
e("v_lshlrev_b32 v6, 1, v6")
e(f"v_or_b32 v6, s{sB}, v6")
e(f"v_and_b32 v7, 7, v{vL}")
e("v_xor_b32 v6, v6, v7")
e("v_lshlrev_b32 v6, 4, v6")
e(f"v_lshrrev_b32 v7, 3, v{vL}")
e("v_lshl_add_u32 v6, v7, 10, v6")
e(f"s_lshl_b32 s{sB}, s{sHG}, 7")
e(f"s_add_u32 s{sB}, s{sB}, s{sC}")
e(f"v_add_u32 v10, s{sB}, v6")
e(f"s_lshl_b32 s{sE}, s{sD}, 10")
e(f"s_add_u32 s{sE}, s{sE}, {WB}")
e(f"s_lshl_b32 s{sWX}, s{sRHO}, 17")
e(f"v_and_b32 v6, 16, v{vL}")
e("v_lshlrev_b32 v6, 3, v6")
e(f"v_xor_b32 v21, v6, v{vL16}")
for r_, n_ in ((rX, 2097152), (rWQ, 524288), (rT2, 16384), (rT1, 1024)):
    e(f"s_mov_b32 s{r_+2}, {n_}")
    e(f"s_mov_b32 s{r_+3}, 0x20000")
e(f"s_lshl_b32 s{sA}, s{sW}, 14")
e(f"s_xor_b32 s{sA}, s{sA}, s{sXL}")
e(f"s_lshl_b32 s{sB}, s{sW}, 12")
e(f"s_add_u32 s{sU}, s{sA}, s{sB}")
e(f"s_add_u32 s{sF}, s{sU}, s{sXG}")
e(f"s_lshl_b32 s{sC}, s{sW}, 6")
e(f"v_xor_b32 v12, s{sC}, v11")
for i in range(1, 4): e(f"v_xor_b32 v{12+i}, {16*i}, v12")
e(f"s_lshl_b32 s{sC}, s{sRHO}, 12")
e(f"s_xor_b32 s{sC}, s{sC}, s{sB}")
e(f"s_add_u32 s{sB}, s{sB}, {WKB}")
e(f"v_mov_b32 v53, {SCR+128}")
e("v_mov_b32 v19, 0")
e("ds_write_b32 v53, v19 offset:4")
if cfg.cpf:
    e("s_getpc_b64 s[64:65]")
    a.label("L_pc")
    e(f"s_lshr_b32 s{sA}, s2, 3")
    e(f"s_lshl_b32 s{sA}, s{sA}, 10")
    e(f"s_min_u32 s{sA}, s{sA}, L_code_end-L_pc-1024")
    e(f"v_add_u32 v9, s{sA}, v{vL16}")
    e(f"s_cmp_eq_u32 s{sW}, 7")
    e("s_cbranch_scc0 L_nocpf")
    e("global_load_dwordx4 v[48:51], v9, s[64:65]")
    a.label("L_nocpf")
e(f"s_mov_b32 m0, s{sU}")
e("s_waitcnt lgkmcnt(0)")
stamp("entry")
e(f"s_mov_b32 s{rX}, s{pX}")
e(f"s_mov_b32 s{rX+1}, s{pX+1}")
e(f"s_mov_b32 s{rWQ}, s{pWQ}")
e(f"s_mov_b32 s{rWQ+1}, s{pWQ+1}")
e(f"s_cmp_ge_u32 s{sHG}, 4")
e(f"s_cselect_b32 s{rT2}, s{pWV}, s{pWK}")
e(f"s_cselect_b32 s{rT2+1}, s{pWV+1}, s{pWK+1}")
e(f"s_cmp_ge_u32 s{sW}, 4")
e("s_cbranch_scc1 L_p1hi")
for i in range(4): dma(12 + i, rX, f"s{sF}", 1024 * i)
e(f"s_mov_b32 m0, s{sB}")
e(f"s_load_dword s{sT}, s[{pWS}:{pWS+1}], {WS_EP}")
for i in range(4): dma(21, rT2, f"s{sC}", 1024 * i)
e(f"s_cmp_ge_u32 s{sW}, 2")
e("s_cbranch_scc1 L_p1end")
e(f"s_lshl_b32 s{sA}, s{sW}, 10")
e(f"s_add_u32 m0, s{sA}, {RGB}")
e(f"s_cmp_eq_u32 s{sW}, 1")
e(f"s_cselect_b32 s{rT1}, s{pGW}, s{pWR}")
e(f"s_cselect_b32 s{rT1+1}, s{pGW+1}, s{pWR+1}")
dma(11, rT1, "0")
a.label("L_p1end")
e("s_barrier")
e("s_branch L_setup")
a.label("L_p1hi")
e("s_barrier")
wq_steps(0, cfg.whi)
def x_dma(lo=0, hi=16):
    for i in range(lo, hi):
        if i % 4 == 0 or i == lo:
            e(f"s_add_u32 m0, s{sXL}, {XB_ + (i>>2)*4096}")
            e(f"s_add_u32 s{sF}, s{sXG}, m0")
        e(f"v_xor_b32 v7, {i<<4}, v11")
        dma(7, rX, f"s{sF}", (i & 3) * 1024)
a.label("L_setup")
xstamp(5, 5)
e(f"s_lshl_b32 s{sTG}, s{sGR}, 1")
e(f"s_add_u32 s{sTG}, s{sTG}, s{sOH}")
e(f"s_lshl_b32 s{sID}, s{sGR}, 3")
e(f"s_add_u32 s{sID}, s{sID}, s{sHG}")
e(f"s_mov_b32 s{sFB}, 0")
srd(rWS, pWS, WS_BYTES)
e(f"v_lshlrev_b32 v8, 2, v{vTK}")
e(f"v_add_u32 v8, {SCR}, v8")
e("ds_write_b32 v8, v19")
e("ds_write_b32 v8, v19 offset:1024")
e("ds_write_b32 v8, v19 offset:1088")
zero_slots(22)
srd(rWO, pWO, 524288)
srd(rOUT, pOUT, 2097152)
e(f"v_and_b32 v6, 11, v{vTK}")
e("v_cmp_eq_u32 vcc, 0, v6")
e("v_mov_b32 v7, 0x3f803f80")
e(f"v_cndmask_b32 v{V1}, 0, v7, vcc")
for i in range(1, 32): e(f"v_mov_b32 v{V1+i}, v{V1}")
xstamp(6, 5)
e(f"s_and_b32 s{sA}, s{sW}, 3")
e(f"s_lshr_b32 s{sB}, s{sW}, 2")
e(f"v_lshlrev_b32 v6, 3, v{vL}")
for k in range(5):
    if k < 4:
        e(f"s_add_u32 s{sC}, s{sA}, {k}")
        e(f"s_and_b32 s{sC}, s{sC}, 3")
        e(f"s_lshl_b32 s{sD}, s{sB}, 2")
    else:
        e(f"s_add_u32 s{sC}, s{sA}, 2")
        e(f"s_and_b32 s{sC}, s{sC}, 3")
        e(f"s_xor_b32 s{sD}, s{sB}, 1")
        e(f"s_lshl_b32 s{sD}, s{sD}, 2")
    e(f"s_add_u32 s{sC}, s{sC}, s{sD}")
    e(f"s_lshl_b32 s{sD}, s{sC}, 11")
    e(f"s_add_u32 s{sD}, s{sD}, {SLD}")
    e(f"v_add_u32 v{vAd+k}, s{sD}, v{vL16}")
    e(f"s_lshl_b32 s{sD}, s{sC}, 9")
    e(f"s_add_u32 s{sD}, s{sD}, {SLT}")
    e(f"v_add_u32 v{vAt+k}, s{sD}, v6")
e(f"s_lshl_b32 s{sA}, s{sA}, 1")
for k in range(4):
    e(f"s_xor_b32 s{sC}, s{sB}, {k}")
    e(f"s_add_u32 s{sC}, s{sC}, s{sA}")
    e(f"s_and_b32 s{sC}, s{sC}, 7")
    e(f"s_lshl_b32 s{sC}, s{sC}, 10")
    e(f"s_add_u32 s{sC}, s{sC}, {QB}")
    e(f"v_add_u32 v{vNq+k}, s{sC}, v{vL16}")
e(f"s_xor_b32 s{sC}, s{sB}, 7")
e(f"s_add_u32 s{sC}, s{sC}, s{sA}")
e(f"s_and_b32 s{sU}, s{sC}, 7")
e(f"s_lshr_b32 s{sB}, s{sU}, 2")
e(f"s_lshl_b32 s{sPO}, s{sB}, 15")
e(f"s_and_b32 s{sC}, s{sU}, 3")
e(f"s_lshl_b32 s{sC}, s{sC}, 10")
e(f"s_add_u32 s{sPO}, s{sPO}, s{sC}")
e(f"s_add_u32 s{sPO}, s{sPO}, s{sXG}")
e(f"s_lshl_b32 s{sC}, s{sHG}, 12")
e(f"s_add_u32 s{sPO}, s{sPO}, s{sC}")
e(f"s_add_u32 s{sPO}, s{sPO}, {WS_O}")
e(f"s_lshl_b32 s{sPI}, 1, s{sU}")
e(f"s_lshr_b32 s{sC}, s2, 3")
if cfg.kvrot == 0: e(f"s_mov_b32 s{sC}, 0")
e(f"s_and_b32 s{sB}, s{sC}, 7")
e(f"s_lshl_b32 s{sB}, s{sB}, 10")
e(f"s_lshr_b32 s{sC}, s{sC}, 1")
e(f"s_and_b32 s{sC}, s{sC}, 4")
e(f"s_xor_b32 s{sC}, s{sC}, s{sW}")
e(f"s_lshl_b32 s{sKV}, s{sC}, 13")
e(f"s_add_u32 s{sKV}, s{sKV}, s{sB}")
e(f"s_mov_b32 s{sHK}, 0")
for w_ in range(8):
    m_ = sum(1 << p for p, d in JOBS.items() if w_ in d)
    if m_:
        e(f"s_cmp_eq_u32 s{sW}, {w_}")
        e(f"s_cselect_b32 s{sHK}, {m_}, s{sHK}")
xstamp(7, 5)
e(f"s_lshl_b32 s{sB}, s{sPB}, 14")
e(f"s_lshl_b32 s{sC}, s{sTH}, 15")
e(f"s_add_u32 s{sB}, s{sB}, s{sC}")
for q in range(4):
    e(f"v_add_u32 v6, {4*q}, v{vG}")
    e(f"v_xor_b32 v6, v6, v{vTK}")
    e("v_lshlrev_b32 v6, 4, v6")
    e(f"v_lshl_add_u32 v6, v{vTK}, 10, v6")
    e(f"v_add_u32 v{12+q}, s{sB}, v6")
e(f"v_lshrrev_b32 v8, 2, v{vTK}")
e(f"v_and_b32 v9, 3, v{vTK}")
e(f"v_and_b32 v6, 1, v{vG}")
e("v_lshlrev_b32 v6, 7, v6")
e(f"v_lshl_add_u32 v6, v{vG}, 8, v6")
e("v_lshl_add_u32 v6, v8, 5, v6")
e("v_lshl_add_u32 v6, v9, 3, v6")
e(f"v_add_u32 v16, {WKB}, v6")
e("v_xor_b32 v17, 128, v16")
e(f"v_and_b32 v6, 1, v{vTK}")
e("v_lshlrev_b32 v6, 10, v6")
e(f"v_lshl_add_u32 v6, v{vG}, 4, v6")
e(f"v_add_u32 v18, {RGB}, v6")
e(f"v_and_b32 v6, 1, v{vG}")
e("v_lshrrev_b32 v7, 1, v8")
e("v_lshl_or_b32 v6, v6, 1, v7")
e(f"s_and_b32 s{sA}, s{sW}, 3")
e(f"v_xor_b32 v6, s{sA}, v6")
e("v_lshlrev_b32 v6, 5, v6")
e("v_lshl_add_u32 v6, v9, 3, v6")
e(f"v_lshl_add_u32 v7, v{vG}, 3, v8")
e("v_lshl_add_u32 v6, v7, 7, v6")
e(f"v_add_u32 v26, {WB}, v6")
e(f"s_lshl_b32 s{sA}, s{sPB}, 4")
e(f"v_add_u32 v30, s{sA}, v{vTK}")
e("v_mov_b32 v27, v30")
e(f"v_lshrrev_b32 v6, 1, v{vG}")
e("v_lshlrev_b32 v6, 9, v6")
e(f"v_and_b32 v7, 1, v{vG}")
e("v_lshl_add_u32 v6, v7, 3, v6")
e(f"s_and_b32 s{sA}, s{sW}, 3")
e(f"s_lshl_b32 s{sB}, s{sTH}, 2")
e(f"s_add_u32 s{sA}, s{sA}, s{sB}")
e(f"s_lshl_b32 s{sA}, s{sA}, 10")
e(f"s_add_u32 s{sA}, s{sA}, {QB}")
e(f"v_add_u32 v6, s{sA}, v6")
e("v_lshl_add_u32 v28, v30, 4, v6")
e("v_xor_b32 v29, 256, v28")
e("v_lshlrev_b32 v30, 2, v30")
e(f"v_add_u32 v30, {QN2}, v30")
e("v_xor_b32 v31, 64, v30")
e(f"v_and_b32 v6, 31, v{vL}")
e(f"v_lshrrev_b32 v7, 5, v{vL}")
e(f"v_lshlrev_b32 v{PP}, 5, v6")
e(f"v_lshl_add_u32 v{PP}, v7, 4, v{PP}")
e(f"v_lshlrev_b32 v{PP+2}, 2, v6")
e(f"v_add_u32 v{PP+2}, {QN2}, v{PP+2}")
e(f"v_lshlrev_b32 v{PP+3}, 7, v6")
e("v_mov_b32 v52, 1")
def x_read(dst, S): e(f"ds_read_b128 {v(dst,4)}, v{12+(S&3)} offset:{(S>>2)*256}")
def xb_flip():
    for q in range(4): e(f"v_xor_b32 v{12+q}, 0x4000, v{12+q}")
ACC0 = QF; ACC1 = PP + 4
def rg_chain(X, acc):
    for S in range(5): e(f"ds_read_b128 {v(32+4*(S%5),4)}, v18 offset:{S*64}")
    for S in range(16):
        left = min(S + 5, 16) - (S + 1)
        e(f"s_waitcnt lgkmcnt({left})")
        mf16(acc, 32 + 4 * (S % 5), X + 4 * S, "0" if S == 0 else v(acc, 4))
        if S + 5 < 16: e(f"ds_read_b128 {v(32+4*(S%5),4)}, v18 offset:{(S+5)*64}")
def g_store(acc, flip):
    e("v_lshlrev_b32 v6, 2, v27")
    if flip: e("v_xor_b32 v6, 64, v6")
    e(f"v_add_u32 v6, {GB_}, v6")
    round_bf16(acc + 1)
    sigmoid(acc + 1)
    round_bf16(acc + 1)
    e(f"ds_write_b32 v6, v{acc+1}")
def side_addr(ffn):
    e(f"v_lshlrev_b32 v10, 2, v{vG}")
    e(f"v_xor_b32 v10, v10, v{vTK}")
    e("v_lshlrev_b32 v10, 4, v10")
    e(f"v_lshl_add_u32 v10, v{vG}, 10, v10")
    e(f"s_lshr_b32 s{sA}, s{sHG}, 1")
    e(f"s_lshl_b32 s{sA}, s{sA}, 8")
    e(f"v_add_u32 v10, s{sA}, v10")
    if not ffn: return
    e(f"s_movk_i32 s{sA}, 3584")
    e(f"v_mul_lo_u32 v11, v{vL}, s{sA}")
    e(f"s_lshl_b32 s{sA}, s{sF0}, 1")
    e(f"v_add_u32 v11, s{sA}, v11")
    e("v_mul_u32_u24 v16, 1088, v8")
    e(f"v_lshl_add_u32 v16, v{vG}, 5, v16")
    e("v_lshl_add_u32 v16, v9, 3, v16")
    e(f"v_add_u32 v16, {FB}, v16")
    e(f"v_cmp_eq_u32 vcc, v8, v{vG}")
    e(f"v_mov_b32 v6, {ZV}")
    e(f"v_mov_b32 v7, {HV}")
    e("v_cndmask_b32 v17, v6, v7, vcc")
    e(f"v_lshl_add_u32 v0, v{vG}, 2, v{vTK}")
    e("v_lshl_add_u32 v0, v0, 1, v7")
    e("v_lshrrev_b32 v6, 1, v9")
    e(f"v_mul_u32_u24 v6, {F_U-F_G}, v6")
    e("v_and_b32 v7, 1, v9")
    e("v_lshl_add_u32 v6, v7, 3, v6")
    e(f"v_lshl_add_u32 v7, v{vG}, 3, v8")
    e("v_lshl_add_u32 v8, v7, 4, v6")
    e(f"v_add_u32 v8, {FB}, v8")
    e(f"v_lshlrev_b32 v9, 4, v{vG}")
    e(f"v_add_u32 v9, {FB}, v9")
def p1_arrive():
    e("s_mov_b64 exec, 1")
    e("ds_add_u32 v53, v52 offset:4")
    e("s_mov_b64 exec, -1")
def p1_wait():
    Lw = L("p1w")
    a.label(Lw)
    e("ds_read_b32 v7, v53 offset:4")
    e("s_waitcnt lgkmcnt(0)")
    e("v_cmp_ne_u32 vcc, 4, v7")
    e("s_nop 1")
    e(f"s_cbranch_vccnz {Lw}")
WR = (32, 36, 40, 44, 48)
PR = XBr; P0 = CM + 8
def poll_load(): e(f"buffer_load_dwordx4 {v(PR,4)}, v{PP+3}, {s(rWS,4)}, s{sD} offen sc1")
def q_loop(both):
    n = 4 if both else 3
    D = 3 if both else 4
    def qrd(S):
        w = WR[S % 5]
        if both: e(f"ds_read_b128 {v(XA+4*S,4)}, v{20+(S&3)} offset:{(S>>2)*256}")
        x_read(XBr + 4 * S, S)
        e(f"ds_read_b64_tr_b16 {v(w,2)}, v26 offset:{S*4096}")
        e(f"ds_read_b64_tr_b16 {v(w+2,2)}, v26 offset:{S*4096+512}")
    e("ds_read_b32 v52, v53")
    for S in range(D): qrd(S)
    e(f"s_lshr_b32 s{sD}, s{sKV}, 13")
    e(f"s_lshl_b32 s{sD}, s{sD}, 12")
    e(f"s_add_u32 s{sD}, s{sD}, {WS_REC}")
    for S in range(16):
        if S + D == cfg.chunk:
            if both: vmw(0)
            e("s_barrier")
        if S + D < 16: qrd(S + D)
        left = min(S + D + 1, 16) - (S + 1)
        e(f"s_waitcnt lgkmcnt({n*left})")
        w = WR[S % 5]
        mf16(ACC0, w, XA + 4 * S, "0" if S == 0 else v(ACC0, 4))
        mf16(ACC1, w, XBr + 4 * S, "0" if S == 0 else v(ACC1, 4))
        if S == cfg.pollat: poll_load()
        if S == cfg.pollat0: e(f"buffer_load_dwordx4 {v(P0,4)}, v{PP+3}, {s(rWS,4)}, s{sD} offen sc1")
xstamp(8, 5)
e(f"s_cmp_ge_u32 s{sW}, 4")
e("s_cbranch_scc1 L_2hi")
e(f"s_cmp_eq_u32 s{sW}, 0")
e("s_cbranch_scc0 L_2lo")
e(f"s_lshl_b32 s{sB}, s{sID}, 8")
e(f"s_add_u32 s{sB}, s{sB}, {WS_Y}")
e(f"buffer_store_dword v19, v{vL4}, {s(rWS,4)}, s{sB} offen sc1")
e("v_lshlrev_b32 v6, 5, v27")
e(f"v_lshl_add_u32 v6, v{vG}, 3, v6")
e(f"v_and_b32 v20, 1, v{vG}")
e("v_lshlrev_b32 v20, 9, v20")
e(f"v_lshl_add_u32 v20, v{vTK}, 4, v20")
e(f"v_lshrrev_b32 v7, 1, v{vG}")
e("v_lshl_add_u32 v20, v7, 3, v20")
e(f"s_lshl_b32 s{sB}, s{sPB}, 8")
e(f"s_add_u32 s{sB}, s{sB}, {WS_V}")
e(f"v_add_u32 v20, s{sB}, v20")
e(f"s_lshl_b32 s{sA}, s{sTG}, 10")
e(f"s_cmp_ge_u32 s{sHG}, 4")
e("s_cselect_b64 s[22:23], -1, 0")
e("v_cndmask_b32 v6, v6, v20, s[22:23]")
def kv_reads(S):
    x_read(XA + 4 * S, S)
    w = 32 + 4 * (S % 5)
    e(f"ds_read_b64_tr_b16 {v(w,2)}, v16 offset:{S*1024}")
    e(f"ds_read_b64_tr_b16 {v(w+2,2)}, v17 offset:{S*1024}")
if cfg.w0prio: e("s_setprio 3")
vmw(1)
xstamp(9, 5)
p1_arrive()
p1_wait()
xstamp(12); xstamp(10, 5)
for S in range(4): kv_reads(S)
for S in range(16):
    if S + 4 < 16: kv_reads(S + 4)
    left = min(S + 5, 16) - (S + 1)
    e(f"s_waitcnt lgkmcnt({3*left})")
    w = 32 + 4 * (S % 5)
    mf16(ACC0, w, XA + 4 * S, "0" if S == 0 else v(ACC0, 4))
    mf16(ACC1, XA + 4 * S, w, "0" if S == 0 else v(ACC1, 4))
xb_flip()
for i in range(4): e(f"v_cndmask_b32 v{ACC1+i}, v{ACC0+i}, v{ACC1+i}, s[22:23]")
e(f"v_cvt_pk_bf16_f32 v20, v{ACC1}, v{ACC1+1}")
e(f"v_cvt_pk_bf16_f32 v21, v{ACC1+2}, v{ACC1+3}")
e(f"buffer_store_dwordx2 v[20:21], v6, {s(rWS,4)}, s{sA} offen sc1")
xstamp(13)
rg_chain(XA, ACC1)
e(f"v_mul_f32 v23, v{ACC0}, v{ACC0}")
for i in range(1, 4): e(f"v_fmac_f32 v23, v{ACC0+i}, v{ACC0+i}")
sum_over_g(23, 22)
row_max(23)
e("v_cndmask_b32 v23, v23, v19, s[22:23]")
e(f"s_lshl_b32 s{sA}, s{sTG}, 5")
e(f"v_add_u32 v6, s{sA}, v27")
e(f"s_mul_i32 s{sT}, s{sT}, 0x9e3779b9")
e(f"s_add_u32 s{sT}, s{sT}, 0x7f4a7c15")
e(f"v_mov_b32 v22, s{sT}")
e(f"v_mov_b32 v24, s{sT}")
e("ds_write_b32 v53, v22")
e(f"s_lshl_b32 s{sB}, s{sID}, 7")
e(f"s_add_u32 s{sB}, s{sB}, {WS_REC}")
round_bf16(ACC1)
e(f"v_ashrrev_i32 v25, 31, v{ACC1}")
e("v_or_b32 v25, 0x80000000, v25")
e(f"v_xor_b32 v25, v25, v{ACC1}")
e("v_and_b32 v25, 0xffff0000, v25")
e("v_or_b32 v25, v25, v6")
row_max(25)
e("s_mov_b64 exec, 1")
vmw(0)
e(f"buffer_store_dwordx4 v[22:25], v19, {s(rWS,4)}, s{sB} offen sc1")
e("s_mov_b64 exec, -1")
xstamp(14)
round_bf16(ACC1 + 1)
sigmoid(ACC1 + 1)
round_bf16(ACC1 + 1)
e("v_lshlrev_b32 v6, 2, v6")
e(f"s_mov_b32 s{sB}, {WS_G}")
e("s_mov_b64 exec, 0xffff")
e(f"buffer_store_dword v{ACC1+1}, v6, {s(rWS,4)}, s{sB} offen sc1")
e("s_mov_b64 exec, -1")
side_addr(False)
if cfg.w0prio: e("s_setprio 0")
e("s_waitcnt lgkmcnt(0)")
e("s_branch L_B1lo")
a.label("L_2hi")
xstamp(12)
wq_steps(cfg.whi, 16)
for q in range(4): e(f"v_mov_b32 v{20+q}, v{12+q}")
xb_flip()
side_addr(False)
xstamp(13); xstamp(9, 5)
e(f"s_waitcnt vmcnt({16-cfg.chunk}) lgkmcnt(0)")
xstamp(14); xstamp(10, 5)
e("s_branch L_qhi")
a.label("L_2lo")
x_dma(0, cfg.narr)
vmw(cfg.narr)
xstamp(12); xstamp(9, 5)
p1_arrive()
x_dma(cfg.narr, 16)
p1_wait()
for S in range(16): x_read(XA + 4 * S, S)
xb_flip()
side_addr(True)
xstamp(13)
vmw(0)
xstamp(14); xstamp(10, 5)
a.label("L_B1lo")
e("s_barrier")
stamp("B1a")
q_loop(False)
e("s_branch L_qend")
a.label("L_qhi")
if cfg.stamps in (1, 3): STAMPS.pop()
e("s_barrier")
stamp("B1a")
q_loop(True)
a.label("L_qend")
e(f"v_mov_b32 v26, v{PP}")
e(f"v_add_u32 v27, {WS_V}, v{vL16}")
e(f"s_mov_b32 s{sSPIN}, 0")
e(f"v_readfirstlane_b32 s{sT}, v52")
stamp("qdone")
if cfg.pollat0 >= 0:
    vmw(1)
    e(f"v_xor_b32 v6, s{sT}, v{P0}")
    e(f"v_xor_b32 v7, s{sT}, v{P0+2}")
    e("v_or_b32 v6, v6, v7")
    e("v_cmp_ne_u32 vcc, 0, v6")
    e("s_nop 1")
    e("s_cbranch_vccz L_pollok")
a.label("L_poll")
e("s_waitcnt vmcnt(0)")
e(f"v_xor_b32 v6, s{sT}, v{PR}")
e(f"v_xor_b32 v7, s{sT}, v{PR+2}")
e("v_or_b32 v6, v6, v7")
e("v_cmp_ne_u32 vcc, 0, v6")
e(f"s_add_u32 s{sSPIN}, s{sSPIN}, 1")
e(f"s_cmp_gt_u32 s{sSPIN}, {cfg.spin}")
e("s_cbranch_scc1 L_pollout")
e("s_cbranch_vccz L_pollout")
if cfg.psleep: e(f"s_sleep {cfg.psleep}")
poll_load()
e("s_branch L_poll")
a.label("L_pollout")
if cfg.pollat0 >= 0:
    e(f"v_mov_b32 v{P0+1}, v{PR+1}")
    e(f"v_mov_b32 v{P0+3}, v{PR+3}")
    a.label("L_pollok")
    PR = P0
stamp("polled")
def kv_load(j):
    e(f"s_xor_b32 s{sB}, s{sKV}, {j*1024}")
    e(f"buffer_load_dwordx4 {v(KF+4*j,4)}, v26, {s(rWS,4)}, s{sB} offen sc1")
    e(f"buffer_load_dwordx4 {v(V0+4*j,4)}, v27, {s(rWS,4)}, s{sB} offen sc1")
e(f"s_cmp_ge_u32 s{sW}, 4")
e("s_cbranch_scc1 L_kvl1")
for j in range(cfg.kv0): kv_load(j)
a.label("L_kvl1")
e(f"s_mov_b32 s{sC}, 0x{f2u(CSCALE):08x}")
for hf, acc in ((0, ACC0), (1, ACC1)):
    for i in range(4): e(f"v_mul_f32 v{acc+i}, s{sC}, v{acc+i}")
    e(f"v_cvt_pk_bf16_f32 v{20+2*hf}, v{acc}, v{acc+1}")
    e(f"v_cvt_pk_bf16_f32 v{21+2*hf}, v{acc+2}, v{acc+3}")
    e(f"ds_write_b64 v{28+hf}, {v(20+2*hf,2)}")
    e(f"v_mul_f32 v{24+hf}, v{acc}, v{acc}")
    for i in range(1, 4): e(f"v_fmac_f32 v{24+hf}, v{acc+i}, v{acc+i}")
e("v_mov_b32 v6, v24")
e("v_mov_b32 v7, v25")
e(f"v_max_u32_dpp v{PR+1}, v{PR+1}, v{PR+1} row_ror:8 row_mask:0xf bank_mask:0xf")
e(f"v_max_u32_dpp v{PR+3}, v{PR+3}, v{PR+3} row_ror:8 row_mask:0xf bank_mask:0xf")
e("v_permlane32_swap_b32 v24, v6")
e("v_permlane32_swap_b32 v25, v7")
e(f"v_max_u32_dpp v{PR+1}, v{PR+1}, v{PR+1} row_ror:4 row_mask:0xf bank_mask:0xf")
e(f"v_max_u32_dpp v{PR+3}, v{PR+3}, v{PR+3} row_ror:4 row_mask:0xf bank_mask:0xf")
e("v_add_f32 v24, v24, v6")
e("v_add_f32 v25, v25, v7")
e(f"v_max_u32_dpp v{PR+1}, v{PR+1}, v{PR+1} row_ror:2 row_mask:0xf bank_mask:0xf")
e(f"v_max_u32_dpp v{PR+3}, v{PR+3}, v{PR+3} row_ror:2 row_mask:0xf bank_mask:0xf")
e("v_mov_b32 v6, v24")
e("v_mov_b32 v7, v25")
e(f"v_max_u32_dpp v{PR+1}, v{PR+1}, v{PR+1} row_ror:1 row_mask:0xf bank_mask:0xf")
e(f"v_max_u32_dpp v{PR+3}, v{PR+3}, v{PR+3} row_ror:1 row_mask:0xf bank_mask:0xf")
e("v_permlane16_swap_b32 v24, v6")
e("v_permlane16_swap_b32 v25, v7")
e(f"v_mov_b32 v18, {SCR}")
e("v_add_f32 v24, v24, v6")
e("v_add_f32 v25, v25, v7")
e("s_mov_b64 exec, 0xffff")
e("ds_max_u32 v30, v24")
e("ds_max_u32 v31, v25")
e("s_mov_b64 exec, 0x10001")
e(f"ds_max_u32 v18, v{PR+1} offset:8")
e(f"ds_max_u32 v18, v{PR+3} offset:12")
e("s_mov_b64 exec, -1")
e(f"s_cmp_ge_u32 s{sW}, 4")
e("s_cbranch_scc1 L_kvl1b")
for j in range(cfg.kv0, cfg.kv1): kv_load(j)
a.label("L_kvl1b")
e("s_waitcnt lgkmcnt(0)")
stamp("prepoll")
e("s_barrier")
stamp("B6")
e("ds_read_b64 v[6:7], v18 offset:8")
e(f"ds_read_b32 v19, v{PP+2}")
e(f"ds_read_b128 {v(QF,4)}, v{vNq}")
def young_loads():
    e(f"s_cmp_ge_u32 s{sW}, 4")
    e("s_cbranch_scc0 L_kvl2")
    for j in range(8): kv_load(j)
    a.label("L_kvl2")
if not cfg.ylate: young_loads()
e("s_waitcnt lgkmcnt(1)")
e("v_mul_f32 v19, v19, v6")
e("v_sqrt_f32 v19, v19")
e(f"v_readfirstlane_b32 s{sR16}, v7")
e(f"v_mul_f32 v{CM}, 0x{f2u(-1.02 * (8.0 if cfg.force_fallback else 1.0)):08x}, v19")
for i in range(1, 16): e(f"v_mov_b32 v{CM+i}, v{CM}")
if cfg.ylate: young_loads()
if cfg.prio: e("s_setprio 3")
e(f"s_waitcnt vmcnt({2*cfg.kv1-1}) lgkmcnt(0)")
mf32(S0, KF, QF, v(CM, 16))
stamp("K0")
e(f"s_and_b32 s{sSEL}, s{sR16}, 0x7ff")
e(f"s_lshr_b32 s{sC}, s{sSEL}, 5")
e(f"s_cmp_eq_u32 s{sC}, s{sTG}")
e(f"s_cselect_b32 s{sOWN}, 1, 0")
e(f"s_and_b32 s{sR16}, s{sR16}, 0xffff0000")
e(f"s_cmp_lt_u32 s{sW}, 4")
e(f"s_cselect_b32 s{sC}, s{sOWN}, 0")
e(f"s_lshl_b32 s{sC}, s{sC}, 14")
e(f"s_or_b32 s{sHK}, s{sHK}, s{sC}")
e("s_nop 3")

a.label("L_attn")
if cfg.perm: e("s_mov_b32 s25, 0x07060302")
e(f"v_mov_b32 v52, {GOW}")
e(f"s_mov_b32 s{sIT}, 0")
STUBS = []
a.strict = True
for st in range(8):
    O = (O0, O1)[st & 1]; Op = (O1, O0)[st & 1]
    k = st & 3
    for j in range(8):
        t = st * 8 + j
        Sc = (S0, S1)[t & 1]; Sn = (S1, S0)[t & 1]
        jn = (j + 1) & 7
        def ex(p):
            e(f"v_exp_f32 v{Sc+2*p}, v{Sc+2*p}")
            e(f"v_exp_f32 v{Sc+2*p+1}, v{Sc+2*p+1}")
        def cv(p):
            if cfg.perm: e(f"v_perm_b32 v{PP+p}, v{Sc+2*p+1}, v{Sc+2*p}, s25")
            else: e(f"v_cvt_pk_bf16_f32 v{PP+p}, v{Sc+2*p}, v{Sc+2*p+1}")
        def init_reads():
            kk = k if st < 7 else 4
            e(f"ds_read_b64 {v(Op+8,2)}, v{vAt+kk}")
            e(f"ds_read_b128 {v(Op,4)}, v{vAd+kk}")
            e(f"ds_read_b128 {v(Op+4,4)}, v{vAd+kk} offset:1024")
            if st == 7: e("ds_read_b32 v53, v52")
        if j == 7 and st < 7:
            e("s_waitcnt lgkmcnt(0)")
            if st == 7: e(f"v_mul_u32_u24 v{Op+9}, v53, v{Op+9}")
            if st > 0: e(f"v_cmp_ne_u32 vcc, {st if st < 7 else 7*NGO}, v{Op+9}")
            if st < 7:
                e(f"s_cmp_eq_u32 s{sFB}, 0")
                e(f"s_cbranch_scc0 L_fbc_{st+1}")
            else:
                e("s_nop 1")
            a.label(f"L_fbr_{st+1}")
            if st > 0: e(f"s_cbranch_vccnz L_retry_{st}")
            a.label(f"L_ok_{st}")
            stamp(f"st{st}", (2,))
            if st > 0: STUBS.append((st, Op, k if st < 7 else 4))
        if cfg.prio and t in (cfg.pa, cfg.pb, cfg.pc): e(f"s_setprio {2 - (cfg.pa, cfg.pb, cfg.pc).index(t)}")
        def smf():
            if st == 0 and j < 7: vmw(15 - 2 * jn)
            if not (st == 7 and j == 7):
                mf32(Sn, KF + 4 * jn, QF, v(CM, 16))
        def pv1():
            if j == 0:
                if st > 0: mf32(Op, V1 + 4 * 7, PP + 4, v(Op, 16))
            else: mf32(O, V1 + 4 * (j - 1), PP + 4, v(O, 16))
        def side():
            if st == 0:
                if j == 7: vmw(0)
                for i in range(4): e(f"v_permlane16_swap_b32 v{V0+4*j+i}, v{V1+4*j+i}")
            if j == 6 and st < 7:
                kn = (st + 1) & 3
                if st + 1 >= 4: e(f"v_xor_b32 v{vNq+kn}, 4096, v{vNq+kn}")
                e(f"ds_read_b128 {v(QF,4)}, v{vNq+kn}")
            if j == (5 if st < 7 else 6) and st > 0: init_reads()
        if st == 0 and j == 0 and cfg.kv1 < 8:
            Lk = L("nokv")
            e(f"s_cmp_ge_u32 s{sW}, 4")
            e(f"s_cbranch_scc1 {Lk}")
            for jj in range(cfg.kv1, 8): kv_load(jj)
            a.label(Lk)
        ex(0); pv1(); ex(1); ex(2); cv(0); smf(); ex(3); cv(1); ex(4); cv(2); ex(5); cv(3); side(); ex(6)
        mf32(O, V0 + 4 * j, PP, "0" if (j == 0 and st < 2) else v(O, 16))
        cv(4); ex(7); cv(5); cv(6); cv(7)
        if t < 10: stamp(f"t{t}", (7,))
        if j == 0 and st > 0:
            kp = (st - 1) & 3
            e(f"v_mov_b32 v{Op+9}, {st}")
            e(f"ds_write_b128 v{vAd+kp}, {v(Op,4)}")
            e(f"ds_write_b128 v{vAd+kp}, {v(Op+4,4)} offset:1024")
            e(f"ds_write_b64 v{vAt+kp}, {v(Op+8,2)}")
        if j in (0, 4) and (2 * st + j // 4) in JOBS:
            p_ = 2 * st + j // 4
            e(f"s_bitcmp1_b32 s{sHK}, {p_}")
            e(f"s_cbranch_scc1 L_hook{p_}")
            a.label(f"L_hret{p_}")
a.strict = False
e(f"v_mov_b32 v50, {FBF}")
e(f"s_cmp_ge_u32 s{sW}, 4")
mf32(O1, V1 + 4 * 7, PP + 4, v(O1, 16))
if cfg.prio: e("s_setprio 3")
e("s_cbranch_scc1 L_tfin")
WF = 64; OF = 128; AC = V1; RES = 24; T = CM
sCT = 18; sOA = 19; sOB = 20; sMA = 21; sMB = 22; sMX = 23; sXO = 24
e(f"s_and_b32 s{sC}, s{sW}, 1")
e(f"s_lshr_b32 s{sD}, s{sW}, 1")
e(f"s_lshl_b32 s{sCT}, s{sC}, 1")
e(f"s_add_u32 s{sCT}, s{sCT}, s{sD}")
e(f"s_lshl_b32 s{sF}, s{sTG}, 15")
e(f"s_add_u32 s{sA}, s{sF}, {WS_O}")
e(f"s_lshr_b32 s{sB}, s{sHG}, 1")
e(f"s_lshl_b32 s{sB}, s{sB}, 8")
e(f"s_add_u32 s{sF}, s{sF}, s{sB}")
e(f"s_lshl_b32 s{sB}, s{sCT}, 6")
e(f"s_add_u32 s{sF}, s{sF}, s{sB}")
e(f"v_and_b32 v{T+4}, 31, v{vL}")
e(f"v_lshrrev_b32 v{T+5}, 5, v{vL}")
e(f"v_lshlrev_b32 v{T+6}, 10, v{T+4}")
e(f"v_lshl_add_u32 v{T+7}, v{T+5}, 4, v{T+6}")
e(f"v_lshl_add_u32 v{T+6}, v{T+5}, 3, v{T+6}")
for q in range(4):
    e(f"buffer_load_dwordx2 {v(40+2*q,2)}, v{T+6}, {s(rX,4)}, s{sF} offen offset:{16*q}")
if cfg.otlb: e(f"buffer_load_dword v{T+12}, v{T+7}, {s(rOUT,4)}, s{sF} offen")
e(f"s_lshl_b32 s{sD}, s{sD}, 1")
e(f"s_sub_u32 s{sE}, 3, s{sD}")
e(f"s_lshl_b32 s{sB}, s{sE}, 10")
e(f"s_add_u32 s{sOA}, s{sA}, s{sB}")
e(f"s_lshl_b32 s{sB}, s{sD}, 10")
e(f"s_add_u32 s{sOB}, s{sA}, s{sB}")
e(f"s_lshl_b32 s{sB}, s{sOH}, 2")
e(f"s_add_u32 s{sC}, s{sB}, s{sE}")
e(f"s_lshl_b32 s{sMA}, 1, s{sC}")
e(f"s_add_u32 s{sC}, s{sB}, s{sD}")
e(f"s_lshl_b32 s{sMB}, 1, s{sC}")
e(f"s_or_b32 s{sMB}, s{sMB}, 0xaa")
e(f"s_xor_b32 s{sC}, s{sW}, 2")
e(f"s_lshl_b32 s{sMX}, 0x100, s{sC}")
e(f"s_lshl_b32 s{sXO}, 0x100, s{sW}")
e(f"v_lshrrev_b32 v{T+2}, 2, v{vTK}")
e(f"v_and_b32 v{T+3}, 3, v{vTK}")
e(f"v_and_b32 v{T}, 1, v{vG}")
e(f"s_lshl_b32 s{sB}, s{sCT}, 1")
e(f"v_or_b32 v{T}, s{sB}, v{T}")
e(f"v_lshlrev_b32 v{T+1}, 1, v{T+2}")
e(f"v_xor_b32 v{T}, v{T}, v{T+1}")
e(f"v_lshlrev_b32 v{T}, 5, v{T}")
e(f"v_lshl_add_u32 v{T}, v{T+3}, 3, v{T}")
e(f"v_lshl_add_u32 v{T+1}, v{T+5}, 2, v{T+2}")
e(f"v_lshl_add_u32 v{T}, v{T+1}, 8, v{T}")
e(f"s_lshl_b32 s{sB}, s{sE}, 12")
e(f"v_add_u32 v{T}, s{sB}, v{T}")
e(f"v_xor_b32 v{T+1}, 64, v{T}")
e(f"v_add_u32 v{T+2}, 0x10000, v{T}")
e(f"v_add_u32 v{T+3}, 0x10000, v{T+1}")
e(f"v_lshlrev_b32 v{T+6}, 2, v{T+4}")
e(f"s_lshl_b32 s{sB}, s{sW}, 13")
e(f"s_add_u32 s{sB}, s{sB}, 4096")
e(f"v_add_u32 v{T+9}, s{sB}, v{vL16}")
e(f"v_xor_b32 v{T+10}, 0x4000, v{T+9}")
e(f"v_mov_b32 v{T+11}, s{sXO}")
a.label("L_gow")
e("ds_read_b32 v51, v52")
e("s_waitcnt lgkmcnt(0)")
e(f"v_readfirstlane_b32 s{sC}, v51")
e(f"s_and_b32 s{sC}, s{sC}, 7")
e(f"s_cmp_eq_u32 s{sC}, {NGO}")
e("s_cbranch_scc0 L_gow")
e(f"s_lshl_b32 s{sB}, s{sTG}, 7")
e(f"s_add_u32 s{sB}, s{sB}, {WS_G}")
e(f"buffer_load_dword v48, v{T+6}, {s(rWS,4)}, s{sB} offen sc1")
def wo_reads(lo=0, hi=8):
    for i in range(lo, hi):
        for c in range(2):
            b = T + c + (2 if i >= 4 else 0); o = (i & 3) * 16384
            e(f"ds_read_b64_tr_b16 {v(WF+8*i+4*c,2)}, v{b} offset:{o}")
            e(f"ds_read_b64_tr_b16 {v(WF+8*i+4*c+2,2)}, v{b} offset:{o+2048}")
def o_loads(par, lo, hi):
    for i in range(lo, hi):
        e(f"s_add_u32 s{sB}, s{sOA if par else sOB}, {i*4096}")
        e(f"buffer_load_dwordx4 {v(OF+4*i,4)}, v{vL16}, {s(rWS,4)}, s{sB} offen sc1")
GSTUB = []
def pub_wait(m):
    Lw = L("pw")
    a.label(Lw)
    e("ds_read_b32 v51, v50")
    e("s_waitcnt lgkmcnt(0)")
    e(f"v_readfirstlane_b32 s{sC}, v51")
    e(f"s_and_b32 s{sC}, s{sC}, s{m}")
    e(f"s_cmp_eq_u32 s{sC}, s{m}")
    e(f"s_cbranch_scc0 {Lw}")
def o_half(par):
    for gq in range(4):
        a.label(f"L_oc{par}{gq}")
        vmw(6 - 2 * gq)
        R = OF + 8 * gq
        e(f"v_max3_u32 v{T+8}, v{R}, v{R+1}, v{R+2}")
        e(f"v_max3_u32 v{T+8}, v{T+8}, v{R+3}, v{R+4}")
        e(f"v_max3_u32 v{T+8}, v{T+8}, v{R+5}, v{R+6}")
        e(f"v_max_u32 v{T+8}, v{T+8}, v{R+7}")
        e(f"v_cmp_eq_u32 vcc, -1, v{T+8}")
        e("s_nop 0")
        e(f"s_cbranch_vccnz L_or{par}{gq}")
        a.label(f"L_og{par}{gq}")
        order = [(i, c) for i in range(2 * gq, 2 * gq + 2) for c in (1, 0)]
        if par == 0 and gq == 3: order = [(6, 1), (7, 1), (6, 0), (7, 0)]
        for i, c in order:
            mf32(AC + 16 * c, WF + 8 * i + 4 * c, OF + 4 * i, "0" if (par == 1 and i == 0) else v(AC + 16 * c, 16))
            if par == 1 and c == 0: wo_reads(i, i + 1)
        GSTUB.append((par, gq))
wo_reads()
e(f"s_mov_b32 s{sSPIN}, 0")
e(f"s_sub_u32 s{sB}, s{sOB}, s{sOA}")
e(f"s_lshl_b32 s{sB}, s{sB}, 2")
for i in range(4): e(f"v_add_u32 v{T+i}, s{sB}, v{T+i}")
xstamp(5, 6)
e("s_branch L_retry_7b")
a.label("L_tfin")
e("s_waitcnt lgkmcnt(0)")
e(f"v_mul_u32_u24 v{O0+9}, v53, v{O0+9}")
e(f"v_cmp_ne_u32 vcc, {7*NGO}, v{O0+9}")
e("s_nop 4")
e("s_cbranch_vccnz L_retry_7")
a.label("L_ok_7")
STUBS.append((7, O0, 4))
e(f"v_readfirstlane_b32 s{sD}, v53")
e(f"v_mov_b32 v7, s{sPI}")
e(f"v_add_f32 v{O1+8}, v{O1+8}, v{O0+8}")
stamp("loopend")
for r in range(4): e(f"v_add_f32 v{O1+r}, v{O1+r}, v{O0+r}")
e(f"v_rcp_f32 v51, v{O1+8}")
for r in range(4, 8): e(f"v_add_f32 v{O1+r}, v{O1+r}, v{O0+r}")
e(f"v_cmp_gt_f32 vcc, 0x{f2u(2.0**-80):08x}, v{O1+8}")
for r in range(8): e(f"v_mul_f32 v{O1+r}, v{O1+r}, v51")
for r in range(4):
    e(f"v_cvt_pk_bf16_f32 v{PP+r}, v{O1+2*r}, v{O1+2*r+1}")
e(f"s_cmp_eq_u32 s{sD}, {NGO}")
for r in range(4): e(f"v_min_u32 v{PP+r}, -2, v{PP+r}")
e("s_cbranch_vccnz L_bad")
e("s_cbranch_scc1 L_pubx")
e(f"buffer_store_dwordx4 {v(PP,4)}, v{vL16}, {s(rWS,4)}, s{sPO} offen")
a.label("L_nopub")
e("s_mov_b64 exec, 1")
e("ds_add_u32 v50, v7")
e("s_mov_b64 exec, -1")
stamp("opub"); xstamp(4, 6)
e(f"s_cmp_ge_u32 s{sW}, 4")
e("s_cbranch_scc1 L_tbar")
pub_wait(sMA)
xstamp(6, 6)
o_loads(1, 0, 8)
xstamp(7, 6)
o_half(1)
xstamp(9, 6)
if cfg.stamps == 6: e(f"s_mov_b32 s{sST+15}, s{sSPIN}")
stamp("half1")
pub_wait(sMB)
stamp("B8"); xstamp(11, 6)
o_loads(0, 0, 8)
xstamp(12, 6)
e("v_sub_f32 v49, 1.0, v48")
for q in range(4):
    e(f"v_lshlrev_b32 v{RES+4*q}, 16, v{40+2*q}")
    e(f"v_and_b32 v{RES+4*q+1}, 0xffff0000, v{40+2*q}")
    e(f"v_lshlrev_b32 v{RES+4*q+2}, 16, v{41+2*q}")
    e(f"v_and_b32 v{RES+4*q+3}, 0xffff0000, v{41+2*q}")
e(f"s_cmp_eq_u32 s{sOWN}, 1")
e("s_cbranch_scc1 L_y")
a.label("L_noy")
for i in range(16): e(f"v_mul_f32 v{RES+i}, v{RES+i}, v49")
o_half(0)
for q in range(4): e(f"ds_write_b128 v{T+9}, {v(AC+16+4*q,4)} offset:{1024*q}")
e("s_mov_b64 exec, 1")
e(f"ds_add_u32 v50, v{T+11}")
e("s_mov_b64 exec, -1")
stamp("ogath"); xstamp(13, 6)
for i in range(16): e(f"v_fmac_f32 v{RES+i}, v{AC+i}, v48")
a.label("L_xw")
e("ds_read_b32 v51, v50")
for q in range(4): e(f"ds_read_b128 {v(OF+4*q,4)}, v{T+10} offset:{1024*q}")
e("s_waitcnt lgkmcnt(4)")
e(f"v_readfirstlane_b32 s{sC}, v51")
e(f"s_and_b32 s{sB}, s{sC}, s{sMX}")
e("s_cbranch_scc0 L_xr")
e("s_waitcnt lgkmcnt(0)")
for i in range(16): e(f"v_fmac_f32 v{RES+i}, v{OF+i}, v48")
xstamp(10, 6)
for i in range(8): e(f"v_cvt_pk_bf16_f32 v{PP+i}, v{RES+2*i}, v{RES+2*i+1}")
for k in (0, 4):
    e(f"v_permlane32_swap_b32 v{PP+k}, v{PP+k+2}")
    e(f"v_permlane32_swap_b32 v{PP+k+1}, v{PP+k+3}")
for k in (0, 4):
    e(f"buffer_store_dwordx4 {v(PP+k,4)}, v{T+7}, {s(rOUT,4)}, s{sF} offen offset:{8*k}")
if cfg.stamps == 1: e(f"s_mov_b32 s{sST+15}, s{sSPIN}")
e(f"s_or_b32 s{sA}, s2, s{sW}")
e("s_cbranch_scc1 L_nobump")
e("v_mov_b32 v6, 0")
e(f"v_mov_b32 v7, s{sT}")
e(f"s_mov_b32 s{sA}, {WS_EP}")
e(f"buffer_store_dword v7, v6, {s(rWS,4)}, s{sA} offen")
a.label("L_nobump")
a.label("L_tbar")
e("s_waitcnt lgkmcnt(0)")
e("s_barrier")
e("ds_read_b32 v51, v50")
e("s_waitcnt lgkmcnt(0)")
e(f"v_readfirstlane_b32 s{sC}, v51")
e(f"s_cmp_ge_u32 s{sC}, 0x10000")
e("s_cbranch_scc1 L_fallback")
if cfg.hold == 1: stamp("end")
if cfg.stamps:
    stamp("stored")
    e("s_waitcnt vmcnt(0)")
    stamp("end")
    if cfg.dbgwg >= 0:
        e(f"s_cmp_eq_u32 s2, {cfg.dbgwg}")
        e("s_cbranch_scc0 L_end")
        e(f"s_cmp_eq_u32 s{sW}, {cfg.dbgwave}")
        e("s_cbranch_scc0 L_end")
        e("v_mov_b32 v6, 0")
        srd(rDBG, pDBG, 256)
        for i in range(1, 16): e(f"s_sub_u32 s{sST+i}, s{sST+i}, s{sST}")
        for q in range(4):
            for i in range(4): e(f"v_mov_b32 v{8+i}, s{sST+4*q+i}")
            e(f"buffer_store_dwordx4 v[8:11], v6, {s(rDBG,4)}, 0 offen offset:{16*q}")
            e("s_nop 1")
    else:
        a.label("L_dump")
        e(f"s_lshl_b32 s{sA}, s2, 3")
        e(f"s_add_u32 s{sA}, s{sA}, s{sW}")
        e(f"s_lshl_b32 s{sA}, s{sA}, 6")
        e(f"s_add_u32 s{sA}, s{sA}, {WS_STAMP}")
        e("v_mov_b32 v6, 0")
        for q in range(4):
            for i in range(4): e(f"v_mov_b32 v{8+i}, s{sST+4*q+i}")
            e(f"buffer_store_dwordx4 v[8:11], v6, {s(rWS,4)}, s{sA} offen offset:{16*q}")
            e("s_nop 1")
a.label("L_end")
e("s_endpgm")

for st, Op, kk in STUBS:
    a.label(f"L_retry_{st}")
    a.hist = []
    e("s_sleep 1")
    e(f"s_add_u32 s{sIT}, s{sIT}, 1")
    e(f"s_cmp_gt_u32 s{sIT}, {cfg.spin*16}")
    e(f"s_cbranch_scc1 L_ok_{st}")
    if st == 7: a.label("L_retry_7b")
    e(f"ds_read_b64 {v(Op+8,2)}, v{vAt+kk}")
    e(f"ds_read_b128 {v(Op,4)}, v{vAd+kk}")
    e(f"ds_read_b128 {v(Op+4,4)}, v{vAd+kk} offset:1024")
    if st == 7: e("ds_read_b32 v53, v52")
    e("s_waitcnt lgkmcnt(0)")
    if st == 7: e(f"v_mul_u32_u24 v{Op+9}, v53, v{Op+9}")
    e(f"v_cmp_ne_u32 vcc, {st if st < 7 else 7*NGO}, v{Op+9}")
    e("s_nop 4")
    e(f"s_cbranch_vccnz L_retry_{st}")
    e(f"s_branch L_ok_{st}")

a.label("L_pubx")
e(f"buffer_store_dwordx4 {v(PP,4)}, v{vL16}, {s(rWS,4)}, s{sPO} offen sc1")
e("s_branch L_nopub")
a.label("L_bad")
e(f"s_cmp_eq_u32 s{sFB}, 0")
e("s_cbranch_scc0 L_pubx")
e("v_add_u32 v7, 0x10000, v7")
e("s_branch L_nopub")
a.label("L_xr")
e(f"s_cmp_ge_u32 s{sC}, 0x10000")
e("s_cbranch_scc1 L_tbar")
e("s_branch L_xw")
a.label("L_y")
a.hist = []
for i in range(4): e(f"v_add_f32_dpp v{12+i}, v{8+i}, v{8+i} row_ror:8 row_mask:0xf bank_mask:0xf")
sum4 = [(12 + i, 16 + i) for i in range(4)]
for x_, t_ in sum4: e(f"v_mov_b32 v{t_}, v{x_}")
for x_, t_ in sum4: e(f"v_permlane32_swap_b32 v{x_}, v{t_}")
for x_, t_ in sum4: e(f"v_add_f32 v{x_}, v{x_}, v{t_}")
for x_, t_ in sum4: e(f"v_mov_b32 v{t_}, v{x_}")
for x_, t_ in sum4: e(f"v_permlane16_swap_b32 v{x_}, v{t_}")
for x_, t_ in sum4: e(f"v_add_f32 v{x_}, v{x_}, v{t_}")
e(f"v_mov_b32 v16, s{sR16}")
e("v_ashrrev_i32 v17, 31, v16")
e("v_not_b32 v17, v17")
e("v_or_b32 v17, 0x80000000, v17")
e("v_xor_b32 v16, v16, v17")
e("v_and_b32 v16, 0xffff0000, v16")
sigmoid(16)
round_bf16(16)
for i in range(4):
    round_bf16(12 + i)
    e(f"v_mul_f32 v{12+i}, v{12+i}, v16")
    round_bf16(12 + i)
e(f"s_lshl_b32 s{sB}, s{sW}, 7")
e(f"s_add_u32 s{sB}, s{sB}, {YB}")
e(f"v_add_u32 v17, s{sB}, v{vL16}")
e("s_mov_b64 exec, 0xff")
e("ds_write_b128 v17, v[12:15]")
e("s_mov_b64 exec, -1")
e(f"v_lshl_add_u32 v17, v{T+5}, 4, s{sB}")
for q in range(4): e(f"ds_read_b128 {v(O0+4*q,4)}, v17 offset:{32*q}")
e(f"s_and_b32 s{sC}, s{sSEL}, 31")
e(f"v_cmp_eq_u32 vcc, s{sC}, v{T+4}")
e("s_waitcnt lgkmcnt(0)")
e("s_mov_b64 exec, vcc")
for i in range(16): e(f"v_add_f32 v{RES+i}, v{RES+i}, v{O0+i}")
e("s_mov_b64 exec, -1")
e("s_branch L_noy")
for par, gq in GSTUB:
    a.label(f"L_or{par}{gq}")
    a.hist = []
    e(f"s_add_u32 s{sSPIN}, s{sSPIN}, 1")
    e(f"s_cmp_gt_u32 s{sSPIN}, {cfg.spin}")
    e(f"s_cbranch_scc1 L_og{par}{gq}")
    e("ds_read_b32 v51, v50")
    o_loads(par, 2 * gq, 8)
    e("s_waitcnt lgkmcnt(0)")
    e(f"v_readfirstlane_b32 s{sC}, v51")
    e(f"s_cmp_ge_u32 s{sC}, 0x10000")
    e("s_cbranch_scc1 L_tbar")
    e(f"s_branch L_oc{par}{gq}")
def job_wo(q, ret):
    if q == 3:
        Lw = L("fdn")
        a.label(Lw)
        e(f"ds_read_b32 v7, v52 offset:{FDN-GOW}")
        e("s_waitcnt lgkmcnt(0)")
        e("v_cmp_ne_u32 vcc, 1, v7")
        e("s_nop 1")
        e(f"s_cbranch_vccnz {Lw}")
    for S in range(32 * q, 32 * q + 32):
        e(f"s_mov_b32 m0, {S*1024}")
        e(f"s_mov_b32 s{sB}, {S*4096}")
        dma(10, rWO, f"s{sB}")
def job_sent(ret):
    for i in range(4): e(f"v_mov_b32 v{20+i}, -1")
    e(f"s_lshl_b32 s{sB}, s{sGR}, 16")
    e(f"s_lshl_b32 s{sC}, s{sHG}, 12")
    e(f"s_add_u32 s{sB}, s{sB}, s{sC}")
    e(f"s_add_u32 s{sB}, s{sB}, {WS_O}")
    for i in range(8):
        if i == 4: e(f"s_add_u32 s{sB}, s{sB}, 32768")
        e(f"buffer_store_dwordx4 v[20:23], v{vL16}, {s(rWS,4)}, s{sB} offen offset:{(i&3)*1024} sc1")
def job_scat(q, ret):
    e(f"s_cmp_eq_u32 s{sFV}, 1")
    e(f"s_cbranch_scc0 {ret}")
    srd(rT1, pWG, 512 * 3584)
    srd(rT2, pWU, 512 * 3584)
    for i in range(2 * q, 2 * q + 2):
        e(f"s_xor_b32 s{sA}, s{sHG}, {i}")
        e(f"s_lshl_b32 s{sC}, s{sA}, 10")
        e(f"s_add_u32 m0, s{sC}, {FB+F_G}")
        e(f"s_mul_i32 s{sB}, s{sA}, {64*3584}")
        dma(11, rT1, f"s{sB}")
        e(f"s_add_u32 m0, s{sC}, {FB+F_U}")
        dma(11, rT2, f"s{sB}")
def job_dstage(ret):
    e(f"s_cmp_eq_u32 s{sFV}, 1")
    e(f"s_cbranch_scc0 {ret}")
    srd(rT1, pWD, 1792 * 1024)
    e(f"s_lshl_b32 s{sA}, s{sF0}, 10")
    for i in range(8):
        e(f"s_mov_b32 m0, {FB+F_D+i*1088}")
        e(f"s_add_u32 s{sB}, s{sA}, {i*1024}")
        dma(vL16, rT1, f"s{sB}")
    e(f"s_mov_b32 m0, {FB+F_X}")
    e(f"s_lshl_b32 s{sB}, s{sSEL}, 10")
    dma(vL16, rX, f"s{sB}")
def job_rec(ret):
    e("s_waitcnt vmcnt(0)")
    e("s_mov_b64 exec, 1")
    e(f"s_getreg_b32 s{sB}, hwreg(HW_REG_XCC_ID, 0, 4)")
    e(f"v_mov_b32 v6, s{sT}")
    e(f"v_mov_b32 v7, s{sB}")
    e(f"s_lshl_b32 s{sA}, s{sID}, 7")
    e(f"s_add_u32 s{sA}, s{sA}, {WS_REC+16}")
    e(f"buffer_store_dwordx2 v[6:7], v{vL4}, {s(rWS,4)}, s{sA} offen sc1")
    e("s_mov_b64 exec, -1")
def job_ffn(ret):
    e(f"s_cmp_eq_u32 s{sFV}, 1")
    e("s_cbranch_scc0 L_ffn_e")
    e("s_waitcnt vmcnt(0)")
    def f_reads(S):
        w = 20 + 8 * (S % 3)
        e(f"ds_read_b64_tr_b16 {v(w,2)}, v8 offset:{F_G+S*512}")
        e(f"ds_read_b64_tr_b16 {v(w+2,2)}, v8 offset:{F_G+S*512+64}")
        e(f"ds_read_b128 {v(w+4,4)}, v9 offset:{F_X+S*64}")
    for S in range(3): f_reads(S)
    e("s_mov_b32 s18, 0x22222222")
    e("s_mov_b32 s19, 0x22222222")
    e("s_mov_b32 s20, 0x44444444")
    e("s_mov_b32 s21, 0x44444444")
    e("s_mov_b32 s22, 0x88888888")
    e("s_mov_b32 s23, 0x88888888")
    for S in range(16):
        left = min(S + 3, 16) - (S + 1)
        e(f"s_waitcnt lgkmcnt({3*left})")
        w = 20 + 8 * (S % 3)
        mf16(44, w, w + 4, "0" if S == 0 else v(44, 4))
        if S + 3 < 16: f_reads(S + 3)
    def d_reads(J0):
        for J in range(J0, J0 + 4):
            e(f"ds_read_b64_tr_b16 {v(20+4*(J&3),2)}, v16 offset:{F_D+J*128}")
            e(f"ds_read_b64_tr_b16 {v(22+4*(J&3),2)}, v16 offset:{F_D+J*128+4*1088}")
    d_reads(0)
    e("v_cndmask_b32 v44, v44, v45, s[18:19]")
    e("v_cndmask_b32 v44, v44, v46, s[20:21]")
    e("v_cndmask_b32 v44, v44, v47, s[22:23]")
    round_bf16(44)
    e("v_mov_b32 v45, v44")
    e("v_permlane32_swap_b32 v44, v45")
    e(f"v_mul_f32 v46, 0x{f2u(-1.4426950408889634):08x}, v44")
    e("v_exp_f32 v46, v46")
    e("v_add_f32 v46, 1.0, v46")
    e("v_rcp_f32 v46, v46")
    e("v_mul_f32 v44, v44, v46")
    round_bf16(44)
    e("v_mul_f32 v44, v44, v45")
    e("v_cvt_pk_bf16_f32 v44, v44, v44")
    e("s_mov_b64 exec, 0xf000f")
    e("ds_write_b16 v0, v44")
    e("s_mov_b64 exec, -1")
    e("ds_read_b128 v[48:51], v17")
    e(f"s_and_b32 s{sA}, s2, {NREP-1}")
    e(f"s_lshl_b32 s{sA}, s{sA}, 11")
    e(f"s_add_u32 s{sA}, s{sA}, {WS_Y}")
    for J0 in (0, 4):
        e("s_waitcnt lgkmcnt(0)")
        DR = (36, 40, 44, 12)
        for J in range(J0, J0 + 4):
            mf16(DR[J & 3], 48, 20 + 4 * (J & 3), "0")
        if J0 == 0: d_reads(4)
        for J in range(J0, J0 + 4):
            e(f"buffer_atomic_add_f32 v{DR[J&3]}, v{vL4}, {s(rWS,4)}, s{sA} offen offset:{J*256}")
    a.label("L_ffn_e")
    e("v_mov_b32 v7, 1")
    e(f"ds_write_b32 v52, v7 offset:{FDN-GOW}")
def job_count(ret):
    e("s_waitcnt vmcnt(0)")
    e("s_mov_b64 exec, 1")
    e(f"v_mov_b32 v7, s{sFV}")
    e(f"s_mov_b32 s{sA}, {WS_CNT}")
    e(f"buffer_atomic_add v7, v{vL4}, {s(rWS,4)}, s{sA} offen sc1")
    e("s_mov_b64 exec, -1")
def job_go(ret, val="1"):
    e(f"v_mov_b32 v7, {val}")
    e("s_waitcnt vmcnt(0)")
    e("s_mov_b64 exec, 1")
    e("ds_add_u32 v52, v7")
    e("s_mov_b64 exec, -1")
def job_gpoll(ret):
    e(f"v_and_b32 v6, 7, v{vL}")
    e("v_lshlrev_b32 v6, 7, v6")
    e(f"s_lshl_b32 s{sA}, s{sGR}, 10")
    e(f"s_add_u32 s{sA}, s{sA}, {WS_REC+16}")
    e(f"s_mov_b32 s{sSPIN}, 0")
    a.label("L_gpoll")
    e(f"buffer_load_dwordx2 v[20:21], v6, {s(rWS,4)}, s{sA} offen sc1")
    e(f"s_add_u32 s{sSPIN}, s{sSPIN}, 1")
    e("s_waitcnt vmcnt(0)")
    e(f"v_cmp_ne_u32 vcc, s{sT}, v20")
    e(f"s_cmp_gt_u32 s{sSPIN}, {cfg.spin}")
    e("s_cbranch_scc1 L_gpollout")
    e("s_cbranch_vccnz L_gpoll")
    a.label("L_gpollout")
    e(f"s_getreg_b32 s{sB}, hwreg(HW_REG_XCC_ID, 0, 4)")
    e(f"v_cmp_ne_u32 vcc, s{sB}, v21")
    e("s_cmp_eq_u64 vcc, 0")
    e(f"s_cselect_b32 s{sB}, {0x1000001 if cfg.xloc else 1}, 1")
    job_go(ret, f"s{sB}")
def job_y(ret):
    e("v_mov_b32 v6, 0")
    e(f"s_mov_b32 s{sA}, {WS_CNT}")
    e(f"s_mov_b32 s{sSPIN}, 0")
    a.label("L_ypoll")
    e(f"buffer_load_dword v7, v6, {s(rWS,4)}, s{sA} offen sc1")
    e(f"s_add_u32 s{sSPIN}, s{sSPIN}, 1")
    e("s_waitcnt vmcnt(0)")
    e(f"v_readfirstlane_b32 s{sB}, v7")
    e(f"s_cmp_gt_u32 s{sSPIN}, {cfg.spin}")
    e("s_cbranch_scc1 L_ypollout")
    e(f"s_cmp_eq_u32 s{sB}, {0 if cfg.noffn else 224}")
    e("s_cbranch_scc0 L_ypoll")
    a.label("L_ypollout")
    e(f"s_lshr_b32 s{sA}, s{sHG}, 1")
    e(f"s_lshl_b32 s{sA}, s{sA}, 9")
    e(f"s_and_b32 s{sB}, s{sW}, 1")
    e(f"s_lshl_b32 s{sB}, s{sB}, 8")
    e(f"s_add_u32 s{sA}, s{sA}, s{sB}")
    e(f"s_lshr_b32 s{sB}, s{sW}, 1")
    e(f"s_lshl_b32 s{sB}, s{sB}, 7")
    e(f"s_add_u32 s{sA}, s{sA}, s{sB}")
    e(f"s_add_u32 s{sA}, s{sA}, {WS_Y}")
    e(f"v_lshrrev_b32 v6, 3, v{vL}")
    e(f"v_and_b32 v7, 7, v{vL}")
    e("v_lshlrev_b32 v7, 4, v7")
    e("v_lshl_add_u32 v6, v6, 11, v7")
    assert NREP == 8
    e(f"buffer_load_dwordx4 v[8:11], v6, {s(rWS,4)}, s{sA} offen sc1")
for p_, d_ in sorted(JOBS.items()):
    a.label(f"L_hook{p_}")
    items = list(d_.items())
    for n_, (w_, jb) in enumerate(items):
        a.hist = []
        if n_ + 1 < len(items):
            e(f"s_cmp_eq_u32 s{sW}, {w_}")
            e(f"s_cbranch_scc0 L_hook{p_}_{n_+1}")
        ret = f"L_hret{p_}"
        if jb.startswith("wo"): job_wo(int(jb[2:]), ret)
        elif jb.startswith("scat"): job_scat(int(jb[4:]), ret)
        else: globals()["job_" + jb](ret)
        e(f"s_branch {ret}")
        if n_ + 1 < len(items): a.label(f"L_hook{p_}_{n_+1}")
for st in range(8):
    a.label(f"L_fbc_{st}")
    a.hist = []
    e(f"v_subrev_u32 v40, {QB}, v{vNq+(st&3)}")
    e("v_lshrrev_b32 v40, 10, v40")
    e(f"v_and_b32 v41, 31, v{vL}")
    e("v_lshl_add_u32 v40, v40, 5, v41")
    e("v_lshlrev_b32 v40, 2, v40")
    e(f"v_add_u32 v40, {FMX}, v40")
    e("ds_read_b32 v41, v40")
    e("s_waitcnt lgkmcnt(0)")
    for i in range(16): e(f"v_sub_f32 v{CM+i}, 0, v41")
    e("s_nop 1")
    if st == 0:
        mf32(S0, KF, QF, v(CM, 16))
        e("s_nop 7")
        e("s_nop 3")
        e("s_branch L_attn")
    else:
        e(f"s_branch L_fbr_{st}")
a.label("L_fallback")
a.hist = []
e("s_waitcnt vmcnt(0)")
e(f"s_mov_b32 s{sFB}, 1")
e(f"s_mov_b32 s{sHK}, 0")
e(f"v_and_b32 v40, 31, v{vL}")
e(f"v_lshrrev_b32 v41, 5, v{vL}")
e("v_lshlrev_b32 v26, 5, v40")
e("v_lshl_add_u32 v26, v41, 4, v26")
e(f"v_add_u32 v27, {WS_V}, v{vL16}")
for j in range(8): kv_load(j)
e(f"v_lshlrev_b32 v47, 2, v{vG}")
e(f"v_xor_b32 v47, v47, v{vTK}")
e("v_lshlrev_b32 v47, 4, v47")
e(f"v_lshl_add_u32 v47, v{vG}, 10, v47")
e(f"s_lshr_b32 s{sA}, s{sHG}, 1")
e(f"s_lshl_b32 s{sA}, s{sA}, 8")
e(f"v_add_u32 v47, s{sA}, v47")
e(f"s_lshl_b32 s{sA}, s{sW}, 14")
e(f"s_lshl_b32 s{sE}, s{sW}, 12")
for i in range(4):
    e(f"s_add_u32 m0, s{sE}, {i*1024}")
    e(f"s_add_u32 s{sB}, s{sA}, {i*4096}")
    dma(47, rWO, f"s{sB}")
e(f"v_and_b32 v40, 11, v{vTK}")
e("v_cmp_eq_u32 vcc, 0, v40")
e("v_mov_b32 v41, 0x3f803f80")
e("s_nop 7")
e(f"v_cndmask_b32 v{V1}, 0, v41, vcc")
for i in range(1, 32): e(f"v_mov_b32 v{V1+i}, v{V1}")
e(f"v_lshl_or_b32 v40, s{sW}, 6, v{vL}")
e("v_and_b32 v40, 255, v40")
e("v_lshlrev_b32 v40, 2, v40")
e(f"v_add_u32 v40, {FMX}, v40")
e("v_mov_b32 v41, 0xff800000")
e("ds_write_b32 v40, v41")
zero_slots(44)
for k in range(4): e(f"v_xor_b32 v{vNq+k}, 4096, v{vNq+k}")
e(f"v_add_u32 v42, {QB}, v{vL16}")
e(f"v_and_b32 v43, 31, v{vL}")
e("v_lshlrev_b32 v43, 2, v43")
e(f"v_add_u32 v43, {FMX}, v43")
e(f"s_mov_b32 s{sIT}, 0")
e("s_waitcnt vmcnt(0) lgkmcnt(0)")
e("s_barrier")
e("ds_write_b32 v50, v44")
a.label("L_fb_loop")
e(f"ds_read_b128 {v(QF,4)}, v42")
e("v_mov_b32 v41, 0xff800000")
e("s_waitcnt lgkmcnt(0)")
for j in range(8):
    mf32(S0, KF + 4 * j, QF, "0")
    for r in range(0, 16, 2):
        e(f"v_max3_f32 v41, v41, v{S0+r}, v{S0+r+1}")
e("ds_max_f32 v43, v41")
e("v_add_u32 v42, 1024, v42")
e("v_add_u32 v43, 128, v43")
e(f"s_add_u32 s{sIT}, s{sIT}, 1")
e(f"s_cmp_lt_u32 s{sIT}, 8")
e("s_cbranch_scc1 L_fb_loop")
e("s_waitcnt lgkmcnt(0)")
e("s_barrier")
e(f"ds_read_b128 {v(QF,4)}, v{vNq}")
e("s_branch L_fbc_0")
a.label("L_code_end")

a.raw(f""".section .rodata,"a"
.p2align 6
.amdhsa_kernel {NAME}_kernel
  .amdhsa_next_free_vgpr 256
  .amdhsa_next_free_sgpr 102
  .amdhsa_accum_offset 256
  .amdhsa_group_segment_fixed_size 0
  .amdhsa_kernarg_size 112
  .amdhsa_user_sgpr_count 2
  .amdhsa_user_sgpr_kernarg_segment_ptr 1
  .amdhsa_system_sgpr_workgroup_id_x 1
.end_amdhsa_kernel""")
open(sys.argv[1], "w").write(a.text())
print("nops added:", a.nops_added, "stamps:", STAMPS)
```

```python
import sys, struct
from asmlib import Asm, v, s

NAME = "gated_mix__grouped_kv_mqa__moe_arch_mod__prompt"
def f2u(x): return struct.unpack("<I", struct.pack("<f", x))[0]

class Cfg:
    stamps = 0
    clk = 0
    force_fallback = 0
    spin = 0x40000
    prio = 1
    psleep = 2
    noffn = 0
    split = 0
    wfirst = 8
    otlb = 0
    pa = 31
    pb = 47
    pc = 55
    w0prio = 0
    kvrot = 1
    perm = 0
    ylate = 1
    otouch = 0
    xloc = 1
    narr = 4
    whi = 0
    chunk = 8
    pollat = 10
    pollat0 = 5
    kv0 = 2
    kv1 = 5
    cpf = 1
    nfirst = 4
    probe = 0
    hold = 0
    holdus = 60
    dbgwg = -1
    dbgwave = 7
    gearly = 0
    nup = 0
    xoe = 0
cfg = Cfg()
for a_ in sys.argv[2:]:
    k_, val_ = a_.split("=")
    assert hasattr(cfg, k_), k_
    setattr(cfg, k_, int(val_))

WS_K = 0; WS_V = 65536; WS_Y = 131072; WS_CNT = WS_Y + 32768; WS_REC = 256 * 1024; WS_EP = 320 * 1024; WS_G = 384 * 1024; WS_O = 1 << 20; WS_STAMP = 4 << 20
WS_BYTES = 8 << 20
NREP = 8
KB = 1024
XB_ = 0; WB = 64 * KB; WKB = 128 * KB; QB = 128 * KB; SLD = 136 * KB; SLT = 152 * KB
RGB = 156 * KB; FMX = 156 * KB; SCR = 158 * KB
QN2 = SCR + 1024
FBF = SCR + 16
GOW = SCR + 20
FDN = SCR + 24
HV = SCR + 256; ZV = SCR + 32
YB = SCR + 512
FW = 3
FB = 96 * KB
F_G = 0; F_U = 8192 + 64; F_D = 16384 + 128; F_X = F_D + 8 * 1088
NWO = 12
CSCALE = 0.25 * 1.4426950408889634

sW = 3; sGR = 4; sHG = 5; sA = 6; sB = 7; sC = 8; sD = 9; sE = 10; sF = 11; sIT = 12; sFB = 13; sSEL = 14; sR16 = 15
pX, pWQ, pWK, pWV, pWO, pBX, pWR, pWG = 16, 18, 20, 22, 24, 26, 28, 30
pWU, pWD, pGW, pOUT, pDBG, pWS = 32, 34, 36, 38, 40, 42
rX, rWQ, rWO, rT1, rWS, rOUT, rDBG, rT2 = 44, 48, 52, 56, 60, 64, 68, 72
sF0 = 76; sFV = 77; sOWN = 78; sSPIN = 79; sOH = 80; sTH = 81; sTG = 82; sU = 83
sRHO = 14; sXL = 15; sXG = 12; sWX = 78
sT = 68; sPB = 69; sID = 70; sHK = 71; sPO = 26; sPI = 27; sKV = 28
sST = 84
vL = 1; vTK = 2; vG = 3; vL4 = 4; vL16 = 5
XA = 64; XBr = 128
KF = 64; V0 = 96; S0 = 128; S1 = 144; O0 = 160; O1 = 176; V1 = 192; CM = 224; PP = 240; QF = 248
vAd = 54; vAt = 59; vNq = 252

JOBS = {
    2: {FW: "scat0", 0: "sent", 4: "wo0"},
    3: {FW: "scat1"},
    4: {FW: "scat2", 6: "wo2"},
    5: {FW: "scat3"},
    6: {0: "rec", 1: "wo1", FW: "dstage", 4: "go"},
    8: {FW: "ffn", 5: "wo3", 6: "go"},
    10: {1: "go"},
    11: {FW: "count", 5: "go"},
    12: {0: "gpoll"},
    14: {"own": "y"},
}
NGO = 5
a = Asm()
e = a.e
STAMPS = []
uid = [0]
def L(p):
    uid[0] += 1
    return f"L_{p}_{uid[0]}"
HOLD = {1: "end", 2: "B6", 3: "loopend", 4: "B1a", 5: "entry"}
def stamp(name, sets=(1,)):
    if cfg.hold and HOLD[cfg.hold] == name:
        Lh = L("hold")
        a.label(Lh)
        e("s_memrealtime s[100:101]")
        e("s_waitcnt lgkmcnt(0)")
        e("s_sub_u32 s100, s100, s98")
        e(f"s_cmp_lt_u32 s100, {cfg.holdus * 100}")
        e(f"s_cbranch_scc1 {Lh}")
    if not cfg.stamps: return
    if cfg.probe and name != "entry": return
    if cfg.stamps == 3 and name in ("B1a", "polled", "B1b", "qdone", "prepoll", "B6", "kviss"): pass
    elif name not in ("entry", "K0", "loopend", "end") and cfg.stamps not in sets: return
    i = len(STAMPS)
    assert i < 16
    a.c(f"stamp {i}: {name}")
    e("s_memtime s[100:101]" if cfg.clk else "s_memrealtime s[100:101]")
    e("s_waitcnt lgkmcnt(0)")
    e(f"s_mov_b32 s{sST+i}, s100")
    STAMPS.append(name)

def xstamp(i, st_=3):
    if cfg.stamps != st_: return
    a.c(f"stamp {i}: x{i}")
    e("s_memrealtime s[100:101]")
    e("s_waitcnt lgkmcnt(0)")
    e(f"s_mov_b32 s{sST+i}, s100")
def srd(r, p, nbytes):
    e(f"s_mov_b32 s{r}, s{p}")
    e(f"s_mov_b32 s{r+1}, s{p+1}")
    e(f"s_mov_b32 s{r+2}, {nbytes}")
    e(f"s_mov_b32 s{r+3}, 0x20000")
def srd_sel(r, p1, p0, nbytes):
    e(f"s_cselect_b32 s{r}, s{p1}, s{p0}")
    e(f"s_cselect_b32 s{r+1}, s{p1+1}, s{p0+1}")
    e(f"s_mov_b32 s{r+2}, {nbytes}")
    e(f"s_mov_b32 s{r+3}, 0x20000")
def dma(voff, r, soff, off=0):
    o = f" offset:{off}" if off else ""
    e(f"buffer_load_dwordx4 v{voff}, {s(r,4)}, {soff} offen{o} lds")
def mf16(d, A, B, C):
    e(f"v_mfma_f32_16x16x32_bf16 {v(d,4)}, {v(A,4)}, {v(B,4)}, {C}")
def mf32(d, A, B, C):
    e(f"v_mfma_f32_32x32x16_bf16 {v(d,16)}, {v(A,4)}, {v(B,4)}, {C}")
def sum_over_g(x, t):
    e(f"v_mov_b32 v{t}, v{x}")
    e(f"v_permlane32_swap_b32 v{x}, v{t}")
    e(f"v_add_f32 v{x}, v{x}, v{t}")
    e(f"v_mov_b32 v{t}, v{x}")
    e(f"v_permlane16_swap_b32 v{x}, v{t}")
    e(f"v_add_f32 v{x}, v{x}, v{t}")
def round_bf16(x):
    e(f"v_cvt_pk_bf16_f32 v{x}, v{x}, v{x}")
    e(f"v_and_b32 v{x}, 0xffff0000, v{x}")
def sigmoid(x):
    e(f"v_mul_f32 v{x}, 0x{f2u(-1.4426950408889634):08x}, v{x}")
    e(f"v_exp_f32 v{x}, v{x}")
    e(f"v_add_f32 v{x}, 1.0, v{x}")
    e(f"v_rcp_f32 v{x}, v{x}")
def vmw(n): e(f"s_waitcnt vmcnt({n})")

def wq_steps(lo, hi):
    for S in range(lo, hi):
        e(f"s_add_u32 m0, s{sE}, {S*4096}")
        e(f"s_xor_b32 s{sA}, s{sWX}, {S*32768}")
        dma(10, rWQ, f"s{sA}")

def row_max(x):
    for n in (8, 4, 2, 1):
        e(f"v_max_u32_dpp v{x}, v{x}, v{x} row_ror:{n} row_mask:0xf bank_mask:0xf")

def zero_slots(t0):
    e(f"v_lshl_or_b32 v{t0+2}, s{sW}, 6, v{vL}")
    for i in range(2): e(f"v_mov_b32 v{t0+i}, 0")
    e(f"v_lshlrev_b32 v{t0+2}, 3, v{t0+2}")
    e(f"v_add_u32 v{t0+2}, {SLT}, v{t0+2}")
    e(f"ds_write_b64 v{t0+2}, {v(t0,2)}")

a.raw(f"""; Fused gated-mix kernel (one launch): MQA attention (32 heads, d=16) + top-1 routed SwiGLU + sigmoid gate.
; 256 workgroups x 8 waves, one per CU.  Workgroup = 64 tokens x 4 heads (token group grp, head group hg).
;     comes out of one MFMA, p = exp2(S^T), O^T and the row sums accumulate in two MFMAs (a row of ones in V^T).
;     Partial O / row sums travel between waves through LDS (two rings of four waves).
;     sum is checked at run time and, if one is too small, the workgroup redoes its attention with the exact row maxima.
;  3. Normalised o tiles are exchanged inside the token group (sentinel-polled), waves 0..3 do the output projection,
;     the gate mix and the stores.  The routed token's FFN is spread over 224 workgroups as side jobs of step 2.
; Hand-off words in d_ws carry a tag derived from an epoch word that every launch advances.
; @launch grid=(256,1,1) block=(512,1,1) lds=163840
.amdgcn_target "amdgcn-amd-amdhsa--gfx950"
.text
.globl {NAME}_kernel
.p2align 12
.fill 832, 4, 0xbf800000
.p2align 8
.type {NAME}_kernel,@function
{NAME}_kernel:""")
e("s_cmp_ge_u32 s2, 256")
e("s_cbranch_scc1 L_end")
if cfg.hold: e("s_memrealtime s[98:99]")
xstamp(4, 5)
e("s_load_dwordx16 s[16:31], s[0:1], 0")
e("s_load_dwordx8 s[32:39], s[0:1], 64")
e("s_load_dwordx4 s[40:43], s[0:1], 96")
e(f"v_and_b32 v{vL}, 63, v0")
e("v_lshrrev_b32 v6, 6, v0")
e(f"v_and_b32 v{vTK}, 15, v0")
e(f"v_readfirstlane_b32 s{sW}, v6")
e(f"v_lshrrev_b32 v{vG}, 4, v{vL}")
e(f"v_lshlrev_b32 v{vL16}, 4, v{vL}")
e(f"v_lshlrev_b32 v{vL4}, 2, v{vL}")
if cfg.cpf:
    e("s_getpc_b64 s[64:65]")
    a.label("L_pc")
    e(f"s_lshr_b32 s{sA}, s2, 3")
    e(f"s_lshl_b32 s{sA}, s{sA}, 10")
    e(f"s_min_u32 s{sA}, s{sA}, L_code_end-L_pc-1024")
    e(f"v_add_u32 v9, s{sA}, v{vL16}")
    e(f"s_cmp_eq_u32 s{sW}, 7")
    e("s_cbranch_scc0 L_nocpf")
    a.c("pull one KiB of this kernel's code towards the L2 (workgroups of one XCD cover different pieces)")
    e("global_load_dwordx4 v[48:51], v9, s[64:65]")
    a.label("L_nocpf")
e(f"s_and_b32 s{sA}, s2, 7")
e(f"s_lshr_b32 s{sHG}, s2, 5")
e(f"s_bfe_u32 s{sB}, s2, 0x20003    ; b = (wg>>3)&3")
e(f"s_lshl_b32 s{sGR}, s{sA}, 2")
e(f"s_add_u32 s{sGR}, s{sGR}, s{sB}")
e(f"s_mov_b32 s{sRHO}, s{sB}    ; k-block permutation of this workgroup")
e(f"s_and_b32 s{sOH}, s{sHG}, 1")
e(f"s_lshr_b32 s{sTH}, s{sW}, 2")
e(f"s_xor_b32 s{sTH}, s{sTH}, s{sOH}")
a.c("this workgroup projects K (hg<4) or V of the 16-token block blk = 2*oh + beta, beta = (hg>>1)&1")
a.c("x DMA: wave w<4 loads block blk^w; LDS position p of row t holds 16-byte chunk p ^ (t&15) ^ (rho<<4)")
e(f"s_bfe_u32 s{sPB}, s{sHG}, 0x10001    ; beta")
e(f"s_lshl_b32 s{sXL}, s{sOH}, 1")
e(f"s_add_u32 s{sXL}, s{sXL}, s{sPB}")
e(f"s_xor_b32 s{sXL}, s{sXL}, s{sW}")
e(f"s_lshl_b32 s{sXL}, s{sXL}, 14")
e(f"s_lshl_b32 s{sXG}, s{sGR}, 16")
e(f"s_lshl_b32 s{sB}, s{sRHO}, 8")
e(f"v_xor_b32 v11, s{sB}, v{vL16}")
a.c("wk/wv lane offset")
e(f"v_and_b32 v6, 16, v{vL}")
e("v_lshlrev_b32 v6, 3, v6")
e(f"v_xor_b32 v21, v6, v{vL16}")
for r_, n_ in ((rX, 2097152), (rWQ, 524288), (rT2, 16384), (rT1, 1024)):
    e(f"s_mov_b32 s{r_+2}, {n_}")
    e(f"s_mov_b32 s{r_+3}, 0x20000")
a.c("phase-1 operands (waves 0..3): rows 4w..4w+3 of block blk; KiB 4w..4w+3 of wk/wv")
e(f"s_lshl_b32 s{sA}, s{sW}, 14")
e(f"s_xor_b32 s{sA}, s{sA}, s{sXL}    ; blk*16K")
e(f"s_lshl_b32 s{sB}, s{sW}, 12")
e(f"s_add_u32 s{sU}, s{sA}, s{sB}")
e(f"s_add_u32 s{sF}, s{sU}, s{sXG}")
e(f"s_lshl_b32 s{sC}, s{sW}, 6")
e(f"v_xor_b32 v12, s{sC}, v11")
for i in range(1, 4): e(f"v_xor_b32 v{12+i}, {16*i}, v12")
e(f"s_lshl_b32 s{sC}, s{sRHO}, 12")
e(f"s_xor_b32 s{sC}, s{sC}, s{sB}")
e(f"s_add_u32 s{sB}, s{sB}, {WKB}")
e(f"v_mov_b32 v53, {SCR+128}")
e("v_mov_b32 v19, 0")
e("ds_write_b32 v53, v19 offset:4")
e(f"s_mov_b32 m0, s{sU}")
e("s_waitcnt lgkmcnt(0)")
stamp("entry")
e(f"s_mov_b32 s{rX}, s{pX}")
e(f"s_mov_b32 s{rX+1}, s{pX+1}")
e(f"s_mov_b32 s{rWQ}, s{pWQ}")
e(f"s_mov_b32 s{rWQ+1}, s{pWQ+1}")
e(f"s_cmp_ge_u32 s{sHG}, 4")
e(f"s_cselect_b32 s{rT2}, s{pWV}, s{pWK}")
e(f"s_cselect_b32 s{rT2+1}, s{pWV+1}, s{pWK+1}")
e(f"s_cmp_ge_u32 s{sW}, 4")
e("s_cbranch_scc1 L_p1hi")
for i in range(4): dma(12 + i, rX, f"s{sF}", 1024 * i)
e(f"s_mov_b32 m0, s{sB}")
e(f"s_load_dword s{sT}, s[{pWS}:{pWS+1}], {WS_EP}    ; epoch word left in the workspace: only used to tag this launch's hand-offs")
for i in range(4): dma(21, rT2, f"s{sC}", 1024 * i)
e(f"s_cmp_ge_u32 s{sW}, 2")
e("s_cbranch_scc1 L_p1end")
e(f"s_lshl_b32 s{sA}, s{sW}, 10")
e(f"s_add_u32 m0, s{sA}, {RGB}")
e(f"s_cmp_eq_u32 s{sW}, 1")
e(f"s_cselect_b32 s{rT1}, s{pGW}, s{pWR}")
e(f"s_cselect_b32 s{rT1+1}, s{pGW+1}, s{pWR+1}")
dma(11, rT1, "0")
a.label("L_p1end")
e("s_barrier")
e("s_branch L_setup")
a.label("L_p1hi")
e("s_barrier")
wq_steps(0, cfg.whi)
def x_dma(lo=0, hi=16):
    for i in range(lo, hi):
        if i % 4 == 0 or i == lo:
            e(f"s_add_u32 m0, s{sXL}, {XB_ + (i>>2)*4096}")
            e(f"s_add_u32 s{sF}, s{sXG}, m0")
        e(f"v_xor_b32 v7, {i<<4}, v11")
        dma(7, rX, f"s{sF}", (i & 3) * 1024)
a.c("---- everything that does not depend on loaded data, done while the first loads fly")
a.label("L_setup")
a.c("wq lane offset: (l>>3)*1024 + (((l&7) ^ (f<<1))<<4) + hg*128 + u*8192 , f = ((l>>4)&1) | ((u&1)<<1)")
e(f"s_and_b32 s{sD}, s{sW}, 3    ; u")
e(f"s_and_b32 s{sA}, s{sW}, 1")
e(f"s_lshl_b32 s{sC}, s{sD}, 13")
e(f"s_lshl_b32 s{sB}, s{sA}, 2")
e(f"v_and_b32 v6, 1, v{vG}")
e("v_lshlrev_b32 v6, 1, v6")
e(f"v_or_b32 v6, s{sB}, v6")
e(f"v_and_b32 v7, 7, v{vL}")
e("v_xor_b32 v6, v6, v7")
e("v_lshlrev_b32 v6, 4, v6")
e(f"v_lshrrev_b32 v7, 3, v{vL}")
e("v_lshl_add_u32 v6, v7, 10, v6")
e(f"s_lshl_b32 s{sB}, s{sHG}, 7")
e(f"s_add_u32 s{sB}, s{sB}, s{sC}")
e(f"v_add_u32 v10, s{sB}, v6")
e(f"s_lshl_b32 s{sE}, s{sD}, 10")
e(f"s_add_u32 s{sE}, s{sE}, {WB}")
e(f"s_lshl_b32 s{sWX}, s{sRHO}, 17")
e(f"s_and_b32 s{sA}, s2, 7")
e(f"s_mov_b32 s{sB}, s{sRHO}")
a.c("FFN chunk: line group Lg = xcd + 8*b (<28 valid), f0 = 64*Lg + 8*hg")
e(f"s_lshl_b32 s{sC}, s{sB}, 3")
e(f"s_add_u32 s{sC}, s{sC}, s{sA}")
e(f"s_cmp_lt_u32 s{sC}, 28")
e(f"s_cselect_b32 s{sFV}, {0 if cfg.noffn else 1}, 0")
e(f"s_lshl_b32 s{sC}, s{sC}, 6")
e(f"s_lshl_b32 s{sB}, s{sHG}, 3")
e(f"s_add_u32 s{sF0}, s{sC}, s{sB}")
xstamp(5, 5)
e(f"s_lshl_b32 s{sTG}, s{sGR}, 1")
e(f"s_add_u32 s{sTG}, s{sTG}, s{sOH}")
e(f"s_lshl_b32 s{sID}, s{sGR}, 3")
e(f"s_add_u32 s{sID}, s{sID}, s{sHG}    ; hand-off record of this workgroup")
e(f"s_mov_b32 s{sFB}, 0")
srd(rWS, pWS, WS_BYTES)
a.c("scratch words zero")
e(f"v_lshlrev_b32 v8, 2, v{vTK}")
e(f"v_add_u32 v8, {SCR}, v8")
e("ds_write_b32 v8, v19")
e("ds_write_b32 v8, v19 offset:1024")
e("ds_write_b32 v8, v19 offset:1088")
zero_slots(22)
srd(rWO, pWO, 524288)
srd(rOUT, pOUT, 2097152)
def setup2():
    a.c("V^T operand rows 16..31: row 16 and row 20 are ones (row sums), the others zero")
    e(f"v_and_b32 v6, 11, v{vTK}")
    e("v_cmp_eq_u32 vcc, 0, v6")
    e("v_mov_b32 v7, 0x3f803f80")
    e(f"v_cndmask_b32 v{V1}, 0, v7, vcc")
    for i in range(1, 32): e(f"v_mov_b32 v{V1+i}, v{V1}")
    xstamp(6, 5)
    a.c("ring addresses: ring = w>>2, w' = w&3; step s works on q tile u(s) = ((s ^ ring) + 2w') & 7")
    e(f"s_and_b32 s{sA}, s{sW}, 3    ; w'")
    e(f"s_lshr_b32 s{sB}, s{sW}, 2    ; ring")
    e(f"v_lshlrev_b32 v6, 3, v{vL}")
    for k in range(5):
        if k < 4:
            e(f"s_add_u32 s{sC}, s{sA}, {k}")
            e(f"s_and_b32 s{sC}, s{sC}, 3")
            e(f"s_lshl_b32 s{sD}, s{sB}, 2")
        else:
            e(f"s_add_u32 s{sC}, s{sA}, 2")
            e(f"s_and_b32 s{sC}, s{sC}, 3")
            e(f"s_xor_b32 s{sD}, s{sB}, 1")
            e(f"s_lshl_b32 s{sD}, s{sD}, 2")
        e(f"s_add_u32 s{sC}, s{sC}, s{sD}")
        e(f"s_lshl_b32 s{sD}, s{sC}, 11")
        e(f"s_add_u32 s{sD}, s{sD}, {SLD}")
        e(f"v_add_u32 v{vAd+k}, s{sD}, v{vL16}")
        e(f"s_lshl_b32 s{sD}, s{sC}, 9")
        e(f"s_add_u32 s{sD}, s{sD}, {SLT}")
        e(f"v_add_u32 v{vAt+k}, s{sD}, v6")
    e(f"s_lshl_b32 s{sA}, s{sA}, 1")
    for k in range(4):
        e(f"s_xor_b32 s{sC}, s{sB}, {k}")
        e(f"s_add_u32 s{sC}, s{sC}, s{sA}")
        e(f"s_and_b32 s{sC}, s{sC}, 7")
        e(f"s_lshl_b32 s{sC}, s{sC}, 10")
        e(f"s_add_u32 s{sC}, s{sC}, {QB}")
        e(f"v_add_u32 v{vNq+k}, s{sC}, v{vL16}")
    e(f"s_xor_b32 s{sC}, s{sB}, 7")
    e(f"s_add_u32 s{sC}, s{sC}, s{sA}")
    e(f"s_and_b32 s{sU}, s{sC}, 7")
    a.c("o slot of (token half u>>2, head 4*hg + (u&3)):  WS_O + (2*grp + (u>>2))*32K + head*1K ; publish counter increment")
    e(f"s_lshr_b32 s{sB}, s{sU}, 2")
    e(f"s_lshl_b32 s{sPO}, s{sB}, 15")
    e(f"s_and_b32 s{sC}, s{sU}, 3")
    e(f"s_lshl_b32 s{sC}, s{sC}, 10")
    e(f"s_add_u32 s{sPO}, s{sPO}, s{sC}")
    e(f"s_add_u32 s{sPO}, s{sPO}, s{sXG}")
    e(f"s_lshl_b32 s{sC}, s{sHG}, 12")
    e(f"s_add_u32 s{sPO}, s{sPO}, s{sC}")
    e(f"s_add_u32 s{sPO}, s{sPO}, {WS_O}")
    e(f"s_lshl_b32 s{sPI}, 1, s{sU}")
    e(f"s_lshr_b32 s{sC}, s2, 3")
    if cfg.kvrot == 0: e(f"s_mov_b32 s{sC}, 0")
    e(f"s_and_b32 s{sB}, s{sC}, 7")
    e(f"s_lshl_b32 s{sB}, s{sB}, 10")
    e(f"s_lshr_b32 s{sC}, s{sC}, 1")
    e(f"s_and_b32 s{sC}, s{sC}, 4")
    e(f"s_xor_b32 s{sC}, s{sC}, s{sW}")
    e(f"s_lshl_b32 s{sKV}, s{sC}, 13")
    e(f"s_add_u32 s{sKV}, s{sKV}, s{sB}    ; key slice (8 tiles) of this wave; tiles in a workgroup-dependent order")
    a.c("hook points at which this wave has a side job")
    e(f"s_mov_b32 s{sHK}, 0")
    for w_ in range(8):
        m_ = sum(1 << p for p, d in JOBS.items() if w_ in d)
        if m_:
            e(f"s_cmp_eq_u32 s{sW}, {w_}")
            e(f"s_cselect_b32 s{sHK}, {m_}, s{sHK}")
    xstamp(7, 5)
def setup1():
    a.c("x fragment read bases v12..v15 (q = S&3): own half, 16-token block w&1")
    e(f"s_lshl_b32 s{sB}, s{sPB}, 14")
    e(f"s_lshl_b32 s{sC}, s{sTH}, 15")
    e(f"s_add_u32 s{sB}, s{sB}, s{sC}")
    for q in range(4):
        e(f"v_add_u32 v6, {4*q}, v{vG}")
        e(f"v_xor_b32 v6, v6, v{vTK}")
        e("v_lshlrev_b32 v6, 4, v6")
        e(f"v_lshl_add_u32 v6, v{vTK}, 10, v6")
        e(f"v_add_u32 v{12+q}, s{sB}, v6")
    e(f"v_lshrrev_b32 v8, 2, v{vTK}    ; r")
    e(f"v_and_b32 v9, 3, v{vTK}    ; c")
    a.c("wk/wv fragment bases v16,v17")
    e(f"v_and_b32 v6, 1, v{vG}")
    e("v_lshlrev_b32 v6, 7, v6")
    e(f"v_lshl_add_u32 v6, v{vG}, 8, v6")
    e("v_lshl_add_u32 v6, v8, 5, v6")
    e("v_lshl_add_u32 v6, v9, 3, v6")
    e(f"v_add_u32 v16, {WKB}, v6")
    e("v_xor_b32 v17, 128, v16")
    a.c("w_r / gate_w fragment base v18")
    e(f"v_and_b32 v6, 1, v{vTK}")
    e("v_lshlrev_b32 v6, 10, v6")
    e(f"v_lshl_add_u32 v6, v{vG}, 4, v6")
    e(f"v_add_u32 v18, {RGB}, v6")
    a.c("wq fragment base v26: WB + (8g+r)*128 + (((w&3)^f)*32) + 8c , f = ((r>>1)&1) | ((g&1)<<1)")
    e(f"v_and_b32 v6, 1, v{vG}")
    e("v_lshrrev_b32 v7, 1, v8")
    e("v_lshl_or_b32 v6, v6, 1, v7")
    e(f"s_and_b32 s{sA}, s{sW}, 3")
    e(f"v_xor_b32 v6, s{sA}, v6")
    e("v_lshlrev_b32 v6, 5, v6")
    e("v_lshl_add_u32 v6, v9, 3, v6")
    e(f"v_lshl_add_u32 v7, v{vG}, 3, v8")
    e("v_lshl_add_u32 v6, v7, 7, v6")
    e(f"v_add_u32 v26, {WB}, v6")
    a.c("Q fragment write addresses v28,v29 and |q|^2 word addresses v30,v31 (16-token blocks w&1 and the other)")
    e(f"s_lshl_b32 s{sA}, s{sPB}, 4")
    e(f"v_add_u32 v30, s{sA}, v{vTK}")
    e("v_mov_b32 v27, v30")
    e(f"v_lshrrev_b32 v6, 1, v{vG}")
    e("v_lshlrev_b32 v6, 9, v6")
    e(f"v_and_b32 v7, 1, v{vG}")
    e("v_lshl_add_u32 v6, v7, 3, v6")
    e(f"s_and_b32 s{sA}, s{sW}, 3")
    e(f"s_lshl_b32 s{sB}, s{sTH}, 2")
    e(f"s_add_u32 s{sA}, s{sA}, s{sB}")
    e(f"s_lshl_b32 s{sA}, s{sA}, 10")
    e(f"s_add_u32 s{sA}, s{sA}, {QB}")
    e(f"v_add_u32 v6, s{sA}, v6")
    e("v_lshl_add_u32 v28, v30, 4, v6")
    e("v_xor_b32 v29, 256, v28")
    e("v_lshlrev_b32 v30, 2, v30")
    e(f"v_add_u32 v30, {QN2}, v30")
    e("v_xor_b32 v31, 64, v30")
    a.c("K / V load offsets v(PP), v(PP+1); |q|^2 read address v(PP+2); flag word address v(PP+3)")
    e(f"v_and_b32 v6, 31, v{vL}")
    e(f"v_lshrrev_b32 v7, 5, v{vL}")
    e(f"v_lshlrev_b32 v{PP}, 5, v6")
    e(f"v_lshl_add_u32 v{PP}, v7, 4, v{PP}    ; K: m*32 + h*16")
    e(f"v_lshlrev_b32 v{PP+2}, 2, v6")
    e(f"v_add_u32 v{PP+2}, {QN2}, v{PP+2}")
    e(f"v_lshlrev_b32 v{PP+3}, 7, v6")
    e("v_mov_b32 v52, 1")
def x_read(dst, S): e(f"ds_read_b128 {v(dst,4)}, v{12+(S&3)} offset:{(S>>2)*256}")
def xb_flip():
    for q in range(4): e(f"v_xor_b32 v{12+q}, 0x4000, v{12+q}")
ACC0 = QF; ACC1 = PP + 4
def rg_chain(X, acc):
    for S in range(5): e(f"ds_read_b128 {v(32+4*(S%5),4)}, v18 offset:{S*64}")
    for S in range(16):
        left = min(S + 5, 16) - (S + 1)
        e(f"s_waitcnt lgkmcnt({left})")
        mf16(acc, 32 + 4 * (S % 5), X + 4 * S, "0" if S == 0 else v(acc, 4))
        if S + 5 < 16: e(f"ds_read_b128 {v(32+4*(S%5),4)}, v18 offset:{(S+5)*64}")
def g_store(acc, flip):
    e("v_lshlrev_b32 v6, 2, v27")
    if flip: e("v_xor_b32 v6, 64, v6")
    e(f"v_add_u32 v6, {GB_}, v6")
    round_bf16(acc + 1)
    sigmoid(acc + 1)
    round_bf16(acc + 1)
    e(f"ds_write_b32 v6, v{acc+1}")
def side_addr(ffn):
    a.c("wo lane offset v10: g*1024 + ((tk ^ (g<<2))<<4) + (hg>>1)*256")
    e(f"v_lshlrev_b32 v10, 2, v{vG}")
    e(f"v_xor_b32 v10, v10, v{vTK}")
    e("v_lshlrev_b32 v10, 4, v10")
    e(f"v_lshl_add_u32 v10, v{vG}, 10, v10")
    e(f"s_lshr_b32 s{sA}, s{sHG}, 1")
    e(f"s_lshl_b32 s{sA}, s{sA}, 8")
    e(f"v_add_u32 v10, s{sA}, v10")
    if not ffn: return
    e(f"s_movk_i32 s{sA}, 3584")
    e(f"v_mul_lo_u32 v11, v{vL}, s{sA}")
    e(f"s_lshl_b32 s{sA}, s{sF0}, 1")
    e(f"v_add_u32 v11, s{sA}, v11")
    e("v_mul_u32_u24 v16, 1088, v8")
    e(f"v_lshl_add_u32 v16, v{vG}, 5, v16")
    e("v_lshl_add_u32 v16, v9, 3, v16")
    e(f"v_add_u32 v16, {FB}, v16")
    e(f"v_cmp_eq_u32 vcc, v8, v{vG}")
    e(f"v_mov_b32 v6, {ZV}")
    e(f"v_mov_b32 v7, {HV}")
    e("v_cndmask_b32 v17, v6, v7, vcc")
    e(f"v_lshl_add_u32 v0, v{vG}, 2, v{vTK}")
    e("v_lshl_add_u32 v0, v0, 1, v7")
    e("v_lshrrev_b32 v6, 1, v9")
    e(f"v_mul_u32_u24 v6, {F_U-F_G}, v6")
    e("v_and_b32 v7, 1, v9")
    e("v_lshl_add_u32 v6, v7, 3, v6")
    e(f"v_lshl_add_u32 v7, v{vG}, 3, v8")
    e("v_lshl_add_u32 v8, v7, 4, v6")
    e(f"v_add_u32 v8, {FB}, v8")
    e(f"v_lshlrev_b32 v9, 4, v{vG}")
    e(f"v_add_u32 v9, {FB}, v9")
def p1_arrive():
    e("s_mov_b64 exec, 1")
    e("ds_add_u32 v53, v52 offset:4")
    e("s_mov_b64 exec, -1")
def p1_wait():
    Lw = L("p1w")
    a.label(Lw)
    e("ds_read_b32 v7, v53 offset:4")
    e("s_waitcnt lgkmcnt(0)")
    e("v_cmp_ne_u32 vcc, 4, v7")
    e("s_nop 1")
    e(f"s_cbranch_vccnz {Lw}")
WR = (32, 36, 40, 44, 48)
PR = XBr; P0 = CM + 8
def poll_load(): e(f"buffer_load_dwordx4 {v(PR,4)}, v{PP+3}, {s(rWS,4)}, s{sD} offen sc1")
def q_loop(both):
    n = 4 if both else 3
    D = 3 if both else 4
    def qrd(S):
        w = WR[S % 5]
        if both: e(f"ds_read_b128 {v(XA+4*S,4)}, v{20+(S&3)} offset:{(S>>2)*256}")
        x_read(XBr + 4 * S, S)
        e(f"ds_read_b64_tr_b16 {v(w,2)}, v26 offset:{S*4096}")
        e(f"ds_read_b64_tr_b16 {v(w+2,2)}, v26 offset:{S*4096+512}")
    e("ds_read_b32 v52, v53")
    for S in range(D): qrd(S)
    e(f"s_lshr_b32 s{sD}, s{sKV}, 13")
    e(f"s_lshl_b32 s{sD}, s{sD}, 12")
    e(f"s_add_u32 s{sD}, s{sD}, {WS_REC}")
    for S in range(16):
        if S + D == cfg.chunk:
            if both: vmw(0)
            e("s_barrier")
        if S + D < 16: qrd(S + D)
        left = min(S + D + 1, 16) - (S + 1)
        e(f"s_waitcnt lgkmcnt({n*left})")
        w = WR[S % 5]
        mf16(ACC0, w, XA + 4 * S, "0" if S == 0 else v(ACC0, 4))
        mf16(ACC1, w, XBr + 4 * S, "0" if S == 0 else v(ACC1, 4))
        if S == cfg.pollat: poll_load()
        if S == cfg.pollat0: e(f"buffer_load_dwordx4 {v(P0,4)}, v{PP+3}, {s(rWS,4)}, s{sD} offen sc1")
if cfg.split == 0:
    setup2(); setup1()
elif cfg.split == 1:
    setup1()
    e(f"s_cmp_ge_u32 s{sW}, 4")
    e("s_cbranch_scc0 L_s2")
    wq_steps(0, cfg.wfirst)
    a.label("L_s2")
    setup2()
xstamp(8, 5)
e(f"s_cmp_ge_u32 s{sW}, 4")
e("s_cbranch_scc1 L_2hi")
e(f"s_cmp_eq_u32 s{sW}, 0")
e("s_cbranch_scc0 L_2lo")
a.c("=========== wave 0: K or V projection of one 16-token block, router scores, hand-off record ===========")
e(f"s_lshl_b32 s{sB}, s{sID}, 8")
e(f"s_add_u32 s{sB}, s{sB}, {WS_Y}")
e(f"buffer_store_dword v19, v{vL4}, {s(rWS,4)}, s{sB} offen sc1")
a.c("K image: [key][16 dims]; lane (token, g) ends with dims 4g..4g+3")
a.c("V image of a 32-key tile: [h][i][d][8 keys]; lane (d, g) ends with tokens 4g..4g+3 of block i")
e("v_lshlrev_b32 v6, 5, v27")
e(f"v_lshl_add_u32 v6, v{vG}, 3, v6")
e(f"v_and_b32 v20, 1, v{vG}")
e("v_lshlrev_b32 v20, 9, v20")
e(f"v_lshl_add_u32 v20, v{vTK}, 4, v20")
e(f"v_lshrrev_b32 v7, 1, v{vG}")
e("v_lshl_add_u32 v20, v7, 3, v20")
e(f"s_lshl_b32 s{sB}, s{sPB}, 8")
e(f"s_add_u32 s{sB}, s{sB}, {WS_V}")
e(f"v_add_u32 v20, s{sB}, v20")
e(f"s_lshl_b32 s{sA}, s{sTG}, 10")
e(f"s_cmp_ge_u32 s{sHG}, 4")
e("s_cselect_b64 s[22:23], -1, 0")
e("v_cndmask_b32 v6, v6, v20, s[22:23]")
def kv_reads(S):
    x_read(XA + 4 * S, S)
    w = 32 + 4 * (S % 5)
    e(f"ds_read_b64_tr_b16 {v(w,2)}, v16 offset:{S*1024}")
    e(f"ds_read_b64_tr_b16 {v(w+2,2)}, v17 offset:{S*1024}")
if cfg.w0prio: e("s_setprio 3")
vmw(1)
xstamp(9, 5)
p1_arrive()
p1_wait()
xstamp(12); xstamp(10, 5)
for S in range(4): kv_reads(S)
for S in range(16):
    if S + 4 < 16: kv_reads(S + 4)
    left = min(S + 5, 16) - (S + 1)
    e(f"s_waitcnt lgkmcnt({3*left})")
    w = 32 + 4 * (S % 5)
    mf16(ACC0, w, XA + 4 * S, "0" if S == 0 else v(ACC0, 4))
    mf16(ACC1, XA + 4 * S, w, "0" if S == 0 else v(ACC1, 4))
xb_flip()
for i in range(4): e(f"v_cndmask_b32 v{ACC1+i}, v{ACC0+i}, v{ACC1+i}, s[22:23]")
e(f"v_cvt_pk_bf16_f32 v20, v{ACC1}, v{ACC1+1}")
e(f"v_cvt_pk_bf16_f32 v21, v{ACC1+2}, v{ACC1+3}")
e(f"buffer_store_dwordx2 v[20:21], v6, {s(rWS,4)}, s{sA} offen sc1")
xstamp(13)
rg_chain(XA, ACC1)
e(f"v_mul_f32 v23, v{ACC0}, v{ACC0}")
for i in range(1, 4): e(f"v_fmac_f32 v23, v{ACC0+i}, v{ACC0+i}")
sum_over_g(23, 22)
row_max(23)
e("v_cndmask_b32 v23, v23, v19, s[22:23]")
e(f"s_lshl_b32 s{sA}, s{sTG}, 5")
e(f"v_add_u32 v6, s{sA}, v27")
e(f"s_mul_i32 s{sT}, s{sT}, 0x9e3779b9")
e(f"s_add_u32 s{sT}, s{sT}, 0x7f4a7c15")
e(f"v_mov_b32 v22, s{sT}")
e(f"v_mov_b32 v24, s{sT}")
e("ds_write_b32 v53, v22")
e(f"s_lshl_b32 s{sB}, s{sID}, 7")
e(f"s_add_u32 s{sB}, s{sB}, {WS_REC}")
round_bf16(ACC1)
e(f"v_ashrrev_i32 v25, 31, v{ACC1}")
e("v_or_b32 v25, 0x80000000, v25")
e(f"v_xor_b32 v25, v25, v{ACC1}")
e("v_and_b32 v25, 0xffff0000, v25")
e("v_or_b32 v25, v25, v6")
row_max(25)
e("s_mov_b64 exec, 1")
vmw(0)
e(f"buffer_store_dwordx4 v[22:25], v19, {s(rWS,4)}, s{sB} offen sc1")
e("s_mov_b64 exec, -1")
xstamp(14)
round_bf16(ACC1 + 1)
sigmoid(ACC1 + 1)
round_bf16(ACC1 + 1)
e("v_lshlrev_b32 v6, 2, v6")
e(f"s_mov_b32 s{sB}, {WS_G}")
e("s_mov_b64 exec, 0xffff")
e(f"buffer_store_dword v{ACC1+1}, v6, {s(rWS,4)}, s{sB} offen sc1")
e("s_mov_b64 exec, -1")
side_addr(False)
if cfg.w0prio: e("s_setprio 0")
e("s_waitcnt lgkmcnt(0)")
e("s_branch L_B1lo")
a.label("L_2hi")
xstamp(12)
wq_steps(cfg.wfirst if cfg.split else 0, 16)
for q in range(4): e(f"v_mov_b32 v{20+q}, v{12+q}")
xb_flip()
side_addr(False)
xstamp(13); xstamp(9, 5)
e(f"s_waitcnt vmcnt({16-cfg.chunk}) lgkmcnt(0)")
xstamp(14); xstamp(10, 5)
e("s_branch L_qhi")
a.label("L_2lo")
x_dma(0, cfg.narr)
vmw(cfg.narr)
xstamp(12); xstamp(9, 5)
p1_arrive()
x_dma(cfg.narr, 16)
p1_wait()
for S in range(16): x_read(XA + 4 * S, S)
xb_flip()
side_addr(True)
xstamp(13)
vmw(0)
xstamp(14); xstamp(10, 5)
a.label("L_B1lo")
e("s_barrier")
stamp("B1a")
q_loop(False)
e("s_branch L_qend")
a.label("L_qhi")
if cfg.stamps in (1, 3): STAMPS.pop()
e("s_barrier")
stamp("B1a")
q_loop(True)
a.label("L_qend")
e(f"v_mov_b32 v26, v{PP}")
e(f"v_add_u32 v27, {WS_V}, v{vL16}")
e(f"s_mov_b32 s{sSPIN}, 0")
e(f"v_readfirstlane_b32 s{sT}, v52")
stamp("qdone")
a.c("the 32 hand-off records behind this wave's 256 keys")
if cfg.pollat0 >= 0:
    a.c("the earlier of the two snapshots is enough when it is complete")
    vmw(1)
    e(f"v_xor_b32 v6, s{sT}, v{P0}")
    e(f"v_xor_b32 v7, s{sT}, v{P0+2}")
    e("v_or_b32 v6, v6, v7")
    e("v_cmp_ne_u32 vcc, 0, v6")
    e("s_nop 1")
    e("s_cbranch_vccz L_pollok")
a.label("L_poll")
e("s_waitcnt vmcnt(0)")
e(f"v_xor_b32 v6, s{sT}, v{PR}")
e(f"v_xor_b32 v7, s{sT}, v{PR+2}")
e("v_or_b32 v6, v6, v7")
e("v_cmp_ne_u32 vcc, 0, v6")
e(f"s_add_u32 s{sSPIN}, s{sSPIN}, 1")
e(f"s_cmp_gt_u32 s{sSPIN}, {cfg.spin}")
e("s_cbranch_scc1 L_pollout")
e("s_cbranch_vccz L_pollout")
if cfg.psleep: e(f"s_sleep {cfg.psleep}")
poll_load()
e("s_branch L_poll")
a.label("L_pollout")
if cfg.pollat0 >= 0:
    e(f"v_mov_b32 v{P0+1}, v{PR+1}")
    e(f"v_mov_b32 v{P0+3}, v{PR+3}")
    a.label("L_pollok")
    PR = P0
stamp("polled")
def kv_load(j):
    e(f"s_xor_b32 s{sB}, s{sKV}, {j*1024}")
    e(f"buffer_load_dwordx4 {v(KF+4*j,4)}, v26, {s(rWS,4)}, s{sB} offen sc1")
    e(f"buffer_load_dwordx4 {v(V0+4*j,4)}, v27, {s(rWS,4)}, s{sB} offen sc1")
e(f"s_cmp_ge_u32 s{sW}, 4")
e("s_cbranch_scc1 L_kvl1")
for j in range(cfg.kv0): kv_load(j)
a.label("L_kvl1")
e(f"s_mov_b32 s{sC}, 0x{f2u(CSCALE):08x}")
for hf, acc in ((0, ACC0), (1, ACC1)):
    for i in range(4): e(f"v_mul_f32 v{acc+i}, s{sC}, v{acc+i}")
    e(f"v_cvt_pk_bf16_f32 v{20+2*hf}, v{acc}, v{acc+1}")
    e(f"v_cvt_pk_bf16_f32 v{21+2*hf}, v{acc+2}, v{acc+3}")
    e(f"ds_write_b64 v{28+hf}, {v(20+2*hf,2)}")
    e(f"v_mul_f32 v{24+hf}, v{acc}, v{acc}")
    for i in range(1, 4): e(f"v_fmac_f32 v{24+hf}, v{acc+i}, v{acc+i}")
e("v_mov_b32 v6, v24")
e("v_mov_b32 v7, v25")
e(f"v_max_u32_dpp v{PR+1}, v{PR+1}, v{PR+1} row_ror:8 row_mask:0xf bank_mask:0xf")
e(f"v_max_u32_dpp v{PR+3}, v{PR+3}, v{PR+3} row_ror:8 row_mask:0xf bank_mask:0xf")
e("v_permlane32_swap_b32 v24, v6")
e("v_permlane32_swap_b32 v25, v7")
e(f"v_max_u32_dpp v{PR+1}, v{PR+1}, v{PR+1} row_ror:4 row_mask:0xf bank_mask:0xf")
e(f"v_max_u32_dpp v{PR+3}, v{PR+3}, v{PR+3} row_ror:4 row_mask:0xf bank_mask:0xf")
e("v_add_f32 v24, v24, v6")
e("v_add_f32 v25, v25, v7")
e(f"v_max_u32_dpp v{PR+1}, v{PR+1}, v{PR+1} row_ror:2 row_mask:0xf bank_mask:0xf")
e(f"v_max_u32_dpp v{PR+3}, v{PR+3}, v{PR+3} row_ror:2 row_mask:0xf bank_mask:0xf")
e("v_mov_b32 v6, v24")
e("v_mov_b32 v7, v25")
e(f"v_max_u32_dpp v{PR+1}, v{PR+1}, v{PR+1} row_ror:1 row_mask:0xf bank_mask:0xf")
e(f"v_max_u32_dpp v{PR+3}, v{PR+3}, v{PR+3} row_ror:1 row_mask:0xf bank_mask:0xf")
e("v_permlane16_swap_b32 v24, v6")
e("v_permlane16_swap_b32 v25, v7")
e(f"v_mov_b32 v18, {SCR}")
e("v_add_f32 v24, v24, v6")
e("v_add_f32 v25, v25, v7")
e("s_mov_b64 exec, 0xffff")
e("ds_max_u32 v30, v24")
e("ds_max_u32 v31, v25")
e("s_mov_b64 exec, 0x10001")
e(f"ds_max_u32 v18, v{PR+1} offset:8")
e(f"ds_max_u32 v18, v{PR+3} offset:12")
e("s_mov_b64 exec, -1")
e(f"s_cmp_ge_u32 s{sW}, 4")
e("s_cbranch_scc1 L_kvl1b")
for j in range(cfg.kv0, cfg.kv1): kv_load(j)
a.label("L_kvl1b")
e("s_waitcnt lgkmcnt(0)")
stamp("prepoll")
e("s_barrier")
stamp("B6")
e("ds_read_b64 v[6:7], v18 offset:8")
e(f"ds_read_b32 v19, v{PP+2}")
e(f"ds_read_b128 {v(QF,4)}, v{vNq}")
def young_loads():
    e(f"s_cmp_ge_u32 s{sW}, 4")
    e("s_cbranch_scc0 L_kvl2")
    for j in range(8): kv_load(j)
    a.label("L_kvl2")
if not cfg.ylate: young_loads()
e("s_waitcnt lgkmcnt(1)")
e("v_mul_f32 v19, v19, v6")
e("v_sqrt_f32 v19, v19")
e(f"v_readfirstlane_b32 s{sR16}, v7")
a.c("-(|q|max * |k|max): upper bound of every score in this column (Cauchy-Schwarz), with slack for the bf16 rounding of q and k")
e(f"v_mul_f32 v{CM}, 0x{f2u(-1.02 * (8.0 if cfg.force_fallback else 1.0)):08x}, v19")
for i in range(1, 16): e(f"v_mov_b32 v{CM+i}, v{CM}")
if cfg.ylate: young_loads()
if cfg.prio: e("s_setprio 3")
e(f"s_waitcnt vmcnt({2*cfg.kv1-1}) lgkmcnt(0)")
mf32(S0, KF, QF, v(CM, 16))
stamp("K0")
e(f"s_and_b32 s{sSEL}, s{sR16}, 0x7ff")
e(f"s_lshr_b32 s{sC}, s{sSEL}, 5")
e(f"s_cmp_eq_u32 s{sC}, s{sTG}")
e(f"s_cselect_b32 s{sOWN}, 1, 0")
e(f"s_and_b32 s{sR16}, s{sR16}, 0xffff0000")
e(f"s_cmp_lt_u32 s{sW}, 4")
e(f"s_cselect_b32 s{sC}, s{sOWN}, 0")
e(f"s_lshl_b32 s{sC}, s{sC}, 14")
e(f"s_or_b32 s{sHK}, s{sHK}, s{sC}")
e("s_nop 3")

a.c("===================== attention =====================")
a.label("L_attn")
if cfg.perm: e("s_mov_b32 s25, 0x07060302")
e(f"v_mov_b32 v52, {GOW}")
e(f"s_mov_b32 s{sIT}, 0")
STUBS = []
a.strict = True
for st in range(8):
    O = (O0, O1)[st & 1]; Op = (O1, O0)[st & 1]
    k = st & 3
    for j in range(8):
        t = st * 8 + j
        Sc = (S0, S1)[t & 1]; Sn = (S1, S0)[t & 1]
        jn = (j + 1) & 7
        def ex(p):
            e(f"v_exp_f32 v{Sc+2*p}, v{Sc+2*p}")
            e(f"v_exp_f32 v{Sc+2*p+1}, v{Sc+2*p+1}")
        def cv(p):
            if cfg.perm: e(f"v_perm_b32 v{PP+p}, v{Sc+2*p+1}, v{Sc+2*p}, s25")
            else: e(f"v_cvt_pk_bf16_f32 v{PP+p}, v{Sc+2*p}, v{Sc+2*p+1}")
        def init_reads():
            kk = k if st < 7 else 4
            e(f"ds_read_b64 {v(Op+8,2)}, v{vAt+kk}")
            e(f"ds_read_b128 {v(Op,4)}, v{vAd+kk}")
            e(f"ds_read_b128 {v(Op+4,4)}, v{vAd+kk} offset:1024")
            if st == 7: e("ds_read_b32 v53, v52")
        if j == 7 and st < 7:
            e("s_waitcnt lgkmcnt(0)")
            if st == 7: e(f"v_mul_u32_u24 v{Op+9}, v53, v{Op+9}")
            if st > 0: e(f"v_cmp_ne_u32 vcc, {st if st < 7 else 7*NGO}, v{Op+9}")
            if st < 7:
                e(f"s_cmp_eq_u32 s{sFB}, 0")
                e(f"s_cbranch_scc0 L_fbc_{st+1}")
            else:
                e("s_nop 1")
            a.label(f"L_fbr_{st+1}")
            if st > 0: e(f"s_cbranch_vccnz L_retry_{st}")
            a.label(f"L_ok_{st}")
            stamp(f"st{st}", (2,))
            if st > 0: STUBS.append((st, Op, k if st < 7 else 4))
        if cfg.prio and t in (cfg.pa, cfg.pb, cfg.pc): e(f"s_setprio {2 - (cfg.pa, cfg.pb, cfg.pc).index(t)}")
        def smf():
            if st == 0 and j < 7: vmw(15 - 2 * jn)
            if not (st == 7 and j == 7):
                mf32(Sn, KF + 4 * jn, QF, v(CM, 16))
        def pv1():
            if j == 0:
                if st > 0: mf32(Op, V1 + 4 * 7, PP + 4, v(Op, 16))
            else: mf32(O, V1 + 4 * (j - 1), PP + 4, v(O, 16))
        def side():
            if st == 0:
                a.c("first touch of V[j]: split the two 16-key blocks into two operands with the constant rows")
                if j == 7: vmw(0)
                for i in range(4): e(f"v_permlane16_swap_b32 v{V0+4*j+i}, v{V1+4*j+i}")
            if j == 6 and st < 7:
                kn = (st + 1) & 3
                if st + 1 >= 4: e(f"v_xor_b32 v{vNq+kn}, 4096, v{vNq+kn}")
                e(f"ds_read_b128 {v(QF,4)}, v{vNq+kn}")
            if j == (5 if st < 7 else 6) and st > 0: init_reads()
        if st == 0 and j == 0 and cfg.kv1 < 8:
            Lk = L("nokv")
            e(f"s_cmp_ge_u32 s{sW}, 4")
            e(f"s_cbranch_scc1 {Lk}")
            for jj in range(cfg.kv1, 8): kv_load(jj)
            a.label(Lk)
        ex(0); pv1(); ex(1); ex(2); cv(0); smf(); ex(3); cv(1); ex(4); cv(2); ex(5); cv(3); side(); ex(6)
        mf32(O, V0 + 4 * j, PP, "0" if (j == 0 and st < 2) else v(O, 16))
        cv(4); ex(7); cv(5); cv(6); cv(7)
        if t < 10: stamp(f"t{t}", (7,))
        if j == 0 and st > 0:
            kp = (st - 1) & 3
            e(f"v_mov_b32 v{Op+9}, {st}")
            e(f"ds_write_b128 v{vAd+kp}, {v(Op,4)}")
            e(f"ds_write_b128 v{vAd+kp}, {v(Op+4,4)} offset:1024")
            e(f"ds_write_b64 v{vAt+kp}, {v(Op+8,2)}")
        if j in (0, 4) and (2 * st + j // 4) in JOBS:
            p_ = 2 * st + j // 4
            e(f"s_bitcmp1_b32 s{sHK}, {p_}")
            e(f"s_cbranch_scc1 L_hook{p_}")
            a.label(f"L_hret{p_}")
a.strict = False
e(f"v_mov_b32 v50, {FBF}")
e(f"s_cmp_ge_u32 s{sW}, 4")
mf32(O1, V1 + 4 * 7, PP + 4, v(O1, 16))
if cfg.prio: e("s_setprio 3")
e("s_cbranch_scc1 L_tfin")
a.c("---- waves 0..3 own the output projection; wave (ch, kq) sums heads 3-2kq and 2kq (mod 4) for 64 columns and")
a.c("---- finishes the 32 columns of tile 2ch+kq; prepared while ring B catches up")
WF = 64; OF = 128; AC = V1; RES = 24; T = CM
sCT = 18; sOA = 19; sOB = 20; sMA = 21; sMB = 22; sMX = 23; sXO = 24
e(f"s_and_b32 s{sC}, s{sW}, 1")
e(f"s_lshr_b32 s{sD}, s{sW}, 1    ; kq")
e(f"s_lshl_b32 s{sCT}, s{sC}, 1")
e(f"s_add_u32 s{sCT}, s{sCT}, s{sD}")
e(f"s_lshl_b32 s{sF}, s{sTG}, 15")
e(f"s_add_u32 s{sA}, s{sF}, {WS_O}")
e(f"s_lshr_b32 s{sB}, s{sHG}, 1")
e(f"s_lshl_b32 s{sB}, s{sB}, 8")
e(f"s_add_u32 s{sF}, s{sF}, s{sB}")
e(f"s_lshl_b32 s{sB}, s{sCT}, 6")
e(f"s_add_u32 s{sF}, s{sF}, s{sB}")
e(f"v_and_b32 v{T+4}, 31, v{vL}    ; token")
e(f"v_lshrrev_b32 v{T+5}, 5, v{vL}    ; h")
e(f"v_lshlrev_b32 v{T+6}, 10, v{T+4}")
e(f"v_lshl_add_u32 v{T+7}, v{T+5}, 4, v{T+6}")
e(f"v_lshl_add_u32 v{T+6}, v{T+5}, 3, v{T+6}")
for q in range(4):
    e(f"buffer_load_dwordx2 {v(40+2*q,2)}, v{T+6}, {s(rX,4)}, s{sF} offen offset:{16*q}")
if cfg.otlb: e(f"buffer_load_dword v{T+12}, v{T+7}, {s(rOUT,4)}, s{sF} offen")
e(f"s_lshl_b32 s{sD}, s{sD}, 1")
e(f"s_sub_u32 s{sE}, 3, s{sD}")
e(f"s_lshl_b32 s{sB}, s{sE}, 10")
e(f"s_add_u32 s{sOA}, s{sA}, s{sB}")
e(f"s_lshl_b32 s{sB}, s{sD}, 10")
e(f"s_add_u32 s{sOB}, s{sA}, s{sB}")
e(f"s_lshl_b32 s{sB}, s{sOH}, 2")
e(f"s_add_u32 s{sC}, s{sB}, s{sE}")
e(f"s_lshl_b32 s{sMA}, 1, s{sC}")
e(f"s_add_u32 s{sC}, s{sB}, s{sD}")
e(f"s_lshl_b32 s{sMB}, 1, s{sC}")
e(f"s_or_b32 s{sMB}, s{sMB}, 0xaa")
e(f"s_xor_b32 s{sC}, s{sW}, 2")
e(f"s_lshl_b32 s{sMX}, 0x100, s{sC}")
e(f"s_lshl_b32 s{sXO}, 0x100, s{sW}")
a.c("wo fragment address: head*4096 + (4(g>>1) + r)*256 + (((2ct + (g&1)) ^ (r<<1))*32) + 8c ; the other tile is ^64")
e(f"v_lshrrev_b32 v{T+2}, 2, v{vTK}")
e(f"v_and_b32 v{T+3}, 3, v{vTK}")
e(f"v_and_b32 v{T}, 1, v{vG}")
e(f"s_lshl_b32 s{sB}, s{sCT}, 1")
e(f"v_or_b32 v{T}, s{sB}, v{T}")
e(f"v_lshlrev_b32 v{T+1}, 1, v{T+2}")
e(f"v_xor_b32 v{T}, v{T}, v{T+1}")
e(f"v_lshlrev_b32 v{T}, 5, v{T}")
e(f"v_lshl_add_u32 v{T}, v{T+3}, 3, v{T}")
e(f"v_lshl_add_u32 v{T+1}, v{T+5}, 2, v{T+2}")
e(f"v_lshl_add_u32 v{T}, v{T+1}, 8, v{T}")
e(f"s_lshl_b32 s{sB}, s{sE}, 12")
e(f"v_add_u32 v{T}, s{sB}, v{T}")
e(f"v_xor_b32 v{T+1}, 64, v{T}")
e(f"v_add_u32 v{T+2}, 0x10000, v{T}")
e(f"v_add_u32 v{T+3}, 0x10000, v{T+1}")
e(f"v_lshlrev_b32 v{T+6}, 2, v{T+4}")
a.c("hand-over buffers live in the wo rows of odd heads (dead once every wave of ring A has published)")
e(f"s_lshl_b32 s{sB}, s{sW}, 13")
e(f"s_add_u32 s{sB}, s{sB}, 4096")
e(f"v_add_u32 v{T+9}, s{sB}, v{vL16}")
e(f"v_xor_b32 v{T+10}, 0x4000, v{T+9}")
e(f"v_mov_b32 v{T+11}, s{sXO}")
a.label("L_gow")
e("ds_read_b32 v51, v52")
e("s_waitcnt lgkmcnt(0)")
e(f"v_readfirstlane_b32 s{sC}, v51")
e(f"s_and_b32 s{sC}, s{sC}, 7")
e(f"s_cmp_eq_u32 s{sC}, {NGO}")
e("s_cbranch_scc0 L_gow")
e(f"s_lshl_b32 s{sB}, s{sTG}, 7")
e(f"s_add_u32 s{sB}, s{sB}, {WS_G}")
e(f"buffer_load_dword v48, v{T+6}, {s(rWS,4)}, s{sB} offen sc1")
def wo_reads(lo=0, hi=8):
    for i in range(lo, hi):
        for c in range(2):
            b = T + c + (2 if i >= 4 else 0); o = (i & 3) * 16384
            e(f"ds_read_b64_tr_b16 {v(WF+8*i+4*c,2)}, v{b} offset:{o}")
            e(f"ds_read_b64_tr_b16 {v(WF+8*i+4*c+2,2)}, v{b} offset:{o+2048}")
def o_loads(par, lo, hi):
    for i in range(lo, hi):
        e(f"s_add_u32 s{sB}, s{sOA if par else sOB}, {i*4096}")
        e(f"buffer_load_dwordx4 {v(OF+4*i,4)}, v{vL16}, {s(rWS,4)}, s{sB} offen sc1")
GSTUB = []
def pub_wait(m):
    Lw = L("pw")
    a.label(Lw)
    e("ds_read_b32 v51, v50")
    e("s_waitcnt lgkmcnt(0)")
    e(f"v_readfirstlane_b32 s{sC}, v51")
    e(f"s_and_b32 s{sC}, s{sC}, s{m}")
    e(f"s_cmp_eq_u32 s{sC}, s{m}")
    e(f"s_cbranch_scc0 {Lw}")
def o_half(par):
    for gq in range(4):
        a.label(f"L_oc{par}{gq}")
        vmw(6 - 2 * gq)
        R = OF + 8 * gq
        e(f"v_max3_u32 v{T+8}, v{R}, v{R+1}, v{R+2}")
        e(f"v_max3_u32 v{T+8}, v{T+8}, v{R+3}, v{R+4}")
        e(f"v_max3_u32 v{T+8}, v{T+8}, v{R+5}, v{R+6}")
        e(f"v_max_u32 v{T+8}, v{T+8}, v{R+7}")
        e(f"v_cmp_eq_u32 vcc, -1, v{T+8}")
        e("s_nop 0")
        e(f"s_cbranch_vccnz L_or{par}{gq}")
        a.label(f"L_og{par}{gq}")
        order = [(i, c) for i in range(2 * gq, 2 * gq + 2) for c in (1, 0)]
        if par == 0 and gq == 3: order = [(6, 1), (7, 1), (6, 0), (7, 0)]
        for i, c in order:
            mf32(AC + 16 * c, WF + 8 * i + 4 * c, OF + 4 * i, "0" if (par == 1 and i == 0) else v(AC + 16 * c, 16))
            if par == 1 and c == 0: wo_reads(i, i + 1)
        GSTUB.append((par, gq))
wo_reads()
e(f"s_mov_b32 s{sSPIN}, 0")
a.c("switch the fragment bases to the even head")
e(f"s_sub_u32 s{sB}, s{sOB}, s{sOA}")
e(f"s_lshl_b32 s{sB}, s{sB}, 2")
for i in range(4): e(f"v_add_u32 v{T+i}, s{sB}, v{T+i}")
xstamp(5, 6)
e("s_branch L_retry_7b")
a.label("L_tfin")
e("s_waitcnt lgkmcnt(0)")
e(f"v_mul_u32_u24 v{O0+9}, v53, v{O0+9}")
e(f"v_cmp_ne_u32 vcc, {7*NGO}, v{O0+9}")
e("s_nop 4")
e("s_cbranch_vccnz L_retry_7")
a.label("L_ok_7")
STUBS.append((7, O0, 4))
e(f"v_readfirstlane_b32 s{sD}, v53")
e(f"v_mov_b32 v7, s{sPI}")
e(f"v_add_f32 v{O1+8}, v{O1+8}, v{O0+8}")
stamp("loopend")
for r in range(4): e(f"v_add_f32 v{O1+r}, v{O1+r}, v{O0+r}")
e(f"v_rcp_f32 v51, v{O1+8}")
for r in range(4, 8): e(f"v_add_f32 v{O1+r}, v{O1+r}, v{O0+r}")
a.c("run-time check of the softmax shift: the row sum must be comfortably inside the fp32 range")
e(f"v_cmp_gt_f32 vcc, 0x{f2u(2.0**-80):08x}, v{O1+8}")
for r in range(8): e(f"v_mul_f32 v{O1+r}, v{O1+r}, v51")
for r in range(4):
    e(f"v_cvt_pk_bf16_f32 v{PP+r}, v{O1+2*r}, v{O1+2*r+1}")
e(f"s_cmp_eq_u32 s{sD}, {NGO}")
for r in range(4): e(f"v_min_u32 v{PP+r}, -2, v{PP+r}")
e("s_cbranch_vccnz L_bad")
e("s_cbranch_scc1 L_pubx")
e(f"buffer_store_dwordx4 {v(PP,4)}, v{vL16}, {s(rWS,4)}, s{sPO} offen")
a.label("L_nopub")
e("s_mov_b64 exec, 1")
e("ds_add_u32 v50, v7")
e("s_mov_b64 exec, -1")
stamp("opub"); xstamp(4, 6)
e(f"s_cmp_ge_u32 s{sW}, 4")
e("s_cbranch_scc1 L_tbar")
pub_wait(sMA)
xstamp(6, 6)
o_loads(1, 0, 8)
xstamp(7, 6)
o_half(1)
xstamp(9, 6)
if cfg.stamps == 6: e(f"s_mov_b32 s{sST+15}, s{sSPIN}")
stamp("half1")
pub_wait(sMB)
stamp("B8"); xstamp(11, 6)
o_loads(0, 0, 8)
xstamp(12, 6)
a.c("residual branch of the mix, (1-g)*(x + routed y)")
e("v_sub_f32 v49, 1.0, v48")
for q in range(4):
    e(f"v_lshlrev_b32 v{RES+4*q}, 16, v{40+2*q}")
    e(f"v_and_b32 v{RES+4*q+1}, 0xffff0000, v{40+2*q}")
    e(f"v_lshlrev_b32 v{RES+4*q+2}, 16, v{41+2*q}")
    e(f"v_and_b32 v{RES+4*q+3}, 0xffff0000, v{41+2*q}")
e(f"s_cmp_eq_u32 s{sOWN}, 1")
e("s_cbranch_scc1 L_y")
a.label("L_noy")
for i in range(16): e(f"v_mul_f32 v{RES+i}, v{RES+i}, v49")
o_half(0)
for q in range(4): e(f"ds_write_b128 v{T+9}, {v(AC+16+4*q,4)} offset:{1024*q}")
e("s_mov_b64 exec, 1")
e(f"ds_add_u32 v50, v{T+11}")
e("s_mov_b64 exec, -1")
stamp("ogath"); xstamp(13, 6)
for i in range(16): e(f"v_fmac_f32 v{RES+i}, v{AC+i}, v48")
a.label("L_xw")
e("ds_read_b32 v51, v50")
for q in range(4): e(f"ds_read_b128 {v(OF+4*q,4)}, v{T+10} offset:{1024*q}")
e("s_waitcnt lgkmcnt(4)")
e(f"v_readfirstlane_b32 s{sC}, v51")
e(f"s_and_b32 s{sB}, s{sC}, s{sMX}")
e("s_cbranch_scc0 L_xr")
e("s_waitcnt lgkmcnt(0)")
for i in range(16): e(f"v_fmac_f32 v{RES+i}, v{OF+i}, v48")
xstamp(10, 6)
for i in range(8): e(f"v_cvt_pk_bf16_f32 v{PP+i}, v{RES+2*i}, v{RES+2*i+1}")
for k in (0, 4):
    e(f"v_permlane32_swap_b32 v{PP+k}, v{PP+k+2}")
    e(f"v_permlane32_swap_b32 v{PP+k+1}, v{PP+k+3}")
for k in (0, 4):
    e(f"buffer_store_dwordx4 {v(PP+k,4)}, v{T+7}, {s(rOUT,4)}, s{sF} offen offset:{8*k}")
if cfg.stamps == 1: e(f"s_mov_b32 s{sST+15}, s{sSPIN}")
e(f"s_or_b32 s{sA}, s2, s{sW}")
e("s_cbranch_scc1 L_nobump")
e("v_mov_b32 v6, 0")
e(f"v_mov_b32 v7, s{sT}")
e(f"s_mov_b32 s{sA}, {WS_EP}")
e(f"buffer_store_dword v7, v6, {s(rWS,4)}, s{sA} offen")
a.label("L_nobump")
a.label("L_tbar")
e("s_waitcnt lgkmcnt(0)")
e("s_barrier")
e("ds_read_b32 v51, v50")
e("s_waitcnt lgkmcnt(0)")
e(f"v_readfirstlane_b32 s{sC}, v51")
e(f"s_cmp_ge_u32 s{sC}, 0x10000")
e("s_cbranch_scc1 L_fallback")
if cfg.hold == 1: stamp("end")
if cfg.stamps:
    stamp("stored")
    e("s_waitcnt vmcnt(0)")
    stamp("end")
    if cfg.dbgwg >= 0:
        e(f"s_cmp_eq_u32 s2, {cfg.dbgwg}")
        e("s_cbranch_scc0 L_end")
        e(f"s_cmp_eq_u32 s{sW}, {cfg.dbgwave}")
        e("s_cbranch_scc0 L_end")
        e("v_mov_b32 v6, 0")
        srd(rDBG, pDBG, 256)
        for i in range(1, 16): e(f"s_sub_u32 s{sST+i}, s{sST+i}, s{sST}")
        for q in range(4):
            for i in range(4): e(f"v_mov_b32 v{8+i}, s{sST+4*q+i}")
            e(f"buffer_store_dwordx4 v[8:11], v6, {s(rDBG,4)}, 0 offen offset:{16*q}")
            e("s_nop 1")
    else:
        a.label("L_dump")
        e(f"s_lshl_b32 s{sA}, s2, 3")
        e(f"s_add_u32 s{sA}, s{sA}, s{sW}")
        e(f"s_lshl_b32 s{sA}, s{sA}, 6")
        e(f"s_add_u32 s{sA}, s{sA}, {WS_STAMP}")
        e("v_mov_b32 v6, 0")
        for q in range(4):
            for i in range(4): e(f"v_mov_b32 v{8+i}, s{sST+4*q+i}")
            e(f"buffer_store_dwordx4 v[8:11], v6, {s(rWS,4)}, s{sA} offen offset:{16*q}")
            e("s_nop 1")
a.label("L_end")
e("s_endpgm")

a.c("===================== out-of-line: ring hand-off not ready yet =====================")
for st, Op, kk in STUBS:
    a.label(f"L_retry_{st}")
    a.hist = []
    e("s_sleep 1")
    e(f"s_add_u32 s{sIT}, s{sIT}, 1")
    e(f"s_cmp_gt_u32 s{sIT}, {cfg.spin*16}")
    e(f"s_cbranch_scc1 L_ok_{st}")
    if st == 7: a.label("L_retry_7b")
    e(f"ds_read_b64 {v(Op+8,2)}, v{vAt+kk}")
    e(f"ds_read_b128 {v(Op,4)}, v{vAd+kk}")
    e(f"ds_read_b128 {v(Op+4,4)}, v{vAd+kk} offset:1024")
    if st == 7: e("ds_read_b32 v53, v52")
    e("s_waitcnt lgkmcnt(0)")
    if st == 7: e(f"v_mul_u32_u24 v{Op+9}, v53, v{Op+9}")
    e(f"v_cmp_ne_u32 vcc, {st if st < 7 else 7*NGO}, v{Op+9}")
    e("s_nop 4")
    e(f"s_cbranch_vccnz L_retry_{st}")
    e(f"s_branch L_ok_{st}")

a.label("L_pubx")
e(f"buffer_store_dwordx4 {v(PP,4)}, v{vL16}, {s(rWS,4)}, s{sPO} offen sc1")
e("s_branch L_nopub")
a.label("L_bad")
e(f"s_cmp_eq_u32 s{sFB}, 0")
e("s_cbranch_scc0 L_pubx")
e("v_add_u32 v7, 0x10000, v7")
e("s_branch L_nopub")
a.label("L_xr")
e(f"s_cmp_ge_u32 s{sC}, 0x10000")
e("s_cbranch_scc1 L_tbar")
e("s_branch L_xw")
a.c("===================== out-of-line: routed token's row (owner workgroups) =====================")
a.label("L_y")
a.hist = []
for i in range(4): e(f"v_add_f32_dpp v{12+i}, v{8+i}, v{8+i} row_ror:8 row_mask:0xf bank_mask:0xf")
sum4 = [(12 + i, 16 + i) for i in range(4)]
for x_, t_ in sum4: e(f"v_mov_b32 v{t_}, v{x_}")
for x_, t_ in sum4: e(f"v_permlane32_swap_b32 v{x_}, v{t_}")
for x_, t_ in sum4: e(f"v_add_f32 v{x_}, v{x_}, v{t_}")
for x_, t_ in sum4: e(f"v_mov_b32 v{t_}, v{x_}")
for x_, t_ in sum4: e(f"v_permlane16_swap_b32 v{x_}, v{t_}")
for x_, t_ in sum4: e(f"v_add_f32 v{x_}, v{x_}, v{t_}")
e(f"v_mov_b32 v16, s{sR16}")
e("v_ashrrev_i32 v17, 31, v16")
e("v_not_b32 v17, v17")
e("v_or_b32 v17, 0x80000000, v17")
e("v_xor_b32 v16, v16, v17")
e("v_and_b32 v16, 0xffff0000, v16")
sigmoid(16)
round_bf16(16)
for i in range(4):
    round_bf16(12 + i)
    e(f"v_mul_f32 v{12+i}, v{12+i}, v16")
    round_bf16(12 + i)
e(f"s_lshl_b32 s{sB}, s{sW}, 7")
e(f"s_add_u32 s{sB}, s{sB}, {YB}")
e(f"v_add_u32 v17, s{sB}, v{vL16}")
e("s_mov_b64 exec, 0xff")
e("ds_write_b128 v17, v[12:15]")
e("s_mov_b64 exec, -1")
e(f"v_lshl_add_u32 v17, v{T+5}, 4, s{sB}")
for q in range(4): e(f"ds_read_b128 {v(O0+4*q,4)}, v17 offset:{32*q}")
e(f"s_and_b32 s{sC}, s{sSEL}, 31")
e(f"v_cmp_eq_u32 vcc, s{sC}, v{T+4}")
e("s_waitcnt lgkmcnt(0)")
e("s_mov_b64 exec, vcc")
for i in range(16): e(f"v_add_f32 v{RES+i}, v{RES+i}, v{O0+i}")
e("s_mov_b64 exec, -1")
e("s_branch L_noy")
a.c("===================== out-of-line: gathered o not complete yet =====================")
for par, gq in GSTUB:
    a.label(f"L_or{par}{gq}")
    a.hist = []
    e(f"s_add_u32 s{sSPIN}, s{sSPIN}, 1")
    e(f"s_cmp_gt_u32 s{sSPIN}, {cfg.spin}")
    e(f"s_cbranch_scc1 L_og{par}{gq}")
    e("ds_read_b32 v51, v50")
    o_loads(par, 2 * gq, 8)
    e("s_waitcnt lgkmcnt(0)")
    e(f"v_readfirstlane_b32 s{sC}, v51")
    e(f"s_cmp_ge_u32 s{sC}, 0x10000")
    e("s_cbranch_scc1 L_tbar")
    e(f"s_branch L_oc{par}{gq}")
a.c("===================== side jobs =====================")
def job_wo(q, ret):
    if q == 3:
        Lw = L("fdn")
        a.label(Lw)
        e(f"ds_read_b32 v7, v52 offset:{FDN-GOW}")
        e("s_waitcnt lgkmcnt(0)")
        e("v_cmp_ne_u32 vcc, 1, v7")
        e("s_nop 1")
        e(f"s_cbranch_vccnz {Lw}")
    for S in range(32 * q, 32 * q + 32):
        e(f"s_mov_b32 m0, {S*1024}")
        e(f"s_mov_b32 s{sB}, {S*4096}")
        dma(10, rWO, f"s{sB}")
def job_sent(ret):
    for i in range(4): e(f"v_mov_b32 v{20+i}, -1")
    e(f"s_lshl_b32 s{sB}, s{sGR}, 16")
    e(f"s_lshl_b32 s{sC}, s{sHG}, 12")
    e(f"s_add_u32 s{sB}, s{sB}, s{sC}")
    e(f"s_add_u32 s{sB}, s{sB}, {WS_O}")
    for i in range(8):
        if i == 4: e(f"s_add_u32 s{sB}, s{sB}, 32768")
        e(f"buffer_store_dwordx4 v[20:23], v{vL16}, {s(rWS,4)}, s{sB} offen offset:{(i&3)*1024} sc1")
def job_scat(q, ret):
    e(f"s_cmp_eq_u32 s{sFV}, 1")
    e(f"s_cbranch_scc0 {ret}")
    srd(rT1, pWG, 512 * 3584)
    srd(rT2, pWU, 512 * 3584)
    for i in range(2 * q, 2 * q + 2):
        a.c("the eight workgroups that share these lines start on different row blocks")
        e(f"s_xor_b32 s{sA}, s{sHG}, {i}")
        e(f"s_lshl_b32 s{sC}, s{sA}, 10")
        e(f"s_add_u32 m0, s{sC}, {FB+F_G}")
        e(f"s_mul_i32 s{sB}, s{sA}, {64*3584}")
        dma(11, rT1, f"s{sB}")
        e(f"s_add_u32 m0, s{sC}, {FB+F_U}")
        dma(11, rT2, f"s{sB}")
def job_dstage(ret):
    e(f"s_cmp_eq_u32 s{sFV}, 1")
    e(f"s_cbranch_scc0 {ret}")
    srd(rT1, pWD, 1792 * 1024)
    e(f"s_lshl_b32 s{sA}, s{sF0}, 10")
    for i in range(8):
        e(f"s_mov_b32 m0, {FB+F_D+i*1088}")
        e(f"s_add_u32 s{sB}, s{sA}, {i*1024}")
        dma(vL16, rT1, f"s{sB}")
    e(f"s_mov_b32 m0, {FB+F_X}")
    e(f"s_lshl_b32 s{sB}, s{sSEL}, 10")
    dma(vL16, rX, f"s{sB}")
def job_rec(ret):
    e("s_waitcnt vmcnt(0)")
    e("s_mov_b64 exec, 1")
    e(f"s_getreg_b32 s{sB}, hwreg(HW_REG_XCC_ID, 0, 4)")
    e(f"v_mov_b32 v6, s{sT}")
    e(f"v_mov_b32 v7, s{sB}")
    e(f"s_lshl_b32 s{sA}, s{sID}, 7")
    e(f"s_add_u32 s{sA}, s{sA}, {WS_REC+16}")
    e(f"buffer_store_dwordx2 v[6:7], v{vL4}, {s(rWS,4)}, s{sA} offen sc1")
    e("s_mov_b64 exec, -1")
def job_ffn(ret):
    e(f"s_cmp_eq_u32 s{sFV}, 1")
    e("s_cbranch_scc0 L_ffn_e")
    e("s_waitcnt vmcnt(0)")
    def f_reads(S):
        w = 20 + 8 * (S % 3)
        e(f"ds_read_b64_tr_b16 {v(w,2)}, v8 offset:{F_G+S*512}")
        e(f"ds_read_b64_tr_b16 {v(w+2,2)}, v8 offset:{F_G+S*512+64}")
        e(f"ds_read_b128 {v(w+4,4)}, v9 offset:{F_X+S*64}")
    for S in range(3): f_reads(S)
    e("s_mov_b32 s18, 0x22222222")
    e("s_mov_b32 s19, 0x22222222")
    e("s_mov_b32 s20, 0x44444444")
    e("s_mov_b32 s21, 0x44444444")
    e("s_mov_b32 s22, 0x88888888")
    e("s_mov_b32 s23, 0x88888888")
    for S in range(16):
        left = min(S + 3, 16) - (S + 1)
        e(f"s_waitcnt lgkmcnt({3*left})")
        w = 20 + 8 * (S % 3)
        mf16(44, w, w + 4, "0" if S == 0 else v(44, 4))
        if S + 3 < 16: f_reads(S + 3)
    def d_reads(J0):
        for J in range(J0, J0 + 4):
            e(f"ds_read_b64_tr_b16 {v(20+4*(J&3),2)}, v16 offset:{F_D+J*128}")
            e(f"ds_read_b64_tr_b16 {v(22+4*(J&3),2)}, v16 offset:{F_D+J*128+4*1088}")
    d_reads(0)
    a.c("lane (n, g) keeps column 4g + (n&3): g = 0,1 gate, g = 2,3 the matching up column")
    e("v_cndmask_b32 v44, v44, v45, s[18:19]")
    e("v_cndmask_b32 v44, v44, v46, s[20:21]")
    e("v_cndmask_b32 v44, v44, v47, s[22:23]")
    round_bf16(44)
    e("v_mov_b32 v45, v44")
    e("v_permlane32_swap_b32 v44, v45")
    e(f"v_mul_f32 v46, 0x{f2u(-1.4426950408889634):08x}, v44")
    e("v_exp_f32 v46, v46")
    e("v_add_f32 v46, 1.0, v46")
    e("v_rcp_f32 v46, v46")
    e("v_mul_f32 v44, v44, v46")
    round_bf16(44)
    e("v_mul_f32 v44, v44, v45")
    e("v_cvt_pk_bf16_f32 v44, v44, v44")
    e("s_mov_b64 exec, 0xf000f")
    e("ds_write_b16 v0, v44")
    e("s_mov_b64 exec, -1")
    e("ds_read_b128 v[48:51], v17")
    e(f"s_and_b32 s{sA}, s2, {NREP-1}")
    e(f"s_lshl_b32 s{sA}, s{sA}, 11")
    e(f"s_add_u32 s{sA}, s{sA}, {WS_Y}")
    for J0 in (0, 4):
        e("s_waitcnt lgkmcnt(0)")
        DR = (36, 40, 44, 12)
        for J in range(J0, J0 + 4):
            mf16(DR[J & 3], 48, 20 + 4 * (J & 3), "0")
        if J0 == 0: d_reads(4)
        for J in range(J0, J0 + 4):
            e(f"buffer_atomic_add_f32 v{DR[J&3]}, v{vL4}, {s(rWS,4)}, s{sA} offen offset:{J*256}")
    a.label("L_ffn_e")
    e("v_mov_b32 v7, 1")
    e(f"ds_write_b32 v52, v7 offset:{FDN-GOW}")
def job_count(ret):
    e("s_waitcnt vmcnt(0)")
    e("s_mov_b64 exec, 1")
    e(f"v_mov_b32 v7, s{sFV}")
    e(f"s_mov_b32 s{sA}, {WS_CNT}")
    e(f"buffer_atomic_add v7, v{vL4}, {s(rWS,4)}, s{sA} offen sc1")
    e("s_mov_b64 exec, -1")
def job_go(ret, val="1"):
    e(f"v_mov_b32 v7, {val}")
    e("s_waitcnt vmcnt(0)    ; this wave's part of wo has landed")
    e("s_mov_b64 exec, 1")
    e("ds_add_u32 v52, v7")
    e("s_mov_b64 exec, -1")
def job_gpoll(ret):
    e(f"v_and_b32 v6, 7, v{vL}")
    e("v_lshlrev_b32 v6, 7, v6")
    e(f"s_lshl_b32 s{sA}, s{sGR}, 10")
    e(f"s_add_u32 s{sA}, s{sA}, {WS_REC+16}")
    e(f"s_mov_b32 s{sSPIN}, 0")
    a.label("L_gpoll")
    e(f"buffer_load_dwordx2 v[20:21], v6, {s(rWS,4)}, s{sA} offen sc1")
    e(f"s_add_u32 s{sSPIN}, s{sSPIN}, 1")
    e("s_waitcnt vmcnt(0)")
    e(f"v_cmp_ne_u32 vcc, s{sT}, v20")
    e(f"s_cmp_gt_u32 s{sSPIN}, {cfg.spin}")
    e("s_cbranch_scc1 L_gpollout")
    e("s_cbranch_vccnz L_gpoll")
    a.label("L_gpollout")
    a.c("1: publish o write-through; 0x1000001: all eight workgroups of the group run on this XCD and share its L2")
    e(f"s_getreg_b32 s{sB}, hwreg(HW_REG_XCC_ID, 0, 4)")
    e(f"v_cmp_ne_u32 vcc, s{sB}, v21")
    e("s_cmp_eq_u64 vcc, 0")
    e(f"s_cselect_b32 s{sB}, {0x1000001 if cfg.xloc else 1}, 1")
    job_go(ret, f"s{sB}")
def job_y(ret):
    e("v_mov_b32 v6, 0")
    e(f"s_mov_b32 s{sA}, {WS_CNT}")
    e(f"s_mov_b32 s{sSPIN}, 0")
    a.label("L_ypoll")
    e(f"buffer_load_dword v7, v6, {s(rWS,4)}, s{sA} offen sc1")
    e(f"s_add_u32 s{sSPIN}, s{sSPIN}, 1")
    e("s_waitcnt vmcnt(0)")
    e(f"v_readfirstlane_b32 s{sB}, v7")
    e(f"s_cmp_gt_u32 s{sSPIN}, {cfg.spin}")
    e("s_cbranch_scc1 L_ypollout")
    e(f"s_cmp_eq_u32 s{sB}, {0 if cfg.noffn else 224}")
    e("s_cbranch_scc0 L_ypoll")
    a.label("L_ypollout")
    e(f"s_lshr_b32 s{sA}, s{sHG}, 1")
    e(f"s_lshl_b32 s{sA}, s{sA}, 9")
    e(f"s_and_b32 s{sB}, s{sW}, 1")
    e(f"s_lshl_b32 s{sB}, s{sB}, 8")
    e(f"s_add_u32 s{sA}, s{sA}, s{sB}")
    e(f"s_lshr_b32 s{sB}, s{sW}, 1")
    e(f"s_lshl_b32 s{sB}, s{sB}, 7")
    e(f"s_add_u32 s{sA}, s{sA}, s{sB}")
    e(f"s_add_u32 s{sA}, s{sA}, {WS_Y}")
    e(f"v_lshrrev_b32 v6, 3, v{vL}")
    e(f"v_and_b32 v7, 7, v{vL}")
    e("v_lshlrev_b32 v7, 4, v7")
    e("v_lshl_add_u32 v6, v6, 11, v7")
    assert NREP == 8
    e(f"buffer_load_dwordx4 v[8:11], v6, {s(rWS,4)}, s{sA} offen sc1")
for p_, d_ in sorted(JOBS.items()):
    a.label(f"L_hook{p_}")
    items = list(d_.items())
    for n_, (w_, jb) in enumerate(items):
        a.hist = []
        if n_ + 1 < len(items):
            e(f"s_cmp_eq_u32 s{sW}, {w_}")
            e(f"s_cbranch_scc0 L_hook{p_}_{n_+1}")
        ret = f"L_hret{p_}"
        if jb.startswith("wo"): job_wo(int(jb[2:]), ret)
        elif jb.startswith("scat"): job_scat(int(jb[4:]), ret)
        else: globals()["job_" + jb](ret)
        e(f"s_branch {ret}")
        if n_ + 1 < len(items): a.label(f"L_hook{p_}_{n_+1}")
a.c("===================== fallback: exact row maxima, then redo the attention =====================")
for st in range(8):
    a.label(f"L_fbc_{st}")
    a.hist = []
    a.c("shift for step st = -(true row max) of q tile u(st); the Q address register of this step gives u")
    e(f"v_subrev_u32 v40, {QB}, v{vNq+(st&3)}")
    e("v_lshrrev_b32 v40, 10, v40")
    e(f"v_and_b32 v41, 31, v{vL}")
    e("v_lshl_add_u32 v40, v40, 5, v41")
    e("v_lshlrev_b32 v40, 2, v40")
    e(f"v_add_u32 v40, {FMX}, v40")
    e("ds_read_b32 v41, v40")
    e("s_waitcnt lgkmcnt(0)")
    for i in range(16): e(f"v_sub_f32 v{CM+i}, 0, v41")
    e("s_nop 1")
    if st == 0:
        mf32(S0, KF, QF, v(CM, 16))
        e("s_nop 7")
        e("s_nop 3")
        e("s_branch L_attn")
    else:
        e(f"s_branch L_fbr_{st}")
a.label("L_fallback")
a.hist = []
e("s_waitcnt vmcnt(0)")
e(f"s_mov_b32 s{sFB}, 1")
e(f"s_mov_b32 s{sHK}, 0")
e(f"v_and_b32 v40, 31, v{vL}")
e(f"v_lshrrev_b32 v41, 5, v{vL}")
e("v_lshlrev_b32 v26, 5, v40")
e("v_lshl_add_u32 v26, v41, 4, v26")
e(f"v_add_u32 v27, {WS_V}, v{vL16}")
for j in range(8): kv_load(j)
a.c("the hand-over buffers may have overwritten the first 32 KB of the wo image: wave w restores 4 KB")
e(f"v_lshlrev_b32 v47, 2, v{vG}")
e(f"v_xor_b32 v47, v47, v{vTK}")
e("v_lshlrev_b32 v47, 4, v47")
e(f"v_lshl_add_u32 v47, v{vG}, 10, v47")
e(f"s_lshr_b32 s{sA}, s{sHG}, 1")
e(f"s_lshl_b32 s{sA}, s{sA}, 8")
e(f"v_add_u32 v47, s{sA}, v47")
e(f"s_lshl_b32 s{sA}, s{sW}, 14")
e(f"s_lshl_b32 s{sE}, s{sW}, 12")
for i in range(4):
    e(f"s_add_u32 m0, s{sE}, {i*1024}")
    e(f"s_add_u32 s{sB}, s{sA}, {i*4096}")
    dma(47, rWO, f"s{sB}")
e(f"v_and_b32 v40, 11, v{vTK}")
e("v_cmp_eq_u32 vcc, 0, v40")
e("v_mov_b32 v41, 0x3f803f80")
e("s_nop 7")
e(f"v_cndmask_b32 v{V1}, 0, v41, vcc")
for i in range(1, 32): e(f"v_mov_b32 v{V1+i}, v{V1}")
e(f"v_lshl_or_b32 v40, s{sW}, 6, v{vL}")
e("v_and_b32 v40, 255, v40")
e("v_lshlrev_b32 v40, 2, v40")
e(f"v_add_u32 v40, {FMX}, v40")
e("v_mov_b32 v41, 0xff800000")
e("ds_write_b32 v40, v41")
zero_slots(44)
for k in range(4): e(f"v_xor_b32 v{vNq+k}, 4096, v{vNq+k}")
e(f"v_add_u32 v42, {QB}, v{vL16}")
e(f"v_and_b32 v43, 31, v{vL}")
e("v_lshlrev_b32 v43, 2, v43")
e(f"v_add_u32 v43, {FMX}, v43")
e(f"s_mov_b32 s{sIT}, 0")
e("s_waitcnt vmcnt(0) lgkmcnt(0)")
e("s_barrier")
e("ds_write_b32 v50, v44")
a.label("L_fb_loop")
e(f"ds_read_b128 {v(QF,4)}, v42")
e("v_mov_b32 v41, 0xff800000")
e("s_waitcnt lgkmcnt(0)")
for j in range(8):
    mf32(S0, KF + 4 * j, QF, "0")
    for r in range(0, 16, 2):
        e(f"v_max3_f32 v41, v41, v{S0+r}, v{S0+r+1}")
e("ds_max_f32 v43, v41")
e("v_add_u32 v42, 1024, v42")
e("v_add_u32 v43, 128, v43")
e(f"s_add_u32 s{sIT}, s{sIT}, 1")
e(f"s_cmp_lt_u32 s{sIT}, 8")
e("s_cbranch_scc1 L_fb_loop")
e("s_waitcnt lgkmcnt(0)")
e("s_barrier")
e(f"ds_read_b128 {v(QF,4)}, v{vNq}")
e("s_branch L_fbc_0")
a.label("L_code_end")

a.raw(f""".section .rodata,"a"
.p2align 6
.amdhsa_kernel {NAME}_kernel
  .amdhsa_next_free_vgpr 256
  .amdhsa_next_free_sgpr 102
  .amdhsa_accum_offset 256
  .amdhsa_group_segment_fixed_size 0
  .amdhsa_kernarg_size 112
  .amdhsa_user_sgpr_count 2
  .amdhsa_user_sgpr_kernarg_segment_ptr 1
  .amdhsa_system_sgpr_workgroup_id_x 1
.end_amdhsa_kernel""")
open(sys.argv[1], "w").write(a.text())
print("nops added:", a.nops_added, "stamps:", STAMPS)
```

```python
import sys, struct
from asmlib import Asm, v, s

NAME = "gated_mix__grouped_kv_mqa__moe_arch_mod__prompt"
def f2u(x): return struct.unpack("<I", struct.pack("<f", x))[0]

class Cfg:
    stamps = 0
    clk = 0
    force_fallback = 0
    spin = 0x40000
    prio = 1
    psleep = 2
    noffn = 0
    split = 0
    wfirst = 8
    otlb = 0
    pa = 31
    pb = 47
    pc = 55
    w0prio = 0
    kvrot = 1
    perm = 0
    ylate = 1
    otouch = 0
    xloc = 1
    narr = 4
    whi = 0
    chunk = 8
    pollat = 10
    pollat0 = 5
    kv0 = 2
    kv1 = 5
    cpf = 1
    nfirst = 4
    probe = 0
    hold = 0
    holdus = 60
    dbgwg = -1
    dbgwave = 7
    gearly = 0
    nup = 0
    xoe = 0
cfg = Cfg()
for a_ in sys.argv[2:]:
    k_, val_ = a_.split("=")
    assert hasattr(cfg, k_), k_
    setattr(cfg, k_, int(val_))

WS_K = 0; WS_V = 65536; WS_Y = 131072; WS_CNT = WS_Y + 32768; WS_REC = 256 * 1024; WS_EP = 320 * 1024; WS_G = 384 * 1024; WS_O = 1 << 20; WS_STAMP = 4 << 20
WS_BYTES = 8 << 20
NREP = 8
KB = 1024
XB_ = 0; WB = 64 * KB; WKB = 128 * KB; QB = 128 * KB; SLD = 136 * KB; SLT = 152 * KB
RGB = 156 * KB; FMX = 156 * KB; SCR = 158 * KB
QN2 = SCR + 1024
FBF = SCR + 16
GOW = SCR + 20
FDN = SCR + 24
HV = SCR + 256; ZV = SCR + 32
YB = SCR + 512
FW = 3
FB = 96 * KB
F_G = 0; F_U = 8192 + 64; F_D = 16384 + 128; F_X = F_D + 8 * 1088
NWO = 12
CSCALE = 0.25 * 1.4426950408889634

sW = 3; sGR = 4; sHG = 5; sA = 6; sB = 7; sC = 8; sD = 9; sE = 10; sF = 11; sIT = 12; sFB = 13; sSEL = 14; sR16 = 15
pX, pWQ, pWK, pWV, pWO, pBX, pWR, pWG = 16, 18, 20, 22, 24, 26, 28, 30
pWU, pWD, pGW, pOUT, pDBG, pWS = 32, 34, 36, 38, 40, 42
rX, rWQ, rWO, rT1, rWS, rOUT, rDBG, rT2 = 44, 48, 52, 56, 60, 64, 68, 72
sF0 = 76; sFV = 77; sOWN = 78; sSPIN = 79; sOH = 80; sTH = 81; sTG = 82; sU = 83
sRHO = 14; sXL = 15; sXG = 12; sWX = 78
sT = 68; sPB = 69; sID = 70; sHK = 71; sPO = 26; sPI = 27; sKV = 28
sST = 84
vL = 1; vTK = 2; vG = 3; vL4 = 4; vL16 = 5
XA = 64; XBr = 128
KF = 64; V0 = 96; S0 = 128; S1 = 144; O0 = 160; O1 = 176; V1 = 192; CM = 224; PP = 240; QF = 248
vAd = 54; vAt = 59; vNq = 252

JOBS = {
    2: {FW: "scat0", 0: "sent", 4: "wo0"},
    3: {FW: "scat1"},
    4: {FW: "scat2", 6: "wo2"},
    5: {FW: "scat3"},
    6: {0: "rec", 1: "wo1", FW: "dstage", 4: "go"},
    8: {FW: "ffn", 5: "wo3", 6: "go"},
    10: {1: "go"},
    11: {FW: "count", 5: "go"},
    12: {0: "gpoll"},
    14: {"own": "y"},
}
NGO = 5
a = Asm()
e = a.e
STAMPS = []
uid = [0]
def L(p):
    uid[0] += 1
    return f"L_{p}_{uid[0]}"
HOLD = {1: "end", 2: "B6", 3: "loopend", 4: "B1a", 5: "entry"}
def stamp(name, sets=(1,)):
    if cfg.hold and HOLD[cfg.hold] == name:
        Lh = L("hold")
        a.label(Lh)
        e("s_memrealtime s[100:101]")
        e("s_waitcnt lgkmcnt(0)")
        e("s_sub_u32 s100, s100, s98")
        e(f"s_cmp_lt_u32 s100, {cfg.holdus}")
        e(f"s_cbranch_scc1 {Lh}")
    if not cfg.stamps: return
    if cfg.probe and name != "entry": return
    if cfg.stamps == 3 and name in ("B1a", "polled", "B1b", "qdone", "prepoll", "B6", "kviss"): pass
    elif name not in ("entry", "K0", "loopend", "end") and cfg.stamps not in sets: return
    i = len(STAMPS)
    assert i < 16
    a.c(f"stamp {i}: {name}")
    e("s_memtime s[100:101]" if cfg.clk else "s_memrealtime s[100:101]")
    e("s_waitcnt lgkmcnt(0)")
    e(f"s_mov_b32 s{sST+i}, s100")
    STAMPS.append(name)

def xstamp(i, st_=3):
    if cfg.stamps != st_: return
    a.c(f"stamp {i}: x{i}")
    e("s_memrealtime s[100:101]")
    e("s_waitcnt lgkmcnt(0)")
    e(f"s_mov_b32 s{sST+i}, s100")
def srd(r, p, nbytes):
    e(f"s_mov_b32 s{r}, s{p}")
    e(f"s_mov_b32 s{r+1}, s{p+1}")
    e(f"s_mov_b32 s{r+2}, {nbytes}")
    e(f"s_mov_b32 s{r+3}, 0x20000")
def srd_sel(r, p1, p0, nbytes):
    e(f"s_cselect_b32 s{r}, s{p1}, s{p0}")
    e(f"s_cselect_b32 s{r+1}, s{p1+1}, s{p0+1}")
    e(f"s_mov_b32 s{r+2}, {nbytes}")
    e(f"s_mov_b32 s{r+3}, 0x20000")
def dma(voff, r, soff, off=0):
    o = f" offset:{off}" if off else ""
    e(f"buffer_load_dwordx4 v{voff}, {s(r,4)}, {soff} offen{o} lds")
def mf16(d, A, B, C):
    e(f"v_mfma_f32_16x16x32_bf16 {v(d,4)}, {v(A,4)}, {v(B,4)}, {C}")
def mf32(d, A, B, C):
    e(f"v_mfma_f32_32x32x16_bf16 {v(d,16)}, {v(A,4)}, {v(B,4)}, {C}")
def sum_over_g(x, t):
    e(f"v_mov_b32 v{t}, v{x}")
    e(f"v_permlane32_swap_b32 v{x}, v{t}")
    e(f"v_add_f32 v{x}, v{x}, v{t}")
    e(f"v_mov_b32 v{t}, v{x}")
    e(f"v_permlane16_swap_b32 v{x}, v{t}")
    e(f"v_add_f32 v{x}, v{x}, v{t}")
def round_bf16(x):
    e(f"v_cvt_pk_bf16_f32 v{x}, v{x}, v{x}")
    e(f"v_and_b32 v{x}, 0xffff0000, v{x}")
def sigmoid(x):
    e(f"v_mul_f32 v{x}, 0x{f2u(-1.4426950408889634):08x}, v{x}")
    e(f"v_exp_f32 v{x}, v{x}")
    e(f"v_add_f32 v{x}, 1.0, v{x}")
    e(f"v_rcp_f32 v{x}, v{x}")
def vmw(n): e(f"s_waitcnt vmcnt({n})")

def wq_steps(lo, hi):
    for S in range(lo, hi):
        e(f"s_add_u32 m0, s{sE}, {S*4096}")
        e(f"s_xor_b32 s{sA}, s{sWX}, {S*32768}")
        dma(10, rWQ, f"s{sA}")

def row_max(x):
    for n in (8, 4, 2, 1):
        e(f"v_max_u32_dpp v{x}, v{x}, v{x} row_ror:{n} row_mask:0xf bank_mask:0xf")

def zero_slots(t0):
    e(f"v_lshl_or_b32 v{t0+2}, s{sW}, 6, v{vL}")
    for i in range(2): e(f"v_mov_b32 v{t0+i}, 0")
    e(f"v_lshlrev_b32 v{t0+2}, 3, v{t0+2}")
    e(f"v_add_u32 v{t0+2}, {SLT}, v{t0+2}")
    e(f"ds_write_b64 v{t0+2}, {v(t0,2)}")

a.raw(f"""; fused gated-mix kernel: MQA attention (32 heads, d=16) + top-1 routed SwiGLU + sigmoid gate, one launch
; @launch grid=(256,1,1) block=(512,1,1) lds=163840
.amdgcn_target "amdgcn-amd-amdhsa--gfx950"
.text
.globl {NAME}_kernel
.p2align 12
.fill 832, 4, 0xbf800000
.p2align 8
.type {NAME}_kernel,@function
{NAME}_kernel:""")
e("s_cmp_ge_u32 s2, 256")
e("s_cbranch_scc1 L_end")
if cfg.hold: e("s_memrealtime s[98:99]")
xstamp(4, 5)
e("s_load_dwordx16 s[16:31], s[0:1], 0")
e("s_load_dwordx8 s[32:39], s[0:1], 64")
e("s_load_dwordx4 s[40:43], s[0:1], 96")
e(f"v_and_b32 v{vL}, 63, v0")
e("v_lshrrev_b32 v6, 6, v0")
e(f"v_and_b32 v{vTK}, 15, v0")
e(f"v_readfirstlane_b32 s{sW}, v6")
e(f"v_lshrrev_b32 v{vG}, 4, v{vL}")
e(f"v_lshlrev_b32 v{vL16}, 4, v{vL}")
e(f"v_lshlrev_b32 v{vL4}, 2, v{vL}")
if cfg.cpf:
    e("s_getpc_b64 s[64:65]")
    a.label("L_pc")
    e(f"s_lshr_b32 s{sA}, s2, 3")
    e(f"s_lshl_b32 s{sA}, s{sA}, 10")
    e(f"s_min_u32 s{sA}, s{sA}, L_code_end-L_pc-1024")
    e(f"v_add_u32 v9, s{sA}, v{vL16}")
    e(f"s_cmp_eq_u32 s{sW}, 7")
    e("s_cbranch_scc0 L_nocpf")
    e("global_load_dwordx4 v[48:51], v9, s[64:65]")
    a.label("L_nocpf")
e(f"s_and_b32 s{sA}, s2, 7")
e(f"s_lshr_b32 s{sHG}, s2, 5")
e(f"s_bfe_u32 s{sB}, s2, 0x20003")
e(f"s_lshl_b32 s{sGR}, s{sA}, 2")
e(f"s_add_u32 s{sGR}, s{sGR}, s{sB}")
e(f"s_mov_b32 s{sRHO}, s{sB}")
e(f"s_and_b32 s{sOH}, s{sHG}, 1")
e(f"s_lshr_b32 s{sTH}, s{sW}, 2")
e(f"s_xor_b32 s{sTH}, s{sTH}, s{sOH}")
e(f"s_bfe_u32 s{sPB}, s{sHG}, 0x10001")
e(f"s_lshl_b32 s{sXL}, s{sOH}, 1")
e(f"s_add_u32 s{sXL}, s{sXL}, s{sPB}")
e(f"s_xor_b32 s{sXL}, s{sXL}, s{sW}")
e(f"s_lshl_b32 s{sXL}, s{sXL}, 14")
e(f"s_lshl_b32 s{sXG}, s{sGR}, 16")
e(f"s_lshl_b32 s{sB}, s{sRHO}, 8")
e(f"v_xor_b32 v11, s{sB}, v{vL16}")
e(f"v_and_b32 v6, 16, v{vL}")
e("v_lshlrev_b32 v6, 3, v6")
e(f"v_xor_b32 v21, v6, v{vL16}")
for r_, n_ in ((rX, 2097152), (rWQ, 524288), (rT2, 16384), (rT1, 1024)):
    e(f"s_mov_b32 s{r_+2}, {n_}")
    e(f"s_mov_b32 s{r_+3}, 0x20000")
e(f"s_lshl_b32 s{sA}, s{sW}, 14")
e(f"s_xor_b32 s{sA}, s{sA}, s{sXL}")
e(f"s_lshl_b32 s{sB}, s{sW}, 12")
e(f"s_add_u32 s{sU}, s{sA}, s{sB}")
e(f"s_add_u32 s{sF}, s{sU}, s{sXG}")
e(f"s_lshl_b32 s{sC}, s{sW}, 6")
e(f"v_xor_b32 v12, s{sC}, v11")
for i in range(1, 4): e(f"v_xor_b32 v{12+i}, {16*i}, v12")
e(f"s_lshl_b32 s{sC}, s{sRHO}, 12")
e(f"s_xor_b32 s{sC}, s{sC}, s{sB}")
e(f"s_add_u32 s{sB}, s{sB}, {WKB}")
e(f"v_mov_b32 v53, {SCR+128}")
e("v_mov_b32 v19, 0")
e("ds_write_b32 v53, v19 offset:4")
e(f"s_mov_b32 m0, s{sU}")
e("s_waitcnt lgkmcnt(0)")
stamp("entry")
e(f"s_mov_b32 s{rX}, s{pX}")
e(f"s_mov_b32 s{rX+1}, s{pX+1}")
e(f"s_mov_b32 s{rWQ}, s{pWQ}")
e(f"s_mov_b32 s{rWQ+1}, s{pWQ+1}")
e(f"s_cmp_ge_u32 s{sHG}, 4")
e(f"s_cselect_b32 s{rT2}, s{pWV}, s{pWK}")
e(f"s_cselect_b32 s{rT2+1}, s{pWV+1}, s{pWK+1}")
e(f"s_cmp_ge_u32 s{sW}, 4")
e("s_cbranch_scc1 L_p1hi")
for i in range(4): dma(12 + i, rX, f"s{sF}", 1024 * i)
e(f"s_mov_b32 m0, s{sB}")
e(f"s_load_dword s{sT}, s[{pWS}:{pWS+1}], {WS_EP}")
for i in range(4): dma(21, rT2, f"s{sC}", 1024 * i)
e(f"s_cmp_ge_u32 s{sW}, 2")
e("s_cbranch_scc1 L_p1end")
e(f"s_lshl_b32 s{sA}, s{sW}, 10")
e(f"s_add_u32 m0, s{sA}, {RGB}")
e(f"s_cmp_eq_u32 s{sW}, 1")
e(f"s_cselect_b32 s{rT1}, s{pGW}, s{pWR}")
e(f"s_cselect_b32 s{rT1+1}, s{pGW+1}, s{pWR+1}")
dma(11, rT1, "0")
a.label("L_p1end")
e("s_barrier")
e("s_branch L_setup")
a.label("L_p1hi")
e("s_barrier")
wq_steps(0, cfg.whi)
def x_dma(lo=0, hi=16):
    for i in range(lo, hi):
        if i % 4 == 0 or i == lo:
            e(f"s_add_u32 m0, s{sXL}, {XB_ + (i>>2)*4096}")
            e(f"s_add_u32 s{sF}, s{sXG}, m0")
        e(f"v_xor_b32 v7, {i<<4}, v11")
        dma(7, rX, f"s{sF}", (i & 3) * 1024)
a.label("L_setup")
e(f"s_and_b32 s{sD}, s{sW}, 3")
e(f"s_and_b32 s{sA}, s{sW}, 1")
e(f"s_lshl_b32 s{sC}, s{sD}, 13")
e(f"s_lshl_b32 s{sB}, s{sA}, 2")
e(f"v_and_b32 v6, 1, v{vG}")
e("v_lshlrev_b32 v6, 1, v6")
e(f"v_or_b32 v6, s{sB}, v6")
e(f"v_and_b32 v7, 7, v{vL}")
e("v_xor_b32 v6, v6, v7")
e("v_lshlrev_b32 v6, 4, v6")
e(f"v_lshrrev_b32 v7, 3, v{vL}")
e("v_lshl_add_u32 v6, v7, 10, v6")
e(f"s_lshl_b32 s{sB}, s{sHG}, 7")
e(f"s_add_u32 s{sB}, s{sB}, s{sC}")
e(f"v_add_u32 v10, s{sB}, v6")
e(f"s_lshl_b32 s{sE}, s{sD}, 10")
e(f"s_add_u32 s{sE}, s{sE}, {WB}")
e(f"s_lshl_b32 s{sWX}, s{sRHO}, 17")
e(f"s_and_b32 s{sA}, s2, 7")
e(f"s_mov_b32 s{sB}, s{sRHO}")
e(f"s_lshl_b32 s{sC}, s{sB}, 3")
e(f"s_add_u32 s{sC}, s{sC}, s{sA}")
e(f"s_cmp_lt_u32 s{sC}, 28")
e(f"s_cselect_b32 s{sFV}, {0 if cfg.noffn else 1}, 0")
e(f"s_lshl_b32 s{sC}, s{sC}, 6")
e(f"s_lshl_b32 s{sB}, s{sHG}, 3")
e(f"s_add_u32 s{sF0}, s{sC}, s{sB}")
xstamp(5, 5)
e(f"s_lshl_b32 s{sTG}, s{sGR}, 1")
e(f"s_add_u32 s{sTG}, s{sTG}, s{sOH}")
e(f"s_lshl_b32 s{sID}, s{sGR}, 3")
e(f"s_add_u32 s{sID}, s{sID}, s{sHG}")
e(f"s_mov_b32 s{sFB}, 0")
srd(rWS, pWS, WS_BYTES)
e(f"v_lshlrev_b32 v8, 2, v{vTK}")
e(f"v_add_u32 v8, {SCR}, v8")
e("ds_write_b32 v8, v19")
e("ds_write_b32 v8, v19 offset:1024")
e("ds_write_b32 v8, v19 offset:1088")
zero_slots(22)
srd(rWO, pWO, 524288)
srd(rOUT, pOUT, 2097152)
def setup2():
    e(f"v_and_b32 v6, 11, v{vTK}")
    e("v_cmp_eq_u32 vcc, 0, v6")
    e("v_mov_b32 v7, 0x3f803f80")
    e(f"v_cndmask_b32 v{V1}, 0, v7, vcc")
    for i in range(1, 32): e(f"v_mov_b32 v{V1+i}, v{V1}")
    xstamp(6, 5)
    e(f"s_and_b32 s{sA}, s{sW}, 3")
    e(f"s_lshr_b32 s{sB}, s{sW}, 2")
    e(f"v_lshlrev_b32 v6, 3, v{vL}")
    for k in range(5):
        if k < 4:
            e(f"s_add_u32 s{sC}, s{sA}, {k}")
            e(f"s_and_b32 s{sC}, s{sC}, 3")
            e(f"s_lshl_b32 s{sD}, s{sB}, 2")
        else:
            e(f"s_add_u32 s{sC}, s{sA}, 2")
            e(f"s_and_b32 s{sC}, s{sC}, 3")
            e(f"s_xor_b32 s{sD}, s{sB}, 1")
            e(f"s_lshl_b32 s{sD}, s{sD}, 2")
        e(f"s_add_u32 s{sC}, s{sC}, s{sD}")
        e(f"s_lshl_b32 s{sD}, s{sC}, 11")
        e(f"s_add_u32 s{sD}, s{sD}, {SLD}")
        e(f"v_add_u32 v{vAd+k}, s{sD}, v{vL16}")
        e(f"s_lshl_b32 s{sD}, s{sC}, 9")
        e(f"s_add_u32 s{sD}, s{sD}, {SLT}")
        e(f"v_add_u32 v{vAt+k}, s{sD}, v6")
    e(f"s_lshl_b32 s{sA}, s{sA}, 1")
    for k in range(4):
        e(f"s_xor_b32 s{sC}, s{sB}, {k}")
        e(f"s_add_u32 s{sC}, s{sC}, s{sA}")
        e(f"s_and_b32 s{sC}, s{sC}, 7")
        e(f"s_lshl_b32 s{sC}, s{sC}, 10")
        e(f"s_add_u32 s{sC}, s{sC}, {QB}")
        e(f"v_add_u32 v{vNq+k}, s{sC}, v{vL16}")
    e(f"s_xor_b32 s{sC}, s{sB}, 7")
    e(f"s_add_u32 s{sC}, s{sC}, s{sA}")
    e(f"s_and_b32 s{sU}, s{sC}, 7")
    e(f"s_lshr_b32 s{sB}, s{sU}, 2")
    e(f"s_lshl_b32 s{sPO}, s{sB}, 15")
    e(f"s_and_b32 s{sC}, s{sU}, 3")
    e(f"s_lshl_b32 s{sC}, s{sC}, 10")
    e(f"s_add_u32 s{sPO}, s{sPO}, s{sC}")
    e(f"s_add_u32 s{sPO}, s{sPO}, s{sXG}")
    e(f"s_lshl_b32 s{sC}, s{sHG}, 12")
    e(f"s_add_u32 s{sPO}, s{sPO}, s{sC}")
    e(f"s_add_u32 s{sPO}, s{sPO}, {WS_O}")
    e(f"s_lshl_b32 s{sPI}, 1, s{sU}")
    e(f"s_lshr_b32 s{sC}, s2, 3")
    if cfg.kvrot == 0: e(f"s_mov_b32 s{sC}, 0")
    e(f"s_and_b32 s{sB}, s{sC}, 7")
    e(f"s_lshl_b32 s{sB}, s{sB}, 10")
    e(f"s_lshr_b32 s{sC}, s{sC}, 1")
    e(f"s_and_b32 s{sC}, s{sC}, 4")
    e(f"s_xor_b32 s{sC}, s{sC}, s{sW}")
    e(f"s_lshl_b32 s{sKV}, s{sC}, 13")
    e(f"s_add_u32 s{sKV}, s{sKV}, s{sB}")
    e(f"s_mov_b32 s{sHK}, 0")
    for w_ in range(8):
        m_ = sum(1 << p for p, d in JOBS.items() if w_ in d)
        if m_:
            e(f"s_cmp_eq_u32 s{sW}, {w_}")
            e(f"s_cselect_b32 s{sHK}, {m_}, s{sHK}")
    xstamp(7, 5)
def setup1():
    e(f"s_lshl_b32 s{sB}, s{sPB}, 14")
    e(f"s_lshl_b32 s{sC}, s{sTH}, 15")
    e(f"s_add_u32 s{sB}, s{sB}, s{sC}")
    for q in range(4):
        e(f"v_add_u32 v6, {4*q}, v{vG}")
        e(f"v_xor_b32 v6, v6, v{vTK}")
        e("v_lshlrev_b32 v6, 4, v6")
        e(f"v_lshl_add_u32 v6, v{vTK}, 10, v6")
        e(f"v_add_u32 v{12+q}, s{sB}, v6")
    e(f"v_lshrrev_b32 v8, 2, v{vTK}")
    e(f"v_and_b32 v9, 3, v{vTK}")
    e(f"v_and_b32 v6, 1, v{vG}")
    e("v_lshlrev_b32 v6, 7, v6")
    e(f"v_lshl_add_u32 v6, v{vG}, 8, v6")
    e("v_lshl_add_u32 v6, v8, 5, v6")
    e("v_lshl_add_u32 v6, v9, 3, v6")
    e(f"v_add_u32 v16, {WKB}, v6")
    e("v_xor_b32 v17, 128, v16")
    e(f"v_and_b32 v6, 1, v{vTK}")
    e("v_lshlrev_b32 v6, 10, v6")
    e(f"v_lshl_add_u32 v6, v{vG}, 4, v6")
    e(f"v_add_u32 v18, {RGB}, v6")
    e(f"v_and_b32 v6, 1, v{vG}")
    e("v_lshrrev_b32 v7, 1, v8")
    e("v_lshl_or_b32 v6, v6, 1, v7")
    e(f"s_and_b32 s{sA}, s{sW}, 3")
    e(f"v_xor_b32 v6, s{sA}, v6")
    e("v_lshlrev_b32 v6, 5, v6")
    e("v_lshl_add_u32 v6, v9, 3, v6")
    e(f"v_lshl_add_u32 v7, v{vG}, 3, v8")
    e("v_lshl_add_u32 v6, v7, 7, v6")
    e(f"v_add_u32 v26, {WB}, v6")
    e(f"s_lshl_b32 s{sA}, s{sPB}, 4")
    e(f"v_add_u32 v30, s{sA}, v{vTK}")
    e("v_mov_b32 v27, v30")
    e(f"v_lshrrev_b32 v6, 1, v{vG}")
    e("v_lshlrev_b32 v6, 9, v6")
    e(f"v_and_b32 v7, 1, v{vG}")
    e("v_lshl_add_u32 v6, v7, 3, v6")
    e(f"s_and_b32 s{sA}, s{sW}, 3")
    e(f"s_lshl_b32 s{sB}, s{sTH}, 2")
    e(f"s_add_u32 s{sA}, s{sA}, s{sB}")
    e(f"s_lshl_b32 s{sA}, s{sA}, 10")
    e(f"s_add_u32 s{sA}, s{sA}, {QB}")
    e(f"v_add_u32 v6, s{sA}, v6")
    e("v_lshl_add_u32 v28, v30, 4, v6")
    e("v_xor_b32 v29, 256, v28")
    e("v_lshlrev_b32 v30, 2, v30")
    e(f"v_add_u32 v30, {QN2}, v30")
    e("v_xor_b32 v31, 64, v30")
    e(f"v_and_b32 v6, 31, v{vL}")
    e(f"v_lshrrev_b32 v7, 5, v{vL}")
    e(f"v_lshlrev_b32 v{PP}, 5, v6")
    e(f"v_lshl_add_u32 v{PP}, v7, 4, v{PP}")
    e(f"v_lshlrev_b32 v{PP+2}, 2, v6")
    e(f"v_add_u32 v{PP+2}, {QN2}, v{PP+2}")
    e(f"v_lshlrev_b32 v{PP+3}, 7, v6")
    e("v_mov_b32 v52, 1")
def x_read(dst, S): e(f"ds_read_b128 {v(dst,4)}, v{12+(S&3)} offset:{(S>>2)*256}")
def xb_flip():
    for q in range(4): e(f"v_xor_b32 v{12+q}, 0x4000, v{12+q}")
ACC0 = QF; ACC1 = PP + 4
def rg_chain(X, acc):
    for S in range(5): e(f"ds_read_b128 {v(32+4*(S%5),4)}, v18 offset:{S*64}")
    for S in range(16):
        left = min(S + 5, 16) - (S + 1)
        e(f"s_waitcnt lgkmcnt({left})")
        mf16(acc, 32 + 4 * (S % 5), X + 4 * S, "0" if S == 0 else v(acc, 4))
        if S + 5 < 16: e(f"ds_read_b128 {v(32+4*(S%5),4)}, v18 offset:{(S+5)*64}")
def g_store(acc, flip):
    e("v_lshlrev_b32 v6, 2, v27")
    if flip: e("v_xor_b32 v6, 64, v6")
    e(f"v_add_u32 v6, {GB_}, v6")
    round_bf16(acc + 1)
    sigmoid(acc + 1)
    round_bf16(acc + 1)
    e(f"ds_write_b32 v6, v{acc+1}")
def side_addr(ffn):
    e(f"v_lshlrev_b32 v10, 2, v{vG}")
    e(f"v_xor_b32 v10, v10, v{vTK}")
    e("v_lshlrev_b32 v10, 4, v10")
    e(f"v_lshl_add_u32 v10, v{vG}, 10, v10")
    e(f"s_lshr_b32 s{sA}, s{sHG}, 1")
    e(f"s_lshl_b32 s{sA}, s{sA}, 8")
    e(f"v_add_u32 v10, s{sA}, v10")
    if not ffn: return
    e(f"s_movk_i32 s{sA}, 3584")
    e(f"v_mul_lo_u32 v11, v{vL}, s{sA}")
    e(f"s_lshl_b32 s{sA}, s{sF0}, 1")
    e(f"v_add_u32 v11, s{sA}, v11")
    e("v_mul_u32_u24 v16, 1088, v8")
    e(f"v_lshl_add_u32 v16, v{vG}, 5, v16")
    e("v_lshl_add_u32 v16, v9, 3, v16")
    e(f"v_add_u32 v16, {FB}, v16")
    e(f"v_cmp_eq_u32 vcc, v8, v{vG}")
    e(f"v_mov_b32 v6, {ZV}")
    e(f"v_mov_b32 v7, {HV}")
    e("v_cndmask_b32 v17, v6, v7, vcc")
    e(f"v_lshl_add_u32 v0, v{vG}, 2, v{vTK}")
    e("v_lshl_add_u32 v0, v0, 1, v7")
    e("v_lshrrev_b32 v6, 1, v9")
    e(f"v_mul_u32_u24 v6, {F_U-F_G}, v6")
    e("v_and_b32 v7, 1, v9")
    e("v_lshl_add_u32 v6, v7, 3, v6")
    e(f"v_lshl_add_u32 v7, v{vG}, 3, v8")
    e("v_lshl_add_u32 v8, v7, 4, v6")
    e(f"v_add_u32 v8, {FB}, v8")
    e(f"v_lshlrev_b32 v9, 4, v{vG}")
    e(f"v_add_u32 v9, {FB}, v9")
def p1_arrive():
    e("s_mov_b64 exec, 1")
    e("ds_add_u32 v53, v52 offset:4")
    e("s_mov_b64 exec, -1")
def p1_wait():
    Lw = L("p1w")
    a.label(Lw)
    e("ds_read_b32 v7, v53 offset:4")
    e("s_waitcnt lgkmcnt(0)")
    e("v_cmp_ne_u32 vcc, 4, v7")
    e("s_nop 1")
    e(f"s_cbranch_vccnz {Lw}")
WR = (32, 36, 40, 44, 48)
PR = XBr; P0 = CM + 8
def poll_load(): e(f"buffer_load_dwordx4 {v(PR,4)}, v{PP+3}, {s(rWS,4)}, s{sD} offen sc1")
def q_loop(both):
    n = 4 if both else 3
    D = 3 if both else 4
    def qrd(S):
        w = WR[S % 5]
        if both: e(f"ds_read_b128 {v(XA+4*S,4)}, v{20+(S&3)} offset:{(S>>2)*256}")
        x_read(XBr + 4 * S, S)
        e(f"ds_read_b64_tr_b16 {v(w,2)}, v26 offset:{S*4096}")
        e(f"ds_read_b64_tr_b16 {v(w+2,2)}, v26 offset:{S*4096+512}")
    e("ds_read_b32 v52, v53")
    for S in range(D): qrd(S)
    e(f"s_lshr_b32 s{sD}, s{sKV}, 13")
    e(f"s_lshl_b32 s{sD}, s{sD}, 12")
    e(f"s_add_u32 s{sD}, s{sD}, {WS_REC}")
    for S in range(16):
        if S + D == cfg.chunk:
            if both: vmw(0)
            e("s_barrier")
        if S + D < 16: qrd(S + D)
        left = min(S + D + 1, 16) - (S + 1)
        e(f"s_waitcnt lgkmcnt({n*left})")
        w = WR[S % 5]
        mf16(ACC0, w, XA + 4 * S, "0" if S == 0 else v(ACC0, 4))
        mf16(ACC1, w, XBr + 4 * S, "0" if S == 0 else v(ACC1, 4))
        if S == cfg.pollat: poll_load()
        if S == cfg.pollat0: e(f"buffer_load_dwordx4 {v(P0,4)}, v{PP+3}, {s(rWS,4)}, s{sD} offen sc1")
if cfg.split == 0:
    setup2(); setup1()
elif cfg.split == 1:
    setup1()
    e(f"s_cmp_ge_u32 s{sW}, 4")
    e("s_cbranch_scc0 L_s2")
    wq_steps(0, cfg.wfirst)
    a.label("L_s2")
    setup2()
xstamp(8, 5)
e(f"s_cmp_ge_u32 s{sW}, 4")
e("s_cbranch_scc1 L_2hi")
e(f"s_cmp_eq_u32 s{sW}, 0")
e("s_cbranch_scc0 L_2lo")
e(f"s_lshl_b32 s{sB}, s{sID}, 8")
e(f"s_add_u32 s{sB}, s{sB}, {WS_Y}")
e(f"buffer_store_dword v19, v{vL4}, {s(rWS,4)}, s{sB} offen sc1")
e("v_lshlrev_b32 v6, 5, v27")
e(f"v_lshl_add_u32 v6, v{vG}, 3, v6")
e(f"v_and_b32 v20, 1, v{vG}")
e("v_lshlrev_b32 v20, 9, v20")
e(f"v_lshl_add_u32 v20, v{vTK}, 4, v20")
e(f"v_lshrrev_b32 v7, 1, v{vG}")
e("v_lshl_add_u32 v20, v7, 3, v20")
e(f"s_lshl_b32 s{sB}, s{sPB}, 8")
e(f"s_add_u32 s{sB}, s{sB}, {WS_V}")
e(f"v_add_u32 v20, s{sB}, v20")
e(f"s_lshl_b32 s{sA}, s{sTG}, 10")
e(f"s_cmp_ge_u32 s{sHG}, 4")
e("s_cselect_b64 s[22:23], -1, 0")
e("v_cndmask_b32 v6, v6, v20, s[22:23]")
def kv_reads(S):
    x_read(XA + 4 * S, S)
    w = 32 + 4 * (S % 5)
    e(f"ds_read_b64_tr_b16 {v(w,2)}, v16 offset:{S*1024}")
    e(f"ds_read_b64_tr_b16 {v(w+2,2)}, v17 offset:{S*1024}")
if cfg.w0prio: e("s_setprio 3")
vmw(1)
xstamp(9, 5)
p1_arrive()
p1_wait()
xstamp(12); xstamp(10, 5)
for S in range(4): kv_reads(S)
for S in range(16):
    if S + 4 < 16: kv_reads(S + 4)
    left = min(S + 5, 16) - (S + 1)
    e(f"s_waitcnt lgkmcnt({3*left})")
    w = 32 + 4 * (S % 5)
    mf16(ACC0, w, XA + 4 * S, "0" if S == 0 else v(ACC0, 4))
    mf16(ACC1, XA + 4 * S, w, "0" if S == 0 else v(ACC1, 4))
xb_flip()
for i in range(4): e(f"v_cndmask_b32 v{ACC1+i}, v{ACC0+i}, v{ACC1+i}, s[22:23]")
e(f"v_cvt_pk_bf16_f32 v20, v{ACC1}, v{ACC1+1}")
e(f"v_cvt_pk_bf16_f32 v21, v{ACC1+2}, v{ACC1+3}")
e(f"buffer_store_dwordx2 v[20:21], v6, {s(rWS,4)}, s{sA} offen sc1")
xstamp(13)
rg_chain(XA, ACC1)
e(f"v_mul_f32 v23, v{ACC0}, v{ACC0}")
for i in range(1, 4): e(f"v_fmac_f32 v23, v{ACC0+i}, v{ACC0+i}")
sum_over_g(23, 22)
row_max(23)
e("v_cndmask_b32 v23, v23, v19, s[22:23]")
e(f"s_lshl_b32 s{sA}, s{sTG}, 5")
e(f"v_add_u32 v6, s{sA}, v27")
e(f"s_mul_i32 s{sT}, s{sT}, 0x9e3779b9")
e(f"s_add_u32 s{sT}, s{sT}, 0x7f4a7c15")
e(f"v_mov_b32 v22, s{sT}")
e(f"v_mov_b32 v24, s{sT}")
e("ds_write_b32 v53, v22")
e(f"s_lshl_b32 s{sB}, s{sID}, 7")
e(f"s_add_u32 s{sB}, s{sB}, {WS_REC}")
round_bf16(ACC1)
e(f"v_ashrrev_i32 v25, 31, v{ACC1}")
e("v_or_b32 v25, 0x80000000, v25")
e(f"v_xor_b32 v25, v25, v{ACC1}")
e("v_and_b32 v25, 0xffff0000, v25")
e("v_or_b32 v25, v25, v6")
row_max(25)
e("s_mov_b64 exec, 1")
vmw(0)
e(f"buffer_store_dwordx4 v[22:25], v19, {s(rWS,4)}, s{sB} offen sc1")
e("s_mov_b64 exec, -1")
xstamp(14)
round_bf16(ACC1 + 1)
sigmoid(ACC1 + 1)
round_bf16(ACC1 + 1)
e("v_lshlrev_b32 v6, 2, v6")
e(f"s_mov_b32 s{sB}, {WS_G}")
e("s_mov_b64 exec, 0xffff")
e(f"buffer_store_dword v{ACC1+1}, v6, {s(rWS,4)}, s{sB} offen sc1")
e("s_mov_b64 exec, -1")
side_addr(False)
if cfg.w0prio: e("s_setprio 0")
e("s_waitcnt lgkmcnt(0)")
e("s_branch L_B1lo")
a.label("L_2hi")
xstamp(12)
wq_steps(cfg.wfirst if cfg.split else 0, 16)
for q in range(4): e(f"v_mov_b32 v{20+q}, v{12+q}")
xb_flip()
side_addr(False)
xstamp(13); xstamp(9, 5)
e(f"s_waitcnt vmcnt({16-cfg.chunk}) lgkmcnt(0)")
xstamp(14); xstamp(10, 5)
e("s_branch L_qhi")
a.label("L_2lo")
x_dma(0, cfg.narr)
vmw(cfg.narr)
xstamp(12); xstamp(9, 5)
p1_arrive()
x_dma(cfg.narr, 16)
p1_wait()
for S in range(16): x_read(XA + 4 * S, S)
xb_flip()
side_addr(True)
xstamp(13)
vmw(0)
xstamp(14); xstamp(10, 5)
a.label("L_B1lo")
e("s_barrier")
stamp("B1a")
q_loop(False)
e("s_branch L_qend")
a.label("L_qhi")
if cfg.stamps in (1, 3): STAMPS.pop()
e("s_barrier")
stamp("B1a")
q_loop(True)
a.label("L_qend")
e(f"v_mov_b32 v26, v{PP}")
e(f"v_add_u32 v27, {WS_V}, v{vL16}")
e(f"s_mov_b32 s{sSPIN}, 0")
e(f"v_readfirstlane_b32 s{sT}, v52")
stamp("qdone")
if cfg.pollat0 >= 0:
    vmw(1)
    e(f"v_xor_b32 v6, s{sT}, v{P0}")
    e(f"v_xor_b32 v7, s{sT}, v{P0+2}")
    e("v_or_b32 v6, v6, v7")
    e("v_cmp_ne_u32 vcc, 0, v6")
    e("s_nop 1")
    e("s_cbranch_vccz L_pollok")
a.label("L_poll")
e("s_waitcnt vmcnt(0)")
e(f"v_xor_b32 v6, s{sT}, v{PR}")
e(f"v_xor_b32 v7, s{sT}, v{PR+2}")
e("v_or_b32 v6, v6, v7")
e("v_cmp_ne_u32 vcc, 0, v6")
e(f"s_add_u32 s{sSPIN}, s{sSPIN}, 1")
e(f"s_cmp_gt_u32 s{sSPIN}, {cfg.spin}")
e("s_cbranch_scc1 L_pollout")
e("s_cbranch_vccz L_pollout")
if cfg.psleep: e(f"s_sleep {cfg.psleep}")
poll_load()
e("s_branch L_poll")
a.label("L_pollout")
if cfg.pollat0 >= 0:
    e(f"v_mov_b32 v{P0+1}, v{PR+1}")
    e(f"v_mov_b32 v{P0+3}, v{PR+3}")
    a.label("L_pollok")
    PR = P0
stamp("polled")
def kv_load(j):
    e(f"s_xor_b32 s{sB}, s{sKV}, {j*1024}")
    e(f"buffer_load_dwordx4 {v(KF+4*j,4)}, v26, {s(rWS,4)}, s{sB} offen sc1")
    e(f"buffer_load_dwordx4 {v(V0+4*j,4)}, v27, {s(rWS,4)}, s{sB} offen sc1")
e(f"s_cmp_ge_u32 s{sW}, 4")
e("s_cbranch_scc1 L_kvl1")
for j in range(cfg.kv0): kv_load(j)
a.label("L_kvl1")
e(f"s_mov_b32 s{sC}, 0x{f2u(CSCALE):08x}")
for hf, acc in ((0, ACC0), (1, ACC1)):
    for i in range(4): e(f"v_mul_f32 v{acc+i}, s{sC}, v{acc+i}")
    e(f"v_cvt_pk_bf16_f32 v{20+2*hf}, v{acc}, v{acc+1}")
    e(f"v_cvt_pk_bf16_f32 v{21+2*hf}, v{acc+2}, v{acc+3}")
    e(f"ds_write_b64 v{28+hf}, {v(20+2*hf,2)}")
    e(f"v_mul_f32 v{24+hf}, v{acc}, v{acc}")
    for i in range(1, 4): e(f"v_fmac_f32 v{24+hf}, v{acc+i}, v{acc+i}")
e("v_mov_b32 v6, v24")
e("v_mov_b32 v7, v25")
e(f"v_max_u32_dpp v{PR+1}, v{PR+1}, v{PR+1} row_ror:8 row_mask:0xf bank_mask:0xf")
e(f"v_max_u32_dpp v{PR+3}, v{PR+3}, v{PR+3} row_ror:8 row_mask:0xf bank_mask:0xf")
e("v_permlane32_swap_b32 v24, v6")
e("v_permlane32_swap_b32 v25, v7")
e(f"v_max_u32_dpp v{PR+1}, v{PR+1}, v{PR+1} row_ror:4 row_mask:0xf bank_mask:0xf")
e(f"v_max_u32_dpp v{PR+3}, v{PR+3}, v{PR+3} row_ror:4 row_mask:0xf bank_mask:0xf")
e("v_add_f32 v24, v24, v6")
e("v_add_f32 v25, v25, v7")
e(f"v_max_u32_dpp v{PR+1}, v{PR+1}, v{PR+1} row_ror:2 row_mask:0xf bank_mask:0xf")
e(f"v_max_u32_dpp v{PR+3}, v{PR+3}, v{PR+3} row_ror:2 row_mask:0xf bank_mask:0xf")
e("v_mov_b32 v6, v24")
e("v_mov_b32 v7, v25")
e(f"v_max_u32_dpp v{PR+1}, v{PR+1}, v{PR+1} row_ror:1 row_mask:0xf bank_mask:0xf")
e(f"v_max_u32_dpp v{PR+3}, v{PR+3}, v{PR+3} row_ror:1 row_mask:0xf bank_mask:0xf")
e("v_permlane16_swap_b32 v24, v6")
e("v_permlane16_swap_b32 v25, v7")
e(f"v_mov_b32 v18, {SCR}")
e("v_add_f32 v24, v24, v6")
e("v_add_f32 v25, v25, v7")
e("s_mov_b64 exec, 0xffff")
e("ds_max_u32 v30, v24")
e("ds_max_u32 v31, v25")
e("s_mov_b64 exec, 0x10001")
e(f"ds_max_u32 v18, v{PR+1} offset:8")
e(f"ds_max_u32 v18, v{PR+3} offset:12")
e("s_mov_b64 exec, -1")
e(f"s_cmp_ge_u32 s{sW}, 4")
e("s_cbranch_scc1 L_kvl1b")
for j in range(cfg.kv0, cfg.kv1): kv_load(j)
a.label("L_kvl1b")
e("s_waitcnt lgkmcnt(0)")
stamp("prepoll")
e("s_barrier")
stamp("B6")
e("ds_read_b64 v[6:7], v18 offset:8")
e(f"ds_read_b32 v19, v{PP+2}")
e(f"ds_read_b128 {v(QF,4)}, v{vNq}")
def young_loads():
    e(f"s_cmp_ge_u32 s{sW}, 4")
    e("s_cbranch_scc0 L_kvl2")
    for j in range(8): kv_load(j)
    a.label("L_kvl2")
if not cfg.ylate: young_loads()
e("s_waitcnt lgkmcnt(1)")
e("v_mul_f32 v19, v19, v6")
e("v_sqrt_f32 v19, v19")
e(f"v_readfirstlane_b32 s{sR16}, v7")
e(f"v_mul_f32 v{CM}, 0x{f2u(-1.02 * (8.0 if cfg.force_fallback else 1.0)):08x}, v19")
for i in range(1, 16): e(f"v_mov_b32 v{CM+i}, v{CM}")
if cfg.ylate: young_loads()
if cfg.prio: e("s_setprio 3")
e(f"s_waitcnt vmcnt({2*cfg.kv1-1}) lgkmcnt(0)")
mf32(S0, KF, QF, v(CM, 16))
stamp("K0")
e(f"s_and_b32 s{sSEL}, s{sR16}, 0x7ff")
e(f"s_lshr_b32 s{sC}, s{sSEL}, 5")
e(f"s_cmp_eq_u32 s{sC}, s{sTG}")
e(f"s_cselect_b32 s{sOWN}, 1, 0")
e(f"s_and_b32 s{sR16}, s{sR16}, 0xffff0000")
e(f"s_cmp_lt_u32 s{sW}, 4")
e(f"s_cselect_b32 s{sC}, s{sOWN}, 0")
e(f"s_lshl_b32 s{sC}, s{sC}, 14")
e(f"s_or_b32 s{sHK}, s{sHK}, s{sC}")
e("s_nop 3")

a.label("L_attn")
if cfg.perm: e("s_mov_b32 s25, 0x07060302")
e(f"v_mov_b32 v52, {GOW}")
e(f"s_mov_b32 s{sIT}, 0")
STUBS = []
a.strict = True
for st in range(8):
    O = (O0, O1)[st & 1]; Op = (O1, O0)[st & 1]
    k = st & 3
    for j in range(8):
        t = st * 8 + j
        Sc = (S0, S1)[t & 1]; Sn = (S1, S0)[t & 1]
        jn = (j + 1) & 7
        def ex(p):
            e(f"v_exp_f32 v{Sc+2*p}, v{Sc+2*p}")
            e(f"v_exp_f32 v{Sc+2*p+1}, v{Sc+2*p+1}")
        def cv(p):
            if cfg.perm: e(f"v_perm_b32 v{PP+p}, v{Sc+2*p+1}, v{Sc+2*p}, s25")
            else: e(f"v_cvt_pk_bf16_f32 v{PP+p}, v{Sc+2*p}, v{Sc+2*p+1}")
        def init_reads():
            kk = k if st < 7 else 4
            e(f"ds_read_b64 {v(Op+8,2)}, v{vAt+kk}")
            e(f"ds_read_b128 {v(Op,4)}, v{vAd+kk}")
            e(f"ds_read_b128 {v(Op+4,4)}, v{vAd+kk} offset:1024")
            if st == 7: e("ds_read_b32 v53, v52")
        if j == 7 and st < 7:
            e("s_waitcnt lgkmcnt(0)")
            if st == 7: e(f"v_mul_u32_u24 v{Op+9}, v53, v{Op+9}")
            if st > 0: e(f"v_cmp_ne_u32 vcc, {st if st < 7 else 7*NGO}, v{Op+9}")
            if st < 7:
                e(f"s_cmp_eq_u32 s{sFB}, 0")
                e(f"s_cbranch_scc0 L_fbc_{st+1}")
            else:
                e("s_nop 1")
            a.label(f"L_fbr_{st+1}")
            if st > 0: e(f"s_cbranch_vccnz L_retry_{st}")
            a.label(f"L_ok_{st}")
            stamp(f"st{st}", (2,))
            if st > 0: STUBS.append((st, Op, k if st < 7 else 4))
        if cfg.prio and t in (cfg.pa, cfg.pb, cfg.pc): e(f"s_setprio {2 - (cfg.pa, cfg.pb, cfg.pc).index(t)}")
        def smf():
            if st == 0 and j < 7: vmw(15 - 2 * jn)
            if not (st == 7 and j == 7):
                mf32(Sn, KF + 4 * jn, QF, v(CM, 16))
        def pv1():
            if j == 0:
                if st > 0: mf32(Op, V1 + 4 * 7, PP + 4, v(Op, 16))
            else: mf32(O, V1 + 4 * (j - 1), PP + 4, v(O, 16))
        def side():
            if st == 0:
                if j == 7: vmw(0)
                for i in range(4): e(f"v_permlane16_swap_b32 v{V0+4*j+i}, v{V1+4*j+i}")
            if j == 6 and st < 7:
                kn = (st + 1) & 3
                if st + 1 >= 4: e(f"v_xor_b32 v{vNq+kn}, 4096, v{vNq+kn}")
                e(f"ds_read_b128 {v(QF,4)}, v{vNq+kn}")
            if j == (5 if st < 7 else 6) and st > 0: init_reads()
        if st == 0 and j == 0 and cfg.kv1 < 8:
            Lk = L("nokv")
            e(f"s_cmp_ge_u32 s{sW}, 4")
            e(f"s_cbranch_scc1 {Lk}")
            for jj in range(cfg.kv1, 8): kv_load(jj)
            a.label(Lk)
        ex(0); pv1(); ex(1); ex(2); cv(0); smf(); ex(3); cv(1); ex(4); cv(2); ex(5); cv(3); side(); ex(6)
        mf32(O, V0 + 4 * j, PP, "0" if (j == 0 and st < 2) else v(O, 16))
        cv(4); ex(7); cv(5); cv(6); cv(7)
        if t < 10: stamp(f"t{t}", (7,))
        if j == 0 and st > 0:
            kp = (st - 1) & 3
            e(f"v_mov_b32 v{Op+9}, {st}")
            e(f"ds_write_b128 v{vAd+kp}, {v(Op,4)}")
            e(f"ds_write_b128 v{vAd+kp}, {v(Op+4,4)} offset:1024")
            e(f"ds_write_b64 v{vAt+kp}, {v(Op+8,2)}")
        if j in (0, 4) and (2 * st + j // 4) in JOBS:
            p_ = 2 * st + j // 4
            e(f"s_bitcmp1_b32 s{sHK}, {p_}")
            e(f"s_cbranch_scc1 L_hook{p_}")
            a.label(f"L_hret{p_}")
a.strict = False
e(f"v_mov_b32 v50, {FBF}")
e(f"s_cmp_ge_u32 s{sW}, 4")
mf32(O1, V1 + 4 * 7, PP + 4, v(O1, 16))
if cfg.prio: e("s_setprio 3")
e("s_cbranch_scc1 L_tfin")
WF = 64; OF = 128; AC = V1; RES = 24; T = CM
sCT = 18; sOA = 19; sOB = 20; sMA = 21; sMB = 22; sMX = 23; sXO = 24
e(f"s_and_b32 s{sC}, s{sW}, 1")
e(f"s_lshr_b32 s{sD}, s{sW}, 1")
e(f"s_lshl_b32 s{sCT}, s{sC}, 1")
e(f"s_add_u32 s{sCT}, s{sCT}, s{sD}")
e(f"s_lshl_b32 s{sF}, s{sTG}, 15")
e(f"s_add_u32 s{sA}, s{sF}, {WS_O}")
e(f"s_lshr_b32 s{sB}, s{sHG}, 1")
e(f"s_lshl_b32 s{sB}, s{sB}, 8")
e(f"s_add_u32 s{sF}, s{sF}, s{sB}")
e(f"s_lshl_b32 s{sB}, s{sCT}, 6")
e(f"s_add_u32 s{sF}, s{sF}, s{sB}")
e(f"v_and_b32 v{T+4}, 31, v{vL}")
e(f"v_lshrrev_b32 v{T+5}, 5, v{vL}")
e(f"v_lshlrev_b32 v{T+6}, 10, v{T+4}")
e(f"v_lshl_add_u32 v{T+7}, v{T+5}, 4, v{T+6}")
e(f"v_lshl_add_u32 v{T+6}, v{T+5}, 3, v{T+6}")
for q in range(4):
    e(f"buffer_load_dwordx2 {v(40+2*q,2)}, v{T+6}, {s(rX,4)}, s{sF} offen offset:{16*q}")
if cfg.otlb: e(f"buffer_load_dword v{T+12}, v{T+7}, {s(rOUT,4)}, s{sF} offen")
e(f"s_lshl_b32 s{sD}, s{sD}, 1")
e(f"s_sub_u32 s{sE}, 3, s{sD}")
e(f"s_lshl_b32 s{sB}, s{sE}, 10")
e(f"s_add_u32 s{sOA}, s{sA}, s{sB}")
e(f"s_lshl_b32 s{sB}, s{sD}, 10")
e(f"s_add_u32 s{sOB}, s{sA}, s{sB}")
e(f"s_lshl_b32 s{sB}, s{sOH}, 2")
e(f"s_add_u32 s{sC}, s{sB}, s{sE}")
e(f"s_lshl_b32 s{sMA}, 1, s{sC}")
e(f"s_add_u32 s{sC}, s{sB}, s{sD}")
e(f"s_lshl_b32 s{sMB}, 1, s{sC}")
e(f"s_or_b32 s{sMB}, s{sMB}, 0xaa")
e(f"s_xor_b32 s{sC}, s{sW}, 2")
e(f"s_lshl_b32 s{sMX}, 0x100, s{sC}")
e(f"s_lshl_b32 s{sXO}, 0x100, s{sW}")
e(f"v_lshrrev_b32 v{T+2}, 2, v{vTK}")
e(f"v_and_b32 v{T+3}, 3, v{vTK}")
e(f"v_and_b32 v{T}, 1, v{vG}")
e(f"s_lshl_b32 s{sB}, s{sCT}, 1")
e(f"v_or_b32 v{T}, s{sB}, v{T}")
e(f"v_lshlrev_b32 v{T+1}, 1, v{T+2}")
e(f"v_xor_b32 v{T}, v{T}, v{T+1}")
e(f"v_lshlrev_b32 v{T}, 5, v{T}")
e(f"v_lshl_add_u32 v{T}, v{T+3}, 3, v{T}")
e(f"v_lshl_add_u32 v{T+1}, v{T+5}, 2, v{T+2}")
e(f"v_lshl_add_u32 v{T}, v{T+1}, 8, v{T}")
e(f"s_lshl_b32 s{sB}, s{sE}, 12")
e(f"v_add_u32 v{T}, s{sB}, v{T}")
e(f"v_xor_b32 v{T+1}, 64, v{T}")
e(f"v_add_u32 v{T+2}, 0x10000, v{T}")
e(f"v_add_u32 v{T+3}, 0x10000, v{T+1}")
e(f"v_lshlrev_b32 v{T+6}, 2, v{T+4}")
e(f"s_lshl_b32 s{sB}, s{sW}, 13")
e(f"s_add_u32 s{sB}, s{sB}, 4096")
e(f"v_add_u32 v{T+9}, s{sB}, v{vL16}")
e(f"v_xor_b32 v{T+10}, 0x4000, v{T+9}")
e(f"v_mov_b32 v{T+11}, s{sXO}")
a.label("L_gow")
e("ds_read_b32 v51, v52")
e("s_waitcnt lgkmcnt(0)")
e(f"v_readfirstlane_b32 s{sC}, v51")
e(f"s_and_b32 s{sC}, s{sC}, 7")
e(f"s_cmp_eq_u32 s{sC}, {NGO}")
e("s_cbranch_scc0 L_gow")
e(f"s_lshl_b32 s{sB}, s{sTG}, 7")
e(f"s_add_u32 s{sB}, s{sB}, {WS_G}")
e(f"buffer_load_dword v48, v{T+6}, {s(rWS,4)}, s{sB} offen sc1")
def wo_reads(lo=0, hi=8):
    for i in range(lo, hi):
        for c in range(2):
            b = T + c + (2 if i >= 4 else 0); o = (i & 3) * 16384
            e(f"ds_read_b64_tr_b16 {v(WF+8*i+4*c,2)}, v{b} offset:{o}")
            e(f"ds_read_b64_tr_b16 {v(WF+8*i+4*c+2,2)}, v{b} offset:{o+2048}")
def o_loads(par, lo, hi):
    for i in range(lo, hi):
        e(f"s_add_u32 s{sB}, s{sOA if par else sOB}, {i*4096}")
        e(f"buffer_load_dwordx4 {v(OF+4*i,4)}, v{vL16}, {s(rWS,4)}, s{sB} offen sc1")
GSTUB = []
def pub_wait(m):
    Lw = L("pw")
    a.label(Lw)
    e("ds_read_b32 v51, v50")
    e("s_waitcnt lgkmcnt(0)")
    e(f"v_readfirstlane_b32 s{sC}, v51")
    e(f"s_and_b32 s{sC}, s{sC}, s{m}")
    e(f"s_cmp_eq_u32 s{sC}, s{m}")
    e(f"s_cbranch_scc0 {Lw}")
def o_half(par):
    for gq in range(4):
        a.label(f"L_oc{par}{gq}")
        vmw(6 - 2 * gq)
        R = OF + 8 * gq
        e(f"v_max3_u32 v{T+8}, v{R}, v{R+1}, v{R+2}")
        e(f"v_max3_u32 v{T+8}, v{T+8}, v{R+3}, v{R+4}")
        e(f"v_max3_u32 v{T+8}, v{T+8}, v{R+5}, v{R+6}")
        e(f"v_max_u32 v{T+8}, v{T+8}, v{R+7}")
        e(f"v_cmp_eq_u32 vcc, -1, v{T+8}")
        e("s_nop 0")
        e(f"s_cbranch_vccnz L_or{par}{gq}")
        a.label(f"L_og{par}{gq}")
        order = [(i, c) for i in range(2 * gq, 2 * gq + 2) for c in (1, 0)]
        if par == 0 and gq == 3: order = [(6, 1), (7, 1), (6, 0), (7, 0)]
        for i, c in order:
            mf32(AC + 16 * c, WF + 8 * i + 4 * c, OF + 4 * i, "0" if (par == 1 and i == 0) else v(AC + 16 * c, 16))
            if par == 1 and c == 0: wo_reads(i, i + 1)
        GSTUB.append((par, gq))
wo_reads()
e(f"s_mov_b32 s{sSPIN}, 0")
e(f"s_sub_u32 s{sB}, s{sOB}, s{sOA}")
e(f"s_lshl_b32 s{sB}, s{sB}, 2")
for i in range(4): e(f"v_add_u32 v{T+i}, s{sB}, v{T+i}")
xstamp(5, 6)
e("s_branch L_retry_7b")
a.label("L_tfin")
e("s_waitcnt lgkmcnt(0)")
e(f"v_mul_u32_u24 v{O0+9}, v53, v{O0+9}")
e(f"v_cmp_ne_u32 vcc, {7*NGO}, v{O0+9}")
e("s_nop 4")
e("s_cbranch_vccnz L_retry_7")
a.label("L_ok_7")
STUBS.append((7, O0, 4))
e(f"v_readfirstlane_b32 s{sD}, v53")
e(f"v_mov_b32 v7, s{sPI}")
e(f"v_add_f32 v{O1+8}, v{O1+8}, v{O0+8}")
stamp("loopend")
for r in range(4): e(f"v_add_f32 v{O1+r}, v{O1+r}, v{O0+r}")
e(f"v_rcp_f32 v51, v{O1+8}")
for r in range(4, 8): e(f"v_add_f32 v{O1+r}, v{O1+r}, v{O0+r}")
e(f"v_cmp_gt_f32 vcc, 0x{f2u(2.0**-80):08x}, v{O1+8}")
for r in range(8): e(f"v_mul_f32 v{O1+r}, v{O1+r}, v51")
for r in range(4):
    e(f"v_cvt_pk_bf16_f32 v{PP+r}, v{O1+2*r}, v{O1+2*r+1}")
e(f"s_cmp_eq_u32 s{sD}, {NGO}")
for r in range(4): e(f"v_min_u32 v{PP+r}, -2, v{PP+r}")
e("s_cbranch_vccnz L_bad")
e("s_cbranch_scc1 L_pubx")
e(f"buffer_store_dwordx4 {v(PP,4)}, v{vL16}, {s(rWS,4)}, s{sPO} offen")
a.label("L_nopub")
e("s_mov_b64 exec, 1")
e("ds_add_u32 v50, v7")
e("s_mov_b64 exec, -1")
stamp("opub"); xstamp(4, 6)
e(f"s_cmp_ge_u32 s{sW}, 4")
e("s_cbranch_scc1 L_tbar")
pub_wait(sMA)
xstamp(6, 6)
o_loads(1, 0, 8)
xstamp(7, 6)
o_half(1)
xstamp(9, 6)
if cfg.stamps == 6: e(f"s_mov_b32 s{sST+15}, s{sSPIN}")
stamp("half1")
pub_wait(sMB)
stamp("B8"); xstamp(11, 6)
o_loads(0, 0, 8)
xstamp(12, 6)
e("v_sub_f32 v49, 1.0, v48")
for q in range(4):
    e(f"v_lshlrev_b32 v{RES+4*q}, 16, v{40+2*q}")
    e(f"v_and_b32 v{RES+4*q+1}, 0xffff0000, v{40+2*q}")
    e(f"v_lshlrev_b32 v{RES+4*q+2}, 16, v{41+2*q}")
    e(f"v_and_b32 v{RES+4*q+3}, 0xffff0000, v{41+2*q}")
e(f"s_cmp_eq_u32 s{sOWN}, 1")
e("s_cbranch_scc1 L_y")
a.label("L_noy")
for i in range(16): e(f"v_mul_f32 v{RES+i}, v{RES+i}, v49")
o_half(0)
for q in range(4): e(f"ds_write_b128 v{T+9}, {v(AC+16+4*q,4)} offset:{1024*q}")
e("s_mov_b64 exec, 1")
e(f"ds_add_u32 v50, v{T+11}")
e("s_mov_b64 exec, -1")
stamp("ogath"); xstamp(13, 6)
for i in range(16): e(f"v_fmac_f32 v{RES+i}, v{AC+i}, v48")
a.label("L_xw")
e("ds_read_b32 v51, v50")
for q in range(4): e(f"ds_read_b128 {v(OF+4*q,4)}, v{T+10} offset:{1024*q}")
e("s_waitcnt lgkmcnt(4)")
e(f"v_readfirstlane_b32 s{sC}, v51")
e(f"s_and_b32 s{sB}, s{sC}, s{sMX}")
e("s_cbranch_scc0 L_xr")
e("s_waitcnt lgkmcnt(0)")
for i in range(16): e(f"v_fmac_f32 v{RES+i}, v{OF+i}, v48")
xstamp(10, 6)
for i in range(8): e(f"v_cvt_pk_bf16_f32 v{PP+i}, v{RES+2*i}, v{RES+2*i+1}")
for k in (0, 4):
    e(f"v_permlane32_swap_b32 v{PP+k}, v{PP+k+2}")
    e(f"v_permlane32_swap_b32 v{PP+k+1}, v{PP+k+3}")
for k in (0, 4):
    e(f"buffer_store_dwordx4 {v(PP+k,4)}, v{T+7}, {s(rOUT,4)}, s{sF} offen offset:{8*k}")
if cfg.stamps == 1: e(f"s_mov_b32 s{sST+15}, s{sSPIN}")
e(f"s_or_b32 s{sA}, s2, s{sW}")
e("s_cbranch_scc1 L_nobump")
e("v_mov_b32 v6, 0")
e(f"v_mov_b32 v7, s{sT}")
e(f"s_mov_b32 s{sA}, {WS_EP}")
e(f"buffer_store_dword v7, v6, {s(rWS,4)}, s{sA} offen")
a.label("L_nobump")
a.label("L_tbar")
e("s_waitcnt lgkmcnt(0)")
e("s_barrier")
e("ds_read_b32 v51, v50")
e("s_waitcnt lgkmcnt(0)")
e(f"v_readfirstlane_b32 s{sC}, v51")
e(f"s_cmp_ge_u32 s{sC}, 0x10000")
e("s_cbranch_scc1 L_fallback")
if cfg.hold == 1: stamp("end")
if cfg.stamps:
    stamp("stored")
    e("s_waitcnt vmcnt(0)")
    stamp("end")
    if cfg.dbgwg >= 0:
        e(f"s_cmp_eq_u32 s2, {cfg.dbgwg}")
        e("s_cbranch_scc0 L_end")
        e(f"s_cmp_eq_u32 s{sW}, {cfg.dbgwave}")
        e("s_cbranch_scc0 L_end")
        e("v_mov_b32 v6, 0")
        srd(rDBG, pDBG, 256)
        for i in range(1, 16): e(f"s_sub_u32 s{sST+i}, s{sST+i}, s{sST}")
        for q in range(4):
            for i in range(4): e(f"v_mov_b32 v{8+i}, s{sST+4*q+i}")
            e(f"buffer_store_dwordx4 v[8:11], v6, {s(rDBG,4)}, 0 offen offset:{16*q}")
            e("s_nop 1")
    else:
        a.label("L_dump")
        e(f"s_lshl_b32 s{sA}, s2, 3")
        e(f"s_add_u32 s{sA}, s{sA}, s{sW}")
        e(f"s_lshl_b32 s{sA}, s{sA}, 6")
        e(f"s_add_u32 s{sA}, s{sA}, {WS_STAMP}")
        e("v_mov_b32 v6, 0")
        for q in range(4):
            for i in range(4): e(f"v_mov_b32 v{8+i}, s{sST+4*q+i}")
            e(f"buffer_store_dwordx4 v[8:11], v6, {s(rWS,4)}, s{sA} offen offset:{16*q}")
            e("s_nop 1")
a.label("L_end")
e("s_endpgm")

for st, Op, kk in STUBS:
    a.label(f"L_retry_{st}")
    a.hist = []
    e("s_sleep 1")
    e(f"s_add_u32 s{sIT}, s{sIT}, 1")
    e(f"s_cmp_gt_u32 s{sIT}, {cfg.spin*16}")
    e(f"s_cbranch_scc1 L_ok_{st}")
    if st == 7: a.label("L_retry_7b")
    e(f"ds_read_b64 {v(Op+8,2)}, v{vAt+kk}")
    e(f"ds_read_b128 {v(Op,4)}, v{vAd+kk}")
    e(f"ds_read_b128 {v(Op+4,4)}, v{vAd+kk} offset:1024")
    if st == 7: e("ds_read_b32 v53, v52")
    e("s_waitcnt lgkmcnt(0)")
    if st == 7: e(f"v_mul_u32_u24 v{Op+9}, v53, v{Op+9}")
    e(f"v_cmp_ne_u32 vcc, {st if st < 7 else 7*NGO}, v{Op+9}")
    e("s_nop 4")
    e(f"s_cbranch_vccnz L_retry_{st}")
    e(f"s_branch L_ok_{st}")

a.label("L_pubx")
e(f"buffer_store_dwordx4 {v(PP,4)}, v{vL16}, {s(rWS,4)}, s{sPO} offen sc1")
e("s_branch L_nopub")
a.label("L_bad")
e(f"s_cmp_eq_u32 s{sFB}, 0")
e("s_cbranch_scc0 L_pubx")
e("v_add_u32 v7, 0x10000, v7")
e("s_branch L_nopub")
a.label("L_xr")
e(f"s_cmp_ge_u32 s{sC}, 0x10000")
e("s_cbranch_scc1 L_tbar")
e("s_branch L_xw")
a.label("L_y")
a.hist = []
for i in range(4): e(f"v_add_f32_dpp v{12+i}, v{8+i}, v{8+i} row_ror:8 row_mask:0xf bank_mask:0xf")
sum4 = [(12 + i, 16 + i) for i in range(4)]
for x_, t_ in sum4: e(f"v_mov_b32 v{t_}, v{x_}")
for x_, t_ in sum4: e(f"v_permlane32_swap_b32 v{x_}, v{t_}")
for x_, t_ in sum4: e(f"v_add_f32 v{x_}, v{x_}, v{t_}")
for x_, t_ in sum4: e(f"v_mov_b32 v{t_}, v{x_}")
for x_, t_ in sum4: e(f"v_permlane16_swap_b32 v{x_}, v{t_}")
for x_, t_ in sum4: e(f"v_add_f32 v{x_}, v{x_}, v{t_}")
e(f"v_mov_b32 v16, s{sR16}")
e("v_ashrrev_i32 v17, 31, v16")
e("v_not_b32 v17, v17")
e("v_or_b32 v17, 0x80000000, v17")
e("v_xor_b32 v16, v16, v17")
e("v_and_b32 v16, 0xffff0000, v16")
sigmoid(16)
round_bf16(16)
for i in range(4):
    round_bf16(12 + i)
    e(f"v_mul_f32 v{12+i}, v{12+i}, v16")
    round_bf16(12 + i)
e(f"s_lshl_b32 s{sB}, s{sW}, 7")
e(f"s_add_u32 s{sB}, s{sB}, {YB}")
e(f"v_add_u32 v17, s{sB}, v{vL16}")
e("s_mov_b64 exec, 0xff")
e("ds_write_b128 v17, v[12:15]")
e("s_mov_b64 exec, -1")
e(f"v_lshl_add_u32 v17, v{T+5}, 4, s{sB}")
for q in range(4): e(f"ds_read_b128 {v(O0+4*q,4)}, v17 offset:{32*q}")
e(f"s_and_b32 s{sC}, s{sSEL}, 31")
e(f"v_cmp_eq_u32 vcc, s{sC}, v{T+4}")
e("s_waitcnt lgkmcnt(0)")
e("s_mov_b64 exec, vcc")
for i in range(16): e(f"v_add_f32 v{RES+i}, v{RES+i}, v{O0+i}")
e("s_mov_b64 exec, -1")
e("s_branch L_noy")
for par, gq in GSTUB:
    a.label(f"L_or{par}{gq}")
    a.hist = []
    e(f"s_add_u32 s{sSPIN}, s{sSPIN}, 1")
    e(f"s_cmp_gt_u32 s{sSPIN}, {cfg.spin}")
    e(f"s_cbranch_scc1 L_og{par}{gq}")
    e("ds_read_b32 v51, v50")
    o_loads(par, 2 * gq, 8)
    e("s_waitcnt lgkmcnt(0)")
    e(f"v_readfirstlane_b32 s{sC}, v51")
    e(f"s_cmp_ge_u32 s{sC}, 0x10000")
    e("s_cbranch_scc1 L_tbar")
    e(f"s_branch L_oc{par}{gq}")
def job_wo(q, ret):
    if q == 3:
        Lw = L("fdn")
        a.label(Lw)
        e(f"ds_read_b32 v7, v52 offset:{FDN-GOW}")
        e("s_waitcnt lgkmcnt(0)")
        e("v_cmp_ne_u32 vcc, 1, v7")
        e("s_nop 1")
        e(f"s_cbranch_vccnz {Lw}")
    for S in range(32 * q, 32 * q + 32):
        e(f"s_mov_b32 m0, {S*1024}")
        e(f"s_mov_b32 s{sB}, {S*4096}")
        dma(10, rWO, f"s{sB}")
def job_sent(ret):
    for i in range(4): e(f"v_mov_b32 v{20+i}, -1")
    e(f"s_lshl_b32 s{sB}, s{sGR}, 16")
    e(f"s_lshl_b32 s{sC}, s{sHG}, 12")
    e(f"s_add_u32 s{sB}, s{sB}, s{sC}")
    e(f"s_add_u32 s{sB}, s{sB}, {WS_O}")
    for i in range(8):
        if i == 4: e(f"s_add_u32 s{sB}, s{sB}, 32768")
        e(f"buffer_store_dwordx4 v[20:23], v{vL16}, {s(rWS,4)}, s{sB} offen offset:{(i&3)*1024} sc1")
def job_scat(q, ret):
    e(f"s_cmp_eq_u32 s{sFV}, 1")
    e(f"s_cbranch_scc0 {ret}")
    srd(rT1, pWG, 512 * 3584)
    srd(rT2, pWU, 512 * 3584)
    for i in range(2 * q, 2 * q + 2):
        e(f"s_xor_b32 s{sA}, s{sHG}, {i}")
        e(f"s_lshl_b32 s{sC}, s{sA}, 10")
        e(f"s_add_u32 m0, s{sC}, {FB+F_G}")
        e(f"s_mul_i32 s{sB}, s{sA}, {64*3584}")
        dma(11, rT1, f"s{sB}")
        e(f"s_add_u32 m0, s{sC}, {FB+F_U}")
        dma(11, rT2, f"s{sB}")
def job_dstage(ret):
    e(f"s_cmp_eq_u32 s{sFV}, 1")
    e(f"s_cbranch_scc0 {ret}")
    srd(rT1, pWD, 1792 * 1024)
    e(f"s_lshl_b32 s{sA}, s{sF0}, 10")
    for i in range(8):
        e(f"s_mov_b32 m0, {FB+F_D+i*1088}")
        e(f"s_add_u32 s{sB}, s{sA}, {i*1024}")
        dma(vL16, rT1, f"s{sB}")
    e(f"s_mov_b32 m0, {FB+F_X}")
    e(f"s_lshl_b32 s{sB}, s{sSEL}, 10")
    dma(vL16, rX, f"s{sB}")
def job_rec(ret):
    e("s_waitcnt vmcnt(0)")
    e("s_mov_b64 exec, 1")
    e(f"s_getreg_b32 s{sB}, hwreg(HW_REG_XCC_ID, 0, 4)")
    e(f"v_mov_b32 v6, s{sT}")
    e(f"v_mov_b32 v7, s{sB}")
    e(f"s_lshl_b32 s{sA}, s{sID}, 7")
    e(f"s_add_u32 s{sA}, s{sA}, {WS_REC+16}")
    e(f"buffer_store_dwordx2 v[6:7], v{vL4}, {s(rWS,4)}, s{sA} offen sc1")
    e("s_mov_b64 exec, -1")
def job_ffn(ret):
    e(f"s_cmp_eq_u32 s{sFV}, 1")
    e("s_cbranch_scc0 L_ffn_e")
    e("s_waitcnt vmcnt(0)")
    def f_reads(S):
        w = 20 + 8 * (S % 3)
        e(f"ds_read_b64_tr_b16 {v(w,2)}, v8 offset:{F_G+S*512}")
        e(f"ds_read_b64_tr_b16 {v(w+2,2)}, v8 offset:{F_G+S*512+64}")
        e(f"ds_read_b128 {v(w+4,4)}, v9 offset:{F_X+S*64}")
    for S in range(3): f_reads(S)
    e("s_mov_b32 s18, 0x22222222")
    e("s_mov_b32 s19, 0x22222222")
    e("s_mov_b32 s20, 0x44444444")
    e("s_mov_b32 s21, 0x44444444")
    e("s_mov_b32 s22, 0x88888888")
    e("s_mov_b32 s23, 0x88888888")
    for S in range(16):
        left = min(S + 3, 16) - (S + 1)
        e(f"s_waitcnt lgkmcnt({3*left})")
        w = 20 + 8 * (S % 3)
        mf16(44, w, w + 4, "0" if S == 0 else v(44, 4))
        if S + 3 < 16: f_reads(S + 3)
    def d_reads(J0):
        for J in range(J0, J0 + 4):
            e(f"ds_read_b64_tr_b16 {v(20+4*(J&3),2)}, v16 offset:{F_D+J*128}")
            e(f"ds_read_b64_tr_b16 {v(22+4*(J&3),2)}, v16 offset:{F_D+J*128+4*1088}")
    d_reads(0)
    e("v_cndmask_b32 v44, v44, v45, s[18:19]")
    e("v_cndmask_b32 v44, v44, v46, s[20:21]")
    e("v_cndmask_b32 v44, v44, v47, s[22:23]")
    round_bf16(44)
    e("v_mov_b32 v45, v44")
    e("v_permlane32_swap_b32 v44, v45")
    e(f"v_mul_f32 v46, 0x{f2u(-1.4426950408889634):08x}, v44")
    e("v_exp_f32 v46, v46")
    e("v_add_f32 v46, 1.0, v46")
    e("v_rcp_f32 v46, v46")
    e("v_mul_f32 v44, v44, v46")
    round_bf16(44)
    e("v_mul_f32 v44, v44, v45")
    e("v_cvt_pk_bf16_f32 v44, v44, v44")
    e("s_mov_b64 exec, 0xf000f")
    e("ds_write_b16 v0, v44")
    e("s_mov_b64 exec, -1")
    e("ds_read_b128 v[48:51], v17")
    e(f"s_and_b32 s{sA}, s2, {NREP-1}")
    e(f"s_lshl_b32 s{sA}, s{sA}, 11")
    e(f"s_add_u32 s{sA}, s{sA}, {WS_Y}")
    for J0 in (0, 4):
        e("s_waitcnt lgkmcnt(0)")
        DR = (36, 40, 44, 12)
        for J in range(J0, J0 + 4):
            mf16(DR[J & 3], 48, 20 + 4 * (J & 3), "0")
        if J0 == 0: d_reads(4)
        for J in range(J0, J0 + 4):
            e(f"buffer_atomic_add_f32 v{DR[J&3]}, v{vL4}, {s(rWS,4)}, s{sA} offen offset:{J*256}")
    a.label("L_ffn_e")
    e("v_mov_b32 v7, 1")
    e(f"ds_write_b32 v52, v7 offset:{FDN-GOW}")
def job_count(ret):
    e("s_waitcnt vmcnt(0)")
    e("s_mov_b64 exec, 1")
    e(f"v_mov_b32 v7, s{sFV}")
    e(f"s_mov_b32 s{sA}, {WS_CNT}")
    e(f"buffer_atomic_add v7, v{vL4}, {s(rWS,4)}, s{sA} offen sc1")
    e("s_mov_b64 exec, -1")
def job_go(ret, val="1"):
    e(f"v_mov_b32 v7, {val}")
    e("s_waitcnt vmcnt(0)")
    e("s_mov_b64 exec, 1")
    e("ds_add_u32 v52, v7")
    e("s_mov_b64 exec, -1")
def job_gpoll(ret):
    e(f"v_and_b32 v6, 7, v{vL}")
    e("v_lshlrev_b32 v6, 7, v6")
    e(f"s_lshl_b32 s{sA}, s{sGR}, 10")
    e(f"s_add_u32 s{sA}, s{sA}, {WS_REC+16}")
    e(f"s_mov_b32 s{sSPIN}, 0")
    a.label("L_gpoll")
    e(f"buffer_load_dwordx2 v[20:21], v6, {s(rWS,4)}, s{sA} offen sc1")
    e(f"s_add_u32 s{sSPIN}, s{sSPIN}, 1")
    e("s_waitcnt vmcnt(0)")
    e(f"v_cmp_ne_u32 vcc, s{sT}, v20")
    e(f"s_cmp_gt_u32 s{sSPIN}, {cfg.spin}")
    e("s_cbranch_scc1 L_gpollout")
    e("s_cbranch_vccnz L_gpoll")
    a.label("L_gpollout")
    e(f"s_getreg_b32 s{sB}, hwreg(HW_REG_XCC_ID, 0, 4)")
    e(f"v_cmp_ne_u32 vcc, s{sB}, v21")
    e("s_cmp_eq_u64 vcc, 0")
    e(f"s_cselect_b32 s{sB}, {0x1000001 if cfg.xloc else 1}, 1")
    job_go(ret, f"s{sB}")
def job_y(ret):
    e("v_mov_b32 v6, 0")
    e(f"s_mov_b32 s{sA}, {WS_CNT}")
    e(f"s_mov_b32 s{sSPIN}, 0")
    a.label("L_ypoll")
    e(f"buffer_load_dword v7, v6, {s(rWS,4)}, s{sA} offen sc1")
    e(f"s_add_u32 s{sSPIN}, s{sSPIN}, 1")
    e("s_waitcnt vmcnt(0)")
    e(f"v_readfirstlane_b32 s{sB}, v7")
    e(f"s_cmp_gt_u32 s{sSPIN}, {cfg.spin}")
    e("s_cbranch_scc1 L_ypollout")
    e(f"s_cmp_eq_u32 s{sB}, {0 if cfg.noffn else 224}")
    e("s_cbranch_scc0 L_ypoll")
    a.label("L_ypollout")
    e(f"s_lshr_b32 s{sA}, s{sHG}, 1")
    e(f"s_lshl_b32 s{sA}, s{sA}, 9")
    e(f"s_and_b32 s{sB}, s{sW}, 1")
    e(f"s_lshl_b32 s{sB}, s{sB}, 8")
    e(f"s_add_u32 s{sA}, s{sA}, s{sB}")
    e(f"s_lshr_b32 s{sB}, s{sW}, 1")
    e(f"s_lshl_b32 s{sB}, s{sB}, 7")
    e(f"s_add_u32 s{sA}, s{sA}, s{sB}")
    e(f"s_add_u32 s{sA}, s{sA}, {WS_Y}")
    e(f"v_lshrrev_b32 v6, 3, v{vL}")
    e(f"v_and_b32 v7, 7, v{vL}")
    e("v_lshlrev_b32 v7, 4, v7")
    e("v_lshl_add_u32 v6, v6, 11, v7")
    assert NREP == 8
    e(f"buffer_load_dwordx4 v[8:11], v6, {s(rWS,4)}, s{sA} offen sc1")
for p_, d_ in sorted(JOBS.items()):
    a.label(f"L_hook{p_}")
    items = list(d_.items())
    for n_, (w_, jb) in enumerate(items):
        a.hist = []
        if n_ + 1 < len(items):
            e(f"s_cmp_eq_u32 s{sW}, {w_}")
            e(f"s_cbranch_scc0 L_hook{p_}_{n_+1}")
        ret = f"L_hret{p_}"
        if jb.startswith("wo"): job_wo(int(jb[2:]), ret)
        elif jb.startswith("scat"): job_scat(int(jb[4:]), ret)
        else: globals()["job_" + jb](ret)
        e(f"s_branch {ret}")
        if n_ + 1 < len(items): a.label(f"L_hook{p_}_{n_+1}")
for st in range(8):
    a.label(f"L_fbc_{st}")
    a.hist = []
    e(f"v_subrev_u32 v40, {QB}, v{vNq+(st&3)}")
    e("v_lshrrev_b32 v40, 10, v40")
    e(f"v_and_b32 v41, 31, v{vL}")
    e("v_lshl_add_u32 v40, v40, 5, v41")
    e("v_lshlrev_b32 v40, 2, v40")
    e(f"v_add_u32 v40, {FMX}, v40")
    e("ds_read_b32 v41, v40")
    e("s_waitcnt lgkmcnt(0)")
    for i in range(16): e(f"v_sub_f32 v{CM+i}, 0, v41")
    e("s_nop 1")
    if st == 0:
        mf32(S0, KF, QF, v(CM, 16))
        e("s_nop 7")
        e("s_nop 3")
        e("s_branch L_attn")
    else:
        e(f"s_branch L_fbr_{st}")
a.label("L_fallback")
a.hist = []
e("s_waitcnt vmcnt(0)")
e(f"s_mov_b32 s{sFB}, 1")
e(f"s_mov_b32 s{sHK}, 0")
e(f"v_and_b32 v40, 31, v{vL}")
e(f"v_lshrrev_b32 v41, 5, v{vL}")
e("v_lshlrev_b32 v26, 5, v40")
e("v_lshl_add_u32 v26, v41, 4, v26")
e(f"v_add_u32 v27, {WS_V}, v{vL16}")
for j in range(8): kv_load(j)
e(f"v_lshlrev_b32 v47, 2, v{vG}")
e(f"v_xor_b32 v47, v47, v{vTK}")
e("v_lshlrev_b32 v47, 4, v47")
e(f"v_lshl_add_u32 v47, v{vG}, 10, v47")
e(f"s_lshr_b32 s{sA}, s{sHG}, 1")
e(f"s_lshl_b32 s{sA}, s{sA}, 8")
e(f"v_add_u32 v47, s{sA}, v47")
e(f"s_lshl_b32 s{sA}, s{sW}, 14")
e(f"s_lshl_b32 s{sE}, s{sW}, 12")
for i in range(4):
    e(f"s_add_u32 m0, s{sE}, {i*1024}")
    e(f"s_add_u32 s{sB}, s{sA}, {i*4096}")
    dma(47, rWO, f"s{sB}")
e(f"v_and_b32 v40, 11, v{vTK}")
e("v_cmp_eq_u32 vcc, 0, v40")
e("v_mov_b32 v41, 0x3f803f80")
e("s_nop 7")
e(f"v_cndmask_b32 v{V1}, 0, v41, vcc")
for i in range(1, 32): e(f"v_mov_b32 v{V1+i}, v{V1}")
e(f"v_lshl_or_b32 v40, s{sW}, 6, v{vL}")
e("v_and_b32 v40, 255, v40")
e("v_lshlrev_b32 v40, 2, v40")
e(f"v_add_u32 v40, {FMX}, v40")
e("v_mov_b32 v41, 0xff800000")
e("ds_write_b32 v40, v41")
zero_slots(44)
for k in range(4): e(f"v_xor_b32 v{vNq+k}, 4096, v{vNq+k}")
e(f"v_add_u32 v42, {QB}, v{vL16}")
e(f"v_and_b32 v43, 31, v{vL}")
e("v_lshlrev_b32 v43, 2, v43")
e(f"v_add_u32 v43, {FMX}, v43")
e(f"s_mov_b32 s{sIT}, 0")
e("s_waitcnt vmcnt(0) lgkmcnt(0)")
e("s_barrier")
e("ds_write_b32 v50, v44")
a.label("L_fb_loop")
e(f"ds_read_b128 {v(QF,4)}, v42")
e("v_mov_b32 v41, 0xff800000")
e("s_waitcnt lgkmcnt(0)")
for j in range(8):
    mf32(S0, KF + 4 * j, QF, "0")
    for r in range(0, 16, 2):
        e(f"v_max3_f32 v41, v41, v{S0+r}, v{S0+r+1}")
e("ds_max_f32 v43, v41")
e("v_add_u32 v42, 1024, v42")
e("v_add_u32 v43, 128, v43")
e(f"s_add_u32 s{sIT}, s{sIT}, 1")
e(f"s_cmp_lt_u32 s{sIT}, 8")
e("s_cbranch_scc1 L_fb_loop")
e("s_waitcnt lgkmcnt(0)")
e("s_barrier")
e(f"ds_read_b128 {v(QF,4)}, v{vNq}")
e("s_branch L_fbc_0")
a.label("L_code_end")

a.raw(f""".section .rodata,"a"
.p2align 6
.amdhsa_kernel {NAME}_kernel
  .amdhsa_next_free_vgpr 256
  .amdhsa_next_free_sgpr 102
  .amdhsa_accum_offset 256
  .amdhsa_group_segment_fixed_size 0
  .amdhsa_kernarg_size 112
  .amdhsa_user_sgpr_count 2
  .amdhsa_user_sgpr_kernarg_segment_ptr 1
  .amdhsa_system_sgpr_workgroup_id_x 1
.end_amdhsa_kernel""")
open(sys.argv[1], "w").write(a.text())
print("nops added:", a.nops_added, "stamps:", STAMPS)
```
